```python
import torch

def _softmax(x, axis=-1):
    return torch.softmax(x, dim=axis)

def _gelu(x):
    return torch.nn.functional.gelu(x, approximate='tanh')

def _silu(x):
    return torch.nn.functional.silu(x)

def _sigmoid(x):
    return torch.sigmoid(x)

def _layernorm(x, axis=-1, eps=1e-05):
    m = x.mean(dim=axis, keepdim=True)
    v = x.var(dim=axis, keepdim=True, unbiased=False)
    return (x - m) / torch.sqrt(v + eps)

def _scatter_add(tgt, idx, src, axis=0):
    return tgt.clone().index_add_(axis, idx, src)

def _segment_sum(src, seg, n):
    out = torch.zeros((n,) + src.shape[1:], dtype=src.dtype)
    return out.index_add_(0, seg, src)

def _pad(x, pw):
    flat = tuple((v for pair in reversed(pw) for v in pair))
    return torch.nn.functional.pad(x, flat)
kernel_name = 'standalone__tree_speculative_verify_tree_attention_over_candidate_token_tree__decode'

def setup_inputs():

    _w = lambda a: (lambda t: t.to(torch.bfloat16) if t.is_floating_point() else t)(torch.as_tensor(a))
    B, Hq, Hkv, T, C, D = (8, 32, 8, 1, 4096, 128)
    tree_mask = torch.zeros((B, T, T), dtype=float)
    for b in range(B):
        parent = torch.zeros(T, dtype=torch.int64)
        for i in range(1, T):
            parent[i] = int(torch.randint(0, i, (1,)).item())
        for i in range(T):
            j = i
            tree_mask[b, i, j] = 1.0
            while j > 0:
                j = parent[j]
                tree_mask[b, i, j] = 1.0
    return {'q': _w((lambda *s: torch.randn(*s, dtype=torch.bfloat16) * 0.8)(B, Hq, T, D)), 'k_cache': _w((lambda *s: torch.randn(*s, dtype=torch.bfloat16) * 0.8)(B, Hkv, C, D)), 'v_cache': _w((lambda *s: torch.randn(*s, dtype=torch.bfloat16) * 0.05)(B, Hkv, C, D)), 'k_tree': _w((lambda *s: torch.randn(*s, dtype=torch.bfloat16) * 0.8)(B, Hkv, T, D)), 'v_tree': _w((lambda *s: torch.randn(*s, dtype=torch.bfloat16) * 0.05)(B, Hkv, T, D)), 'tree_mask': _w(tree_mask)}

def reference(q, k_cache, v_cache, k_tree, v_tree, tree_mask):
    B, Hq, T, D = q.shape
    Hkv, C = (k_cache.shape[1], k_cache.shape[2])
    rep = Hq // Hkv
    kc = (lambda x, n, axis: torch.repeat_interleave(x, n, dim=axis))(k_cache, rep, axis=1)
    vc = (lambda x, n, axis: torch.repeat_interleave(x, n, dim=axis))(v_cache, rep, axis=1)
    kt = (lambda x, n, axis: torch.repeat_interleave(x, n, dim=axis))(k_tree, rep, axis=1)
    vt = (lambda x, n, axis: torch.repeat_interleave(x, n, dim=axis))(v_tree, rep, axis=1)
    k = torch.concatenate([kc, kt], axis=2)
    v = torch.concatenate([vc, vt], axis=2)
    scale = D ** (-0.5)
    scores = torch.einsum('bhqd,bhkd->bhqk', q, k) * scale
    ctx_mask = torch.ones((B, 1, T, C), dtype=scores.dtype)
    tm = tree_mask[:, None, :, :].clone()
    full_mask = torch.concatenate([ctx_mask, tm], axis=-1)
    scores = scores + (1.0 - full_mask) * -1000000000.0
    p = _softmax(scores, axis=-1)
    return torch.einsum('bhqk,bhkd->bhqd', p, v)
```

```python
import re

REG_RE = re.compile(r'^(-|\|)?(abs\()?([vas])(\d+)\)?\|?$')
RANGE_RE = re.compile(r'^(-)?([vas])\[(\d+):(\d+)\]$')


def regs_of(tok):
    tok = tok.strip()
    m = RANGE_RE.match(tok)
    if m:
        return [(m.group(2), i) for i in range(int(m.group(3)), int(m.group(4)) + 1)]
    m = REG_RE.match(tok)
    if m:
        return [(m.group(3), int(m.group(4)))]
    if tok == 'vcc':
        return [('x', 'vcc')]
    if tok in ('vcc_lo', 'vcc_hi'):
        return [('x', 'vcc')]
    if tok in ('exec', 'exec_lo', 'exec_hi'):
        return [('x', 'exec')]
    if tok == 'm0':
        return [('x', 'm0')]
    return []


TRANS = ('v_exp_f32', 'v_log_f32', 'v_rcp_f32', 'v_rsq_f32', 'v_sqrt_f32', 'v_sin_f32', 'v_cos_f32')


class Ins:
    __slots__ = ('text', 'op', 'kind', 'dst', 'src', 'passes', 'A', 'B', 'C', 'states', 'dpp', 'lds_dma',
                 'wide_store', 'data')

    def __init__(self, text):
        self.text = text
        body = text.split(';')[0].strip()
        parts = body.split(None, 1)
        self.op = parts[0]
        rest = parts[1] if len(parts) > 1 else ''
        toks = [t.strip() for t in rest.split(',')] if rest else []
        mods = ''
        if toks:
            last = toks[-1].split()
            if last:
                toks[-1] = last[0]
                mods = ' '.join(last[1:])
        op = self.op
        self.states = 1
        self.dst, self.src = [], []
        self.A = self.B = self.C = []
        self.passes = 0
        self.dpp = ('quad_perm' in mods or 'row_' in mods or 'wave_' in mods)
        self.lds_dma = False
        self.wide_store = False
        self.data = []
        R = [regs_of(t) for t in toks]
        flat = lambda l: [r for x in l for r in x]
        if op == 's_nop':
            self.kind = 'nop'
            self.states = int(toks[0], 0) + 1
        elif op.startswith('v_mfma'):
            self.kind = 'mfma'
            self.passes = 8 if '32x32' in op else 4
            self.dst = R[0]
            self.A, self.B, self.C = R[1], R[2], R[3]
            self.src = R[1] + R[2] + R[3]
        elif op.startswith('v_'):
            self.kind = 'valu'
            base = op.replace('_e32', '').replace('_e64', '').replace('_dpp', '')
            if base.startswith('v_permlane') and 'swap' in base:
                self.dst = R[0] + R[1]
                self.src = R[0] + R[1]
            elif base.startswith('v_cmp'):
                self.dst = R[0]
                self.src = flat(R[1:])
            elif base.startswith(('v_add_co', 'v_sub_co', 'v_addc_co', 'v_subb_co', 'v_subrev_co')):
                self.dst = R[0] + R[1]
                self.src = flat(R[2:])
            else:
                self.dst = R[0]
                self.src = flat(R[1:])
                if base.startswith(('v_fmac', 'v_dot2c', 'v_writelane')) or self.dpp:
                    self.src = self.src + R[0]
        elif op.startswith('ds_'):
            self.kind = 'ds'
            if op.startswith(('ds_read', 'ds_bpermute', 'ds_permute', 'ds_swizzle')):
                self.dst = R[0]
                self.src = flat(R[1:])
            else:
                self.src = flat(R)
        elif op.startswith(('buffer_', 'global_', 'flat_')):
            self.kind = 'vmem'
            ml = mods.split()
            if 'lds' in ml or '_lds_' in op:
                self.lds_dma = True
                self.src = flat(R)
            elif 'load' in op:
                self.dst = R[0]
                self.src = flat(R[1:])
            elif 'atomic' in op:
                if 'sc0' in ml:
                    self.dst = R[0]
                    self.src = flat(R[1:])
                else:
                    self.src = flat(R)
            elif 'store' in op:
                self.src = flat(R)
                if 'x4' in op or 'x3' in op:
                    self.wide_store = True
                    self.data = R[0] if op.startswith('buffer_') else R[1]
            else:
                self.src = flat(R)
        elif op.startswith('s_'):
            self.kind = 'salu'
            nodst = ('s_cmp', 's_waitcnt', 's_barrier', 's_branch', 's_cbranch', 's_endpgm', 's_sleep',
                     's_setprio', 's_bitcmp', 's_sethalt', 's_setreg')
            if op.startswith(nodst):
                self.src = flat(R)
            else:
                self.dst = R[0] if R else []
                self.src = flat(R[1:])
        else:
            raise ValueError('cannot classify: ' + text)


def need_states(p, c):
    need = 0
    pd = set(p.dst)
    cs, cd = set(c.src), set(c.dst)
    pv = {r for r in pd if r[0] in 'va'}
    ps = {r for r in pd if r[0] == 's' or r == ('x', 'vcc')}
    if p.kind == 'valu':
        trans = p.op.replace('_e32', '').replace('_e64', '') in TRANS
        if c.kind == 'mfma' and pv & cs:
            need = max(need, 2)
        if c.kind == 'valu':
            if trans and pv & cs:
                need = max(need, 1)
            if pv & cs:
                if c.op.startswith(('v_readlane', 'v_readfirstlane')):
                    need = max(need, 1)
                if c.op.startswith('v_permlane'):
                    need = max(need, 2)
                if c.dpp:
                    need = max(need, 2)
            if ps & cs:
                need = max(need, 4 if c.op.startswith(('v_readlane', 'v_writelane')) else 2)
        if c.kind == 'vmem' and ps & cs:
            need = max(need, 5)
        if c.kind == 'salu' and ps & cs:
            need = max(need, 4)
    if p.kind == 'mfma':
        big = p.passes == 8
        if c.kind == 'mfma':
            if pv & (set(c.A) | set(c.B)):
                need = max(need, 12 if big else 8)
            if pv & set(c.C):
                if not (c.C == p.dst and c.passes == p.passes):
                    need = max(need, 10 if big else 6)
            if pv & cd and c.C != p.dst:
                need = max(need, 10 if big else 6)
        elif c.kind in ('valu', 'ds', 'vmem'):
            if pv & (cs | cd):
                need = max(need, 12 if big else 8)
        if c.kind == 'valu' and set(p.C) & cd:
            need = max(need, 7 if big else 3)
    if p.kind == 'salu':
        if ('x', 'm0') in pd and c.lds_dma:
            need = max(need, 1)
    if p.kind == 'vmem' and p.wide_store:
        if set(p.data) & cd:
            need = max(need, 2 if c.kind == 'valu' else 1)
    return need


class Asm:
    def __init__(self):
        self.lines = []

    def __call__(self, text):
        for ln in text.split('\n'):
            if ln.strip():
                self.lines.append(ln.strip())

    def nop(self, n):
        while n > 0:
            k = min(n, 16)
            self.lines.append('s_nop %d' % (k - 1))
            n -= k

    def label(self, name):
        self.lines.append(name + ':')

    def comment(self, t):
        self.lines.append('; ' + t)

    def finalize(self, verbose=False):
        out = []
        hist = []
        inserted = 0
        for ln in self.lines:
            if ln.startswith(';') or ln.startswith('.') or ln.endswith(':'):
                out.append(ln if ln.endswith(':') or ln.startswith('.') else '    ' + ln)
                continue
            c = Ins(ln)
            if c.kind != 'nop':
                need = 0
                dist = 0
                for p in reversed(hist):
                    if dist >= 24:
                        break
                    n = need_states(p, c)
                    if n > dist:
                        need = max(need, n - dist)
                    dist += p.states
                if need:
                    inserted += need
                    k = need
                    while k > 0:
                        kk = min(k, 16)
                        t = 's_nop %d' % (kk - 1)
                        out.append('    ' + t)
                        hist.append(Ins(t))
                        k -= kk
            out.append('    ' + ln)
            hist.append(c)
            if len(hist) > 40:
                hist = hist[-40:]
        if verbose:
            print('auto-inserted wait states:', inserted)
        return '\n'.join(out) + '\n'
```

```python
import argparse
import math
import struct
import sys
import os

sys.path.insert(0, os.path.dirname(os.path.abspath(__file__)))
from asmlib import Asm

NAME = 'standalone__tree_speculative_verify_tree_attention_over_candidate_token_tree__decode'
KMAIN = NAME + '_kernel'
KCOMB = 'tree_attn_combine_kernel'

HEADER = """; Kernarg layout for this problem (72 bytes, ptrs only, base s[0:1]):
"""


def f2u(x):
    return struct.unpack('<I', struct.pack('<f', x))[0]


def hx(x):
    return '0x%08x' % (x & 0xffffffff)


SCALE_LOG2E = (128.0 ** -0.5) * math.log2(math.e)
NEG_BIG_LOG2E = -1.0e9 * math.log2(math.e)

PIECE = 1056
TILE = 8 * PIECE


class Cfg:
    def __init__(self, **kw):
        self.nw = 4
        self.ns = 4
        self.kpol = ''
        self.vpol = ''
        self.interleave = 0
        self.rot = 0
        self.mode = 'two'
        self.stamp = 0
        self.__dict__.update(kw)


class VM:
    def __init__(self, a):
        self.a = a
        self.ops = []

    def issue(self, text, tag):
        self.a(text)
        self.ops.append(tag)

    def wait(self, *tags):
        last = max(i for i, t in enumerate(self.ops) if t in tags)
        n = len(self.ops) - 1 - last
        assert n <= 63, n
        self.a('s_waitcnt vmcnt(%d)' % n)

    def wait_all(self):
        self.a('s_waitcnt vmcnt(0)')


def gen_main(cfg):
    a = Asm()
    vm = VM(a)
    NW, NS = cfg.nw, cfg.ns
    NT = 32 // NW
    RING = NS * TILE
    RED = NW * RING
    PSTR = 2176
    LDS = RED + NW * PSTR
    assert LDS <= 163840, LDS
    lognw = int(math.log2(NW))

    sWave, sP, sJ = 3, 36, 37
    sBase, sOff, sLds, sC = 32, 33, 34, 35
    sT0, sT1, sT2, sT3 = 38, 39, 40, 41
    vLane, vL16, vL16b, vK, vV = 1, 2, 3, 4, 5
    vT0, vT1, vT2, vT3 = 6, 7, 8, 9
    vTree, vVt, vMask = 10, 11, 12
    vM, vL = 13, 14
    vQ = 16
    vStage = 32
    vS = 64
    vP = vS + NT * 8
    vO = vP + NT * 4
    vKt = vO + 32
    vTD = vKt + 16
    nvgpr = vTD + 4

    def r(base, n):
        return 'v[%d:%d]' % (base, base + n - 1)

    a('s_cmp_ge_u32 s2, 256')
    a('s_cbranch_scc1 L_end')
    a('s_load_dwordx16 s[4:19], s[0:1], 0')
    a('s_load_dwordx2 s[20:21], s[0:1], 64')
    a('v_readfirstlane_b32 s3, v0')
    a('v_and_b32 v%d, 63, v0' % vLane)
    a('v_lshlrev_b32 v%d, 4, v%d' % (vL16, vLane))
    a('s_lshr_b32 s3, s3, 6')
    a('s_mov_b32 s26, 0x4000000')
    a('s_mov_b32 s27, 0x20000')
    a('s_mov_b32 s30, 0x4000000')
    a('s_mov_b32 s31, 0x20000')
    a('s_mul_i32 s%d, s3, %d' % (sLds, RING))
    a('s_lshl_b32 s%d, s2, 18' % sBase)
    if cfg.interleave:
        a('s_lshl_b32 s%d, s3, 13' % sT0)
    else:
        a('s_lshl_b32 s%d, s3, %d' % (sT0, 18 - lognw))
    a('s_add_u32 s%d, s%d, s%d' % (sBase, sBase, sT0))
    a('v_add_u32 v%d, 4096, v%d' % (vL16b, vL16))
    a('s_lshr_b32 s%d, s2, 2' % sP)
    a('s_and_b32 s%d, s2, 3' % sJ)
    tstride = (NW * 8192) if cfg.interleave else 8192

    if cfg.rot:
        sRot = 42
        a('s_lshr_b32 s%d, s2, %d' % (sRot, cfg.rot - 1))
        a('s_and_b32 s%d, s%d, %d' % (sRot, sRot, NT - 1))

    def tile_off(n):
        t = n % NT
        if cfg.rot:
            a('s_add_u32 s%d, s42, %d' % (sOff, t))
            a('s_and_b32 s%d, s%d, %d' % (sOff, sOff, NT - 1))
            a('s_mul_i32 s%d, s%d, %d' % (sOff, sOff, tstride))
            a('s_add_u32 s%d, s%d, s%d' % (sOff, sOff, sBase))
        else:
            a('s_add_u32 s%d, s%d, %d' % (sOff, sBase, t * tstride))

    def issue_tile(n):
        isk = n < NT
        slot = n % NS
        srd = 's[24:27]' if isk else 's[28:31]'
        pol = cfg.kpol if isk else cfg.vpol
        tile_off(n)
        for i in range(8):
            m0 = slot * TILE + i * 32 + (4096 if i >= 4 else 0)
            a('s_add_u32 m0, s%d, %d' % (sLds, m0))
            voff = vL16 if i < 4 else vL16b
            off = (i & 3) * 1024
            txt = 'buffer_load_dwordx4 v%d, %s, s%d offen' % (voff, srd, sOff)
            if off:
                txt += ' offset:%d' % off
            if pol:
                txt += ' ' + pol
            txt += ' lds'
            vm.issue(txt, ('tile', n))

    a('s_waitcnt lgkmcnt(0)')
    a('s_mov_b64 s[24:25], s[6:7]')
    a('s_mov_b64 s[28:29], s[8:9]')
    issue_tile(0)

    a('v_and_b32 v%d, 3, v%d' % (vT0, vLane))
    a('v_lshlrev_b32 v%d, 8, v%d' % (vT0, vT0))
    a('v_lshrrev_b32 v%d, 4, v%d' % (vT1, vLane))
    a('v_lshlrev_b32 v%d, 4, v%d' % (vT1, vT1))
    a('s_lshl_b32 s%d, s%d, 10' % (sT0, sP))
    a('s_lshl_b32 s%d, s%d, 8' % (sT1, sP))
    a('v_add3_u32 v%d, v%d, v%d, s%d' % (vT0, vT0, vT1, sT0))
    a('v_add_u32 v%d, s%d, v%d' % (vT1, sT1, vT1))
    a('v_lshlrev_b32 v%d, 2, v%d' % (vT2, vLane))
    a('v_add_u32 v%d, s%d, v%d' % (vT2, sT1, vT2))
    a('s_lshr_b32 s%d, s%d, 3' % (sT2, sP))
    a('s_lshl_b32 s%d, s%d, 1' % (sT2, sT2))
    a('v_mov_b32 v%d, s%d' % (vT3, sT2))
    for s in range(4):
        vm.issue('global_load_dwordx4 %s, v%d, s[4:5] offset:%d' % (r(vQ + 4 * s, 4), vT0, s * 64), 'small')
    for s in range(4):
        vm.issue('global_load_dwordx4 %s, v%d, s[10:11] offset:%d' % (r(vKt + 4 * s, 4), vT1, s * 64), 'small')
    vm.issue('global_load_dword v%d, v%d, s[12:13]' % (vVt, vT2), 'small')
    vm.issue('global_load_ushort v%d, v%d, s[14:15]' % (vMask, vT3), 'small')
    for n in range(1, NS):
        issue_tile(n)

    a('v_and_b32 v%d, 7, v%d' % (vT0, vLane))
    a('v_mul_u32_u24 v%d, %d, v%d' % (vT0, PIECE, vT0))
    a('v_bfe_u32 v%d, v%d, 3, 1' % (vT1, vLane))
    a('v_lshlrev_b32 v%d, 8, v%d' % (vT1, vT1))
    a('v_lshrrev_b32 v%d, 4, v%d' % (vT2, vLane))
    a('v_lshlrev_b32 v%d, 4, v%d' % (vT2, vT2))
    a('v_add3_u32 v%d, v%d, v%d, v%d' % (vK, vT0, vT1, vT2))
    a('v_add_u32 v%d, s%d, v%d' % (vK, sLds, vK))
    a('v_bfe_u32 v%d, v%d, 2, 3' % (vT0, vLane))
    a('v_mul_u32_u24 v%d, %d, v%d' % (vT0, PIECE, vT0))
    a('v_lshrrev_b32 v%d, 5, v%d' % (vT1, vLane))
    a('v_lshlrev_b32 v%d, 8, v%d' % (vT1, vT1))
    a('v_and_b32 v%d, 3, v%d' % (vT2, vLane))
    a('v_lshlrev_b32 v%d, 3, v%d' % (vT2, vT2))
    a('v_add3_u32 v%d, v%d, v%d, v%d' % (vV, vT0, vT1, vT2))
    a('v_add_u32 v%d, s%d, v%d' % (vV, sLds, vV))
    a('s_mov_b32 s%d, %s' % (sC, hx(f2u(SCALE_LOG2E))))
    for i in range(32):
        a('v_mov_b32 v%d, 0' % (vO + i))

    def tree_score():
        for s in range(4):
            a('v_mfma_f32_16x16x32_bf16 %s, %s, %s, %s' % (
                r(vTD, 4), r(vKt + 4 * s, 4), r(vQ + 4 * s, 4), '0' if s == 0 else r(vTD, 4)))
        a('s_and_b32 s%d, s3, 3' % sT0)
        a('v_lshlrev_b32 v%d, 16, v%d' % (vMask, vMask))
        a('v_sub_f32 v%d, 1.0, v%d' % (vMask, vMask))
        a('v_mul_f32 v%d, %s, v%d' % (vMask, hx(f2u(NEG_BIG_LOG2E)), vMask))
        a('s_cmp_eq_u32 s%d, 0' % sJ)
        a('s_cselect_b32 s%d, 0, 0xff800000' % sT1)
        a('v_readlane_b32 s%d, v%d, s%d' % (sT2, vTD, sT0))
        a('v_mov_b32 v%d, s%d' % (vTree, sT2))
        a('v_fma_f32 v%d, v%d, s%d, v%d' % (vTree, vTree, sC, vMask))
        a('v_add_f32 v%d, s%d, v%d' % (vTree, sT1, vTree))

    def k_tile(n):
        t = n
        slot = n % NS
        if n == 0:
            vm.wait(('tile', 0), 'small')
        else:
            vm.wait(('tile', n))
        for w in range(2):
            for s in range(4):
                a('ds_read_b128 %s, v%d offset:%d' % (
                    r(vStage + 16 * w + 4 * s, 4), vK, slot * TILE + w * 512 + s * 64))
        a('s_waitcnt lgkmcnt(0)')
        if n + NS < 2 * NT:
            issue_tile(n + NS)
        for s in range(4):
            for w in range(2):
                d = r(vS + 8 * t + 4 * w, 4)
                a('v_mfma_f32_16x16x32_bf16 %s, %s, %s, %s' % (
                    d, r(vStage + 16 * w + 4 * s, 4), r(vQ + 4 * s, 4), '0' if s == 0 else d))
        if n == 0:
            tree_score()

    def xg_reduce(v, op):
        a('v_mov_b32 v%d, v%d' % (vT0, v))
        a('v_permlane32_swap_b32 v%d, v%d' % (vT0, v))
        a('%s v%d, v%d, v%d' % (op, v, v, vT0))
        a('v_mov_b32 v%d, v%d' % (vT0, v))
        a('v_permlane16_swap_b32 v%d, v%d' % (vT0, v))
        a('%s v%d, v%d, v%d' % (op, v, v, vT0))

    def softmax():
        n = NT * 8
        acc = [vM, vT1, vT2, vT3]
        idx = 0
        for k in range(4):
            a('v_max3_f32 v%d, v%d, v%d, v%d' % (acc[k], vS + idx, vS + idx + 1, vS + idx + 2))
            idx += 3
        k = 0
        while idx + 1 < n:
            a('v_max3_f32 v%d, v%d, v%d, v%d' % (acc[k], acc[k], vS + idx, vS + idx + 1))
            idx += 2
            k = (k + 1) % 4
        while idx < n:
            a('v_max_f32 v%d, v%d, v%d' % (acc[k], acc[k], vS + idx))
            idx += 1
        a('v_max3_f32 v%d, v%d, v%d, v%d' % (vM, vM, vT1, vT2))
        a('v_max_f32 v%d, v%d, v%d' % (vM, vM, vT3))
        xg_reduce(vM, 'v_max_f32')
        a('v_mul_f32 v%d, s%d, v%d' % (vM, sC, vM))
        a('v_mov_b32 v%d, 0' % vL)
        a('v_mov_b32 v%d, 0' % vT1)
        for t in range(NT):
            b = vS + 8 * t
            for i in range(8):
                a('v_fma_f32 v%d, v%d, s%d, -v%d' % (b + i, b + i, sC, vM))
            for i in range(8):
                a('v_exp_f32 v%d, v%d' % (b + i, b + i))
            for i in range(4):
                a('v_cvt_pk_bf16_f32 v%d, v%d, v%d' % (vP + 4 * t + i, b + 2 * i, b + 2 * i + 1))
            for i in range(4):
                a('v_add_f32 v%d, v%d, v%d' % (vL, vL, b + 2 * i))
                a('v_add_f32 v%d, v%d, v%d' % (vT1, vT1, b + 2 * i + 1))
        a('v_add_f32 v%d, v%d, v%d' % (vL, vL, vT1))
        xg_reduce(vL, 'v_add_f32')

    def v_tile(n):
        t = n - NT
        slot = n % NS
        vm.wait(('tile', n))
        last = (n == 2 * NT - 1)
        for half in range(2):
            for b in range(4 * half, 4 * half + 4):
                for w in range(2):
                    a('ds_read_b64_tr_b16 %s, v%d offset:%d' % (
                        r(vStage + 4 * b + 2 * w, 2), vV, slot * TILE + w * 512 + b * 32))
            if half == 0:
                pass
        if n + NS < 2 * NT:
            a('s_waitcnt lgkmcnt(0)')
            issue_tile(n + NS)
            for b in range(8):
                a('v_mfma_f32_16x16x32_bf16 %s, %s, %s, %s' % (
                    r(vO + 4 * b, 4), r(vStage + 4 * b, 4), r(vP + 4 * t, 4), r(vO + 4 * b, 4)))
        else:
            for b in range(8):
                a('s_waitcnt lgkmcnt(%d)' % (14 - 2 * b))
                a('v_mfma_f32_16x16x32_bf16 %s, %s, %s, %s' % (
                    r(vO + 4 * b, 4), r(vStage + 4 * b, 4), r(vP + 4 * t, 4), r(vO + 4 * b, 4)))

    for n in range(NT):
        k_tile(n)
    softmax()
    for n in range(NT, 2 * NT):
        v_tile(n)

    a('s_mul_i32 s%d, s3, %d' % (sT0, PSTR))
    a('s_add_u32 s%d, s%d, %d' % (sT0, sT0, RED))
    a('v_and_b32 v%d, 3, v%d' % (vT0, vLane))
    a('v_mul_u32_u24 v%d, 528, v%d' % (vT1, vT0))
    a('v_lshrrev_b32 v%d, 4, v%d' % (vT2, vLane))
    a('v_lshlrev_b32 v%d, 4, v%d' % (vT2, vT2))
    a('v_add3_u32 v%d, v%d, v%d, s%d' % (vT1, vT1, vT2, sT0))
    a('v_lshlrev_b32 v%d, 3, v%d' % (vT0, vT0))
    a('v_add_u32 v%d, s%d, v%d' % (vT0, sT0, vT0))
    a('v_mov_b32 v%d, v%d' % (vT2, vM))
    a('v_mov_b32 v%d, v%d' % (vT3, vL))
    a('s_mov_b32 exec_lo, 0x000f000f')
    a('s_mov_b32 exec_hi, 0x000f000f')
    for b in range(8):
        a('ds_write_b128 v%d, %s offset:%d' % (vT1, r(vO + 4 * b, 4), b * 64))
    a('s_mov_b32 exec_lo, 0x0000000f')
    a('s_mov_b32 exec_hi, 0')
    a('ds_write_b64 v%d, %s offset:2112' % (vT0, r(vT2, 2)))
    a('s_mov_b64 exec, -1')
    a('s_waitcnt lgkmcnt(0)')
    a('s_barrier')
    if NW > 4:
        a('s_cmp_ge_u32 s3, 4')
        a('s_cbranch_scc1 L_end')
    x = vStage
    a('s_mul_i32 s%d, s3, 528' % sT0)
    a('s_add_u32 s%d, s%d, %d' % (sT0, sT0, RED))
    a('v_lshlrev_b32 v%d, 3, v%d' % (vT0, vLane))
    a('v_add_u32 v%d, s%d, v%d' % (vT0, sT0, vT0))
    a('s_lshl_b32 s%d, s3, 3' % sT1)
    a('s_add_u32 s%d, s%d, %d' % (sT1, sT1, RED + 2112))
    a('v_mov_b32 v%d, s%d' % (vT1, sT1))
    for w in range(NW):
        a('ds_read_b64 %s, v%d offset:%d' % (r(x + 16 + 2 * w, 2), vT1, w * PSTR))
    if NW > 4:
        a('s_waitcnt lgkmcnt(0)')
    for w in range(NW):
        a('ds_read_b64 %s, v%d offset:%d' % (r(x + 2 * w, 2), vT0, w * PSTR))
    if NW == 4:
        a('s_waitcnt lgkmcnt(%d)' % NW)
    mreg = [x + 16 + 2 * w for w in range(NW)]
    lreg = [x + 17 + 2 * w for w in range(NW)]
    a('v_max3_f32 v%d, v%d, v%d, v%d' % (vM, vTree, mreg[0], mreg[1]))
    for w in range(2, NW, 2):
        a('v_max3_f32 v%d, v%d, v%d, v%d' % (vM, vM, mreg[w], mreg[w + 1]))
    for w in range(NW):
        a('v_sub_f32 v%d, v%d, v%d' % (mreg[w], mreg[w], vM))
    a('v_sub_f32 v%d, v%d, v%d' % (vTree, vTree, vM))
    for w in range(NW):
        a('v_exp_f32 v%d, v%d' % (mreg[w], mreg[w]))
    a('v_exp_f32 v%d, v%d' % (vTree, vTree))
    a('v_lshlrev_b32 v%d, 16, v%d' % (vT2, vVt))
    a('v_and_b32 v%d, 0xffff0000, v%d' % (vT3, vVt))
    a('v_mul_f32 v%d, v%d, v%d' % (vT2, vT2, vTree))
    a('v_mul_f32 v%d, v%d, v%d' % (vT3, vT3, vTree))
    a('v_mov_b32 v%d, v%d' % (vL, vTree))
    for w in range(NW):
        a('v_fmac_f32 v%d, v%d, v%d' % (vL, mreg[w], lreg[w]))
    a('s_waitcnt lgkmcnt(0)')
    for w in range(NW):
        a('v_fmac_f32 v%d, v%d, v%d' % (vT2, mreg[w], x + 2 * w))
        a('v_fmac_f32 v%d, v%d, v%d' % (vT3, mreg[w], x + 2 * w + 1))

    if cfg.mode == 'two':
        a('v_mov_b32 v%d, v%d' % (x, vT2))
        a('v_mov_b32 v%d, v%d' % (x + 1, vT3))
        a('v_mov_b32 v%d, v%d' % (x + 2, vM))
        a('v_mov_b32 v%d, v%d' % (x + 3, vL))
        a('s_lshl_b32 s%d, s%d, 2' % (sT0, sP))
        a('s_add_u32 s%d, s%d, s3' % (sT0, sT0))
        a('s_lshl_b32 s%d, s%d, 2' % (sT0, sT0))
        a('s_add_u32 s%d, s%d, s%d' % (sT0, sT0, sJ))
        a('s_lshl_b32 s%d, s%d, 10' % (sT0, sT0))
        a('v_add_u32 v%d, s%d, v%d' % (vT0, sT0, vL16))
        a('global_store_dwordx4 v%d, %s, s[20:21]' % (vT0, r(x, 4)))
    else:
        raise NotImplementedError(cfg.mode)
    a.label('L_end')
    a('s_endpgm')
    return a, LDS, nvgpr


def gen_combine(cfg):
    a = Asm()
    a('s_cmp_ge_u32 s2, 64')
    a('s_cbranch_scc1 L_cend')
    a('s_load_dwordx2 s[4:5], s[0:1], 48')
    a('s_load_dwordx2 s[6:7], s[0:1], 64')
    a('v_lshlrev_b32 v1, 4, v0')
    a('v_and_b32 v2, 63, v0')
    a('v_lshrrev_b32 v3, 6, v0')
    a('v_lshlrev_b32 v1, 4, v2')
    a('v_lshlrev_b32 v4, 12, v3')
    a('s_lshl_b32 s3, s2, 14')
    a('v_add3_u32 v1, v1, v4, s3')
    a('s_lshl_b32 s8, s2, 10')
    a('v_lshlrev_b32 v5, 2, v0')
    a('v_add_u32 v5, s8, v5')
    a('s_waitcnt lgkmcnt(0)')
    for j in range(4):
        a('global_load_dwordx4 v[%d:%d], v1, s[6:7] offset:%d' % (8 + 4 * j, 11 + 4 * j, j * 1024))
    a('s_waitcnt vmcnt(0)')
    a('v_max3_f32 v6, v10, v14, v18')
    a('v_max_f32 v6, v6, v22')
    for j in range(4):
        a('v_sub_f32 v%d, v%d, v6' % (10 + 4 * j, 10 + 4 * j))
    for j in range(4):
        a('v_exp_f32 v%d, v%d' % (10 + 4 * j, 10 + 4 * j))
    a('v_mul_f32 v24, v10, v8')
    a('v_mul_f32 v25, v10, v9')
    a('v_mul_f32 v26, v10, v11')
    for j in range(1, 4):
        a('v_fmac_f32 v24, v%d, v%d' % (10 + 4 * j, 8 + 4 * j))
        a('v_fmac_f32 v25, v%d, v%d' % (10 + 4 * j, 9 + 4 * j))
        a('v_fmac_f32 v26, v%d, v%d' % (10 + 4 * j, 11 + 4 * j))
    a('v_rcp_f32 v26, v26')
    a('v_mul_f32 v24, v24, v26')
    a('v_mul_f32 v25, v25, v26')
    a('v_cvt_pk_bf16_f32 v24, v24, v25')
    a('global_store_dword v5, v24, s[4:5]')
    a.label('L_cend')
    a('s_endpgm')
    return a


KD = """.section .rodata,"a"
.p2align 6
.amdhsa_kernel %s
  .amdhsa_next_free_vgpr %d
  .amdhsa_next_free_sgpr %d
  .amdhsa_accum_offset %d
  .amdhsa_group_segment_fixed_size 0
  .amdhsa_kernarg_size 72
  .amdhsa_user_sgpr_count 2
  .amdhsa_user_sgpr_kernarg_segment_ptr 1
  .amdhsa_system_sgpr_workgroup_id_x 1
.end_amdhsa_kernel
"""


def kernel_text(name, body):
    return ('.text\n.globl %s\n.p2align 8\n.type %s,@function\n%s:\n' % (name, name, name)) + body


def generate(cfg):
    a, lds, nv = gen_main(cfg)
    out = HEADER
    blk = cfg.nw * 64
    if cfg.mode == 'two':
        out += '; @launch kernel=%s grid=(256,1,1) block=(%d,1,1) lds=%d\n' % (KMAIN, blk, lds)
        out += '; @launch kernel=%s grid=(64,1,1) block=(256,1,1) lds=0\n' % KCOMB
    else:
        out += '; @launch grid=(256,1,1) block=(%d,1,1) lds=%d\n' % (blk, lds)
    out += '.amdgcn_target "amdgcn-amd-amdhsa--gfx950"\n'
    out += kernel_text(KMAIN, a.finalize())
    if cfg.mode == 'two':
        out += kernel_text(KCOMB, gen_combine(cfg).finalize())
    nva = (nv + 7) // 8 * 8
    out += KD % (KMAIN, nva, 96, (nva + 3) // 4 * 4)
    if cfg.mode == 'two':
        out += KD % (KCOMB, 32, 32, 32)
    return out


if __name__ == '__main__':
    ap = argparse.ArgumentParser()
    ap.add_argument('-o', default='cdna_kernels/' + NAME + '.s')
    ap.add_argument('opts', nargs='*', help='key=value')
    args = ap.parse_args()
    kw = {}
    for o in args.opts:
        k, v = o.split('=', 1)
        try:
            v = int(v)
        except ValueError:
            pass
        kw[k] = v
    cfg = Cfg(**kw)
    txt = generate(cfg)
    open(args.o, 'w').write(txt)
    print('wrote', args.o, len(txt), 'bytes')
```

```python
import argparse
import math
import struct
import sys
import os

sys.path.insert(0, os.path.dirname(os.path.abspath(__file__)))
from asmlib import Asm

NAME = 'standalone__tree_speculative_verify_tree_attention_over_candidate_token_tree__decode'
KMAIN = NAME + '_kernel'
KCOMB = 'tree_attn_combine_kernel'

HEADER = """; Kernarg layout for this problem (72 bytes, ptrs only, base s[0:1]):
"""


def f2u(x):
    return struct.unpack('<I', struct.pack('<f', x))[0]


def hx(x):
    return '0x%08x' % (x & 0xffffffff)


SCALE_LOG2E = (128.0 ** -0.5) * math.log2(math.e)
NEG_BIG_LOG2E = -1.0e9 * math.log2(math.e)

PIECE = 1056
TILE = 8 * PIECE


class Cfg:
    def __init__(self, **kw):
        self.nw = 4
        self.ns = 4
        self.kpol = ''
        self.vpol = ''
        self.interleave = 0
        self.rot = 0
        self.mode = 'two'
        self.dbgwg = 0
        self.dbgwave = 0
        self.stamp = 0
        self.__dict__.update(kw)


class VM:
    def __init__(self, a):
        self.a = a
        self.ops = []

    def issue(self, text, tag):
        self.a(text)
        self.ops.append(tag)

    def wait(self, *tags):
        last = max(i for i, t in enumerate(self.ops) if t in tags)
        n = len(self.ops) - 1 - last
        assert n <= 63, n
        self.a('s_waitcnt vmcnt(%d)' % n)

    def wait_all(self):
        self.a('s_waitcnt vmcnt(0)')


def gen_main(cfg):
    a = Asm()
    vm = VM(a)
    NW, NS = cfg.nw, cfg.ns
    NT = 32 // NW
    RING = NS * TILE
    RED = NW * RING
    PSTR = 2176
    LDS = RED + NW * PSTR
    assert LDS <= 163840, LDS
    lognw = int(math.log2(NW))

    sWave, sP, sJ = 3, 36, 37
    sBase, sOff, sLds, sC = 32, 33, 34, 35
    sT0, sT1, sT2, sT3 = 38, 39, 40, 41
    vLane, vL16, vL16b, vK, vV = 1, 2, 3, 4, 5
    vT0, vT1, vT2, vT3 = 6, 7, 8, 9
    vTree, vVt, vMask = 10, 11, 12
    vM, vL = 13, 14
    vFlag, vFlagA = 15, 0
    vQ = 16
    vStage = 32
    vS = 64
    vP = vS + NT * 8
    vO = vP + NT * 4
    vKt = vO + 32
    vTD = vKt + 16
    nvgpr = vTD + 4

    def r(base, n):
        return 'v[%d:%d]' % (base, base + n - 1)

    stamps = []

    def stamp(name):
        if not cfg.stamp:
            return
        i = len(stamps)
        assert 44 + 2 * i + 1 < 96
        stamps.append(name)
        a('s_memrealtime s[%d:%d]' % (44 + 2 * i, 45 + 2 * i))
        a('s_waitcnt lgkmcnt(0)')

    def dump_stamps():
        if not cfg.stamp:
            return
        a('v_mov_b32 v%d, 0' % vKt)
        for i in range(len(stamps)):
            a('v_writelane_b32 v%d, s%d, %d' % (vKt, 44 + 2 * i, i))
        a('s_getreg_b32 s%d, hwreg(HW_REG_XCC_ID)' % sT3)
        a('v_writelane_b32 v%d, s%d, 62' % (vKt, sT3))
        a('s_getreg_b32 s%d, hwreg(HW_REG_HW_ID)' % sT3)
        a('v_writelane_b32 v%d, s%d, 63' % (vKt, sT3))
        a('s_lshl_b32 s%d, s2, 3' % sT3)
        a('s_add_u32 s%d, s%d, s3' % (sT3, sT3))
        a('s_lshl_b32 s%d, s%d, 8' % (sT3, sT3))
        a('s_add_u32 s%d, s%d, 0x8000000' % (sT3, sT3))
        a('v_lshlrev_b32 v%d, 2, v%d' % (vKt + 1, vLane))
        a('v_add_u32 v%d, s%d, v%d' % (vKt + 1, sT3, vKt + 1))
        a('global_store_dword v%d, v%d, s[20:21]' % (vKt + 1, vKt))
        if cfg.stamp == 2:
            a('s_cmp_eq_u32 s2, %d' % cfg.dbgwg)
            lab = 'L_nodbg%d' % len(a.lines)
            a('s_cbranch_scc0 ' + lab)
            a('s_cmp_eq_u32 s3, %d' % cfg.dbgwave)
            a('s_cbranch_scc0 ' + lab)
            a('v_lshlrev_b32 v%d, 2, v%d' % (vKt + 1, vLane))
            a('global_store_dword v%d, v%d, s[18:19]' % (vKt + 1, vKt))
            a.label(lab)
        cfg.stamp_names = stamps

    a('s_cmp_ge_u32 s2, 256')
    a('s_cbranch_scc1 L_end')
    stamp('entry')
    a('s_load_dwordx16 s[4:19], s[0:1], 0')
    a('s_load_dwordx2 s[20:21], s[0:1], 64')
    a('v_readfirstlane_b32 s3, v0')
    a('v_and_b32 v%d, 63, v0' % vLane)
    a('v_lshlrev_b32 v%d, 4, v%d' % (vL16, vLane))
    a('s_lshr_b32 s3, s3, 6')
    a('s_mov_b32 s26, 0x4000000')
    a('s_mov_b32 s27, 0x20000')
    a('s_mov_b32 s30, 0x4000000')
    a('s_mov_b32 s31, 0x20000')
    a('s_mul_i32 s%d, s3, %d' % (sLds, RING))
    a('s_lshl_b32 s%d, s2, 18' % sBase)
    if cfg.interleave:
        a('s_lshl_b32 s%d, s3, 13' % sT0)
    else:
        a('s_lshl_b32 s%d, s3, %d' % (sT0, 18 - lognw))
    a('s_add_u32 s%d, s%d, s%d' % (sBase, sBase, sT0))
    a('v_add_u32 v%d, 4096, v%d' % (vL16b, vL16))
    a('s_lshr_b32 s%d, s2, 2' % sP)
    a('s_and_b32 s%d, s2, 3' % sJ)
    tstride = (NW * 8192) if cfg.interleave else 8192

    if cfg.rot:
        sRot = 42
        a('s_lshr_b32 s%d, s2, %d' % (sRot, cfg.rot - 1))
        a('s_and_b32 s%d, s%d, %d' % (sRot, sRot, NT - 1))

    def tile_off(n):
        t = n % NT
        if cfg.rot:
            a('s_add_u32 s%d, s42, %d' % (sOff, t))
            a('s_and_b32 s%d, s%d, %d' % (sOff, sOff, NT - 1))
            a('s_mul_i32 s%d, s%d, %d' % (sOff, sOff, tstride))
            a('s_add_u32 s%d, s%d, s%d' % (sOff, sOff, sBase))
        else:
            a('s_add_u32 s%d, s%d, %d' % (sOff, sBase, t * tstride))

    def issue_tile(n):
        isk = n < NT
        slot = n % NS
        srd = 's[24:27]' if isk else 's[28:31]'
        pol = cfg.kpol if isk else cfg.vpol
        tile_off(n)
        for i in range(8):
            m0 = slot * TILE + i * 32 + (4096 if i >= 4 else 0)
            a('s_add_u32 m0, s%d, %d' % (sLds, m0))
            voff = vL16 if i < 4 else vL16b
            off = (i & 3) * 1024
            txt = 'buffer_load_dwordx4 v%d, %s, s%d offen' % (voff, srd, sOff)
            if off:
                txt += ' offset:%d' % off
            if pol:
                txt += ' ' + pol
            txt += ' lds'
            vm.issue(txt, ('tile', n))

    a('s_waitcnt lgkmcnt(0)')
    a('s_mov_b64 s[24:25], s[6:7]')
    a('s_mov_b64 s[28:29], s[8:9]')
    stamp('karg')
    issue_tile(0)
    if cfg.mode == 'tag':
        a('s_cmp_eq_u32 s3, s%d' % sJ)
        a('s_cbranch_scc0 L_noclear')
        for i in range(4):
            a('v_mov_b32 v%d, -1' % (vStage + i))
        a('s_lshl_b32 s%d, s2, 12' % sT0)
        a('v_add_u32 v%d, s%d, v%d' % (vT0, sT0, vL16))
        for i in range(4):
            a('global_store_dwordx4 v%d, %s, s[20:21] offset:%d sc1' % (vT0, r(vStage, 4), i * 1024 - 0))
        a.label('L_noclear')

    a('v_and_b32 v%d, 3, v%d' % (vT0, vLane))
    a('v_lshlrev_b32 v%d, 8, v%d' % (vT0, vT0))
    a('v_lshrrev_b32 v%d, 4, v%d' % (vT1, vLane))
    a('v_lshlrev_b32 v%d, 4, v%d' % (vT1, vT1))
    a('s_lshl_b32 s%d, s%d, 10' % (sT0, sP))
    a('s_lshl_b32 s%d, s%d, 8' % (sT1, sP))
    a('v_add3_u32 v%d, v%d, v%d, s%d' % (vT0, vT0, vT1, sT0))
    a('v_add_u32 v%d, s%d, v%d' % (vT1, sT1, vT1))
    a('v_lshlrev_b32 v%d, 2, v%d' % (vT2, vLane))
    a('v_add_u32 v%d, s%d, v%d' % (vT2, sT1, vT2))
    a('s_lshr_b32 s%d, s%d, 3' % (sT2, sP))
    a('s_lshl_b32 s%d, s%d, 1' % (sT2, sT2))
    a('v_mov_b32 v%d, s%d' % (vT3, sT2))
    for s in range(4):
        vm.issue('global_load_dwordx4 %s, v%d, s[4:5] offset:%d' % (r(vQ + 4 * s, 4), vT0, s * 64), 'small')
    for s in range(4):
        vm.issue('global_load_dwordx4 %s, v%d, s[10:11] offset:%d' % (r(vKt + 4 * s, 4), vT1, s * 64), 'small')
    vm.issue('global_load_dword v%d, v%d, s[12:13]' % (vVt, vT2), 'small')
    vm.issue('global_load_ushort v%d, v%d, s[14:15]' % (vMask, vT3), 'small')
    for n in range(1, NS):
        issue_tile(n)

    a('v_and_b32 v%d, 7, v%d' % (vT0, vLane))
    a('v_mul_u32_u24 v%d, %d, v%d' % (vT0, PIECE, vT0))
    a('v_bfe_u32 v%d, v%d, 3, 1' % (vT1, vLane))
    a('v_lshlrev_b32 v%d, 8, v%d' % (vT1, vT1))
    a('v_lshrrev_b32 v%d, 4, v%d' % (vT2, vLane))
    a('v_lshlrev_b32 v%d, 4, v%d' % (vT2, vT2))
    a('v_add3_u32 v%d, v%d, v%d, v%d' % (vK, vT0, vT1, vT2))
    a('v_add_u32 v%d, s%d, v%d' % (vK, sLds, vK))
    a('v_bfe_u32 v%d, v%d, 2, 3' % (vT0, vLane))
    a('v_mul_u32_u24 v%d, %d, v%d' % (vT0, PIECE, vT0))
    a('v_lshrrev_b32 v%d, 5, v%d' % (vT1, vLane))
    a('v_lshlrev_b32 v%d, 8, v%d' % (vT1, vT1))
    a('v_and_b32 v%d, 3, v%d' % (vT2, vLane))
    a('v_lshlrev_b32 v%d, 3, v%d' % (vT2, vT2))
    a('v_add3_u32 v%d, v%d, v%d, v%d' % (vV, vT0, vT1, vT2))
    a('v_add_u32 v%d, s%d, v%d' % (vV, sLds, vV))
    a('s_mov_b32 s%d, %s' % (sC, hx(f2u(SCALE_LOG2E))))
    for i in range(32):
        a('v_mov_b32 v%d, 0' % (vO + i))

    def tree_score():
        for s in range(4):
            a('v_mfma_f32_16x16x32_bf16 %s, %s, %s, %s' % (
                r(vTD, 4), r(vKt + 4 * s, 4), r(vQ + 4 * s, 4), '0' if s == 0 else r(vTD, 4)))
        a('s_and_b32 s%d, s3, 3' % sT0)
        a('v_lshlrev_b32 v%d, 16, v%d' % (vMask, vMask))
        a('v_sub_f32 v%d, 1.0, v%d' % (vMask, vMask))
        a('v_mul_f32 v%d, %s, v%d' % (vMask, hx(f2u(NEG_BIG_LOG2E)), vMask))
        a('s_cmp_eq_u32 s%d, 0' % sJ)
        a('s_cselect_b32 s%d, 0, 0xff800000' % sT1)
        a('v_readlane_b32 s%d, v%d, s%d' % (sT2, vTD, sT0))
        a('v_mov_b32 v%d, s%d' % (vTree, sT2))
        a('v_fma_f32 v%d, v%d, s%d, v%d' % (vTree, vTree, sC, vMask))
        a('v_add_f32 v%d, s%d, v%d' % (vTree, sT1, vTree))

    def k_tile(n):
        t = n
        slot = n % NS
        if n == 0:
            vm.wait(('tile', 0), 'small')
            if cfg.mode == 'tag':
                a('s_cmp_eq_u32 s3, s%d' % sJ)
                a('s_cbranch_scc0 L_noflag')
                a('v_mov_b32 v%d, s2' % vT0)
                a('v_mov_b32 v%d, 1' % vT1)
                a('s_mov_b64 exec, 1')
                a('global_store_byte v%d, v%d, s[18:19] sc1' % (vT0, vT1))
                a('s_mov_b64 exec, -1')
                a.label('L_noflag')
        else:
            vm.wait(('tile', n))
        stamp('tile%d' % n)
        for w in range(2):
            for s in range(4):
                a('ds_read_b128 %s, v%d offset:%d' % (
                    r(vStage + 16 * w + 4 * s, 4), vK, slot * TILE + w * 512 + s * 64))
        a('s_waitcnt lgkmcnt(0)')
        if n + NS < 2 * NT:
            issue_tile(n + NS)
        for s in range(4):
            for w in range(2):
                d = r(vS + 8 * t + 4 * w, 4)
                a('v_mfma_f32_16x16x32_bf16 %s, %s, %s, %s' % (
                    d, r(vStage + 16 * w + 4 * s, 4), r(vQ + 4 * s, 4), '0' if s == 0 else d))
        if n == 0:
            tree_score()

    def xg_reduce(v, op):
        a('v_mov_b32 v%d, v%d' % (vT0, v))
        a('v_permlane32_swap_b32 v%d, v%d' % (vT0, v))
        a('%s v%d, v%d, v%d' % (op, v, v, vT0))
        a('v_mov_b32 v%d, v%d' % (vT0, v))
        a('v_permlane16_swap_b32 v%d, v%d' % (vT0, v))
        a('%s v%d, v%d, v%d' % (op, v, v, vT0))

    def softmax():
        n = NT * 8
        acc = [vM, vT1, vT2, vT3]
        idx = 0
        for k in range(4):
            a('v_max3_f32 v%d, v%d, v%d, v%d' % (acc[k], vS + idx, vS + idx + 1, vS + idx + 2))
            idx += 3
        k = 0
        while idx + 1 < n:
            a('v_max3_f32 v%d, v%d, v%d, v%d' % (acc[k], acc[k], vS + idx, vS + idx + 1))
            idx += 2
            k = (k + 1) % 4
        while idx < n:
            a('v_max_f32 v%d, v%d, v%d' % (acc[k], acc[k], vS + idx))
            idx += 1
        a('v_max3_f32 v%d, v%d, v%d, v%d' % (vM, vM, vT1, vT2))
        a('v_max_f32 v%d, v%d, v%d' % (vM, vM, vT3))
        xg_reduce(vM, 'v_max_f32')
        a('v_mul_f32 v%d, s%d, v%d' % (vM, sC, vM))
        a('v_mov_b32 v%d, 0' % vL)
        a('v_mov_b32 v%d, 0' % vT1)
        for t in range(NT):
            b = vS + 8 * t
            for i in range(8):
                a('v_fma_f32 v%d, v%d, s%d, -v%d' % (b + i, b + i, sC, vM))
            for i in range(8):
                a('v_exp_f32 v%d, v%d' % (b + i, b + i))
            for i in range(4):
                a('v_cvt_pk_bf16_f32 v%d, v%d, v%d' % (vP + 4 * t + i, b + 2 * i, b + 2 * i + 1))
            for i in range(4):
                a('v_add_f32 v%d, v%d, v%d' % (vL, vL, b + 2 * i))
                a('v_add_f32 v%d, v%d, v%d' % (vT1, vT1, b + 2 * i + 1))
        a('v_add_f32 v%d, v%d, v%d' % (vL, vL, vT1))
        xg_reduce(vL, 'v_add_f32')

    def v_tile(n):
        t = n - NT
        slot = n % NS
        vm.wait(('tile', n))
        stamp('tile%d' % n)
        last = (n == 2 * NT - 1)
        for half in range(2):
            for b in range(4 * half, 4 * half + 4):
                for w in range(2):
                    a('ds_read_b64_tr_b16 %s, v%d offset:%d' % (
                        r(vStage + 4 * b + 2 * w, 2), vV, slot * TILE + w * 512 + b * 32))
            if half == 0:
                pass
        if n + NS < 2 * NT:
            a('s_waitcnt lgkmcnt(0)')
            issue_tile(n + NS)
            for b in range(8):
                a('v_mfma_f32_16x16x32_bf16 %s, %s, %s, %s' % (
                    r(vO + 4 * b, 4), r(vStage + 4 * b, 4), r(vP + 4 * t, 4), r(vO + 4 * b, 4)))
        else:
            for b in range(8):
                a('s_waitcnt lgkmcnt(%d)' % (14 - 2 * b))
                a('v_mfma_f32_16x16x32_bf16 %s, %s, %s, %s' % (
                    r(vO + 4 * b, 4), r(vStage + 4 * b, 4), r(vP + 4 * t, 4), r(vO + 4 * b, 4)))

    for n in range(NT):
        k_tile(n)
    softmax()
    if cfg.mode == 'tag':
        a('s_lshl_b32 s%d, s%d, 2' % (sT0, sP))
        a('s_and_b32 s%d, s3, 3' % sT1)
        a('s_add_u32 s%d, s%d, s%d' % (sT0, sT0, sT1))
        a('v_mov_b32 v%d, s%d' % (vFlagA, sT0))
        vm.issue('global_load_ubyte v%d, v%d, s[18:19] sc1' % (vFlag, vFlagA), 'flag')
    stamp('softmax')
    for n in range(NT, 2 * NT):
        v_tile(n)
    stamp('pv_done')

    a('s_mul_i32 s%d, s3, %d' % (sT0, PSTR))
    a('s_add_u32 s%d, s%d, %d' % (sT0, sT0, RED))
    a('v_and_b32 v%d, 3, v%d' % (vT0, vLane))
    a('v_mul_u32_u24 v%d, 528, v%d' % (vT1, vT0))
    a('v_lshrrev_b32 v%d, 4, v%d' % (vT2, vLane))
    a('v_lshlrev_b32 v%d, 4, v%d' % (vT2, vT2))
    a('v_add3_u32 v%d, v%d, v%d, s%d' % (vT1, vT1, vT2, sT0))
    a('v_lshlrev_b32 v%d, 3, v%d' % (vT0, vT0))
    a('v_add_u32 v%d, s%d, v%d' % (vT0, sT0, vT0))
    a('v_mov_b32 v%d, v%d' % (vT2, vM))
    a('v_mov_b32 v%d, v%d' % (vT3, vL))
    a('s_mov_b32 exec_lo, 0x000f000f')
    a('s_mov_b32 exec_hi, 0x000f000f')
    for b in range(8):
        a('ds_write_b128 v%d, %s offset:%d' % (vT1, r(vO + 4 * b, 4), b * 64))
    a('s_mov_b32 exec_lo, 0x0000000f')
    a('s_mov_b32 exec_hi, 0')
    a('ds_write_b64 v%d, %s offset:2112' % (vT0, r(vT2, 2)))
    a('s_mov_b64 exec, -1')
    a('s_waitcnt lgkmcnt(0)')
    a('s_barrier')
    if NW > 4:
        a('s_cmp_ge_u32 s3, 4')
        a('s_cbranch_scc1 L_end')
    x = vStage
    a('s_mul_i32 s%d, s3, 528' % sT0)
    a('s_add_u32 s%d, s%d, %d' % (sT0, sT0, RED))
    a('v_lshlrev_b32 v%d, 3, v%d' % (vT0, vLane))
    a('v_add_u32 v%d, s%d, v%d' % (vT0, sT0, vT0))
    a('s_lshl_b32 s%d, s3, 3' % sT1)
    a('s_add_u32 s%d, s%d, %d' % (sT1, sT1, RED + 2112))
    a('v_mov_b32 v%d, s%d' % (vT1, sT1))
    for w in range(NW):
        a('ds_read_b64 %s, v%d offset:%d' % (r(x + 16 + 2 * w, 2), vT1, w * PSTR))
    if NW > 4:
        a('s_waitcnt lgkmcnt(0)')
    for w in range(NW):
        a('ds_read_b64 %s, v%d offset:%d' % (r(x + 2 * w, 2), vT0, w * PSTR))
    if NW == 4:
        a('s_waitcnt lgkmcnt(%d)' % NW)
    mreg = [x + 16 + 2 * w for w in range(NW)]
    lreg = [x + 17 + 2 * w for w in range(NW)]
    a('v_max3_f32 v%d, v%d, v%d, v%d' % (vM, vTree, mreg[0], mreg[1]))
    for w in range(2, NW, 2):
        a('v_max3_f32 v%d, v%d, v%d, v%d' % (vM, vM, mreg[w], mreg[w + 1]))
    for w in range(NW):
        a('v_sub_f32 v%d, v%d, v%d' % (mreg[w], mreg[w], vM))
    a('v_sub_f32 v%d, v%d, v%d' % (vTree, vTree, vM))
    for w in range(NW):
        a('v_exp_f32 v%d, v%d' % (mreg[w], mreg[w]))
    a('v_exp_f32 v%d, v%d' % (vTree, vTree))
    a('v_lshlrev_b32 v%d, 16, v%d' % (vT2, vVt))
    a('v_and_b32 v%d, 0xffff0000, v%d' % (vT3, vVt))
    a('v_mul_f32 v%d, v%d, v%d' % (vT2, vT2, vTree))
    a('v_mul_f32 v%d, v%d, v%d' % (vT3, vT3, vTree))
    a('v_mov_b32 v%d, v%d' % (vL, vTree))
    for w in range(NW):
        a('v_fmac_f32 v%d, v%d, v%d' % (vL, mreg[w], lreg[w]))
    a('s_waitcnt lgkmcnt(0)')
    for w in range(NW):
        a('v_fmac_f32 v%d, v%d, v%d' % (vT2, mreg[w], x + 2 * w))
        a('v_fmac_f32 v%d, v%d, v%d' % (vT3, mreg[w], x + 2 * w + 1))

    if cfg.mode == 'two':
        a('v_mov_b32 v%d, v%d' % (x, vT2))
        a('v_mov_b32 v%d, v%d' % (x + 1, vT3))
        a('v_mov_b32 v%d, v%d' % (x + 2, vM))
        a('v_mov_b32 v%d, v%d' % (x + 3, vL))
        a('s_lshl_b32 s%d, s%d, 2' % (sT0, sP))
        a('s_add_u32 s%d, s%d, s3' % (sT0, sT0))
        a('s_lshl_b32 s%d, s%d, 2' % (sT0, sT0))
        a('s_add_u32 s%d, s%d, s%d' % (sT0, sT0, sJ))
        a('s_lshl_b32 s%d, s%d, 10' % (sT0, sT0))
        a('v_add_u32 v%d, s%d, v%d' % (vT0, sT0, vL16))
        a('global_store_dwordx4 v%d, %s, s[20:21]' % (vT0, r(x, 4)))
    elif cfg.mode == 'tag':
        y = x + 16
        a('v_mov_b32 v%d, v%d' % (x, vT2))
        a('v_mov_b32 v%d, v%d' % (x + 1, vT3))
        a('v_mov_b32 v%d, v%d' % (x + 2, vM))
        a('v_mov_b32 v%d, v%d' % (x + 3, vL))
        a('s_cmp_eq_u32 s3, s%d' % sJ)
        a('s_cbranch_scc1 L_consumer')
        a('s_lshl_b32 s%d, s%d, 2' % (sT0, sP))
        a('s_add_u32 s%d, s%d, s3' % (sT0, sT0))
        a('s_lshl_b32 s%d, s%d, 2' % (sT0, sT0))
        a('s_add_u32 s%d, s%d, s%d' % (sT0, sT0, sJ))
        a('s_lshl_b32 s%d, s%d, 10' % (sT0, sT0))
        a('v_add_u32 v%d, s%d, v%d' % (vT0, sT0, vL16))
        a.label('L_flagchk')
        a('s_waitcnt vmcnt(0)')
        a('v_cmp_eq_u32 vcc, 0, v%d' % vFlag)
        a.nop(5)
        a('s_cbranch_vccz L_publish')
        a('global_load_ubyte v%d, v%d, s[18:19] sc1' % (vFlag, vFlagA))
        a('s_branch L_flagchk')
        a.label('L_publish')
        a('global_store_dwordx4 v%d, %s, s[20:21] sc1' % (vT0, r(x, 4)))
        stamp('published')
        dump_stamps()
        a('s_endpgm')
        a.label('L_consumer')
        a('s_lshl_b32 s%d, s2, 12' % sT0)
        a('v_add_u32 v%d, s%d, v%d' % (vT0, sT0, vL16))
        for k in range(1, 4):
            a('s_add_u32 s%d, s%d, %d' % (sT1, sJ, k))
            a('s_and_b32 s%d, s%d, 3' % (sT1, sT1))
            a('s_lshl_b32 s%d, s%d, 10' % (sT1, sT1))
            a('v_add_u32 v%d, s%d, v%d' % (vKt + 4 + k, sT1, vT0))
        a.label('L_poll')
        for k in range(1, 4):
            a('global_load_dwordx4 %s, v%d, s[20:21] sc1' % (r(x + 4 * k, 4), vKt + 4 + k))
        a('s_waitcnt vmcnt(0)')
        a('v_max3_u32 v%d, v%d, v%d, v%d' % (vT1, x + 4, x + 5, x + 6))
        a('v_max3_u32 v%d, v%d, v%d, v%d' % (vT2, x + 7, x + 8, x + 9))
        a('v_max3_u32 v%d, v%d, v%d, v%d' % (vT3, x + 10, x + 11, x + 12))
        a('v_max3_u32 v%d, v%d, v%d, v%d' % (vT1, vT1, x + 13, x + 14))
        a('v_max3_u32 v%d, v%d, v%d, v%d' % (vT2, vT2, vT3, x + 15))
        a('v_max_u32 v%d, v%d, v%d' % (vT1, vT1, vT2))
        a('v_cmp_eq_u32 vcc, -1, v%d' % vT1)
        a.nop(5)
        a('s_cbranch_vccnz L_poll')
        stamp('polled')
        a('v_max3_f32 v%d, v%d, v%d, v%d' % (vM, x + 2, x + 6, x + 10))
        a('v_max_f32 v%d, v%d, v%d' % (vM, vM, x + 14))
        for k in range(4):
            a('v_sub_f32 v%d, v%d, v%d' % (x + 4 * k + 2, x + 4 * k + 2, vM))
        for k in range(4):
            a('v_exp_f32 v%d, v%d' % (x + 4 * k + 2, x + 4 * k + 2))
        a('v_mul_f32 v%d, v%d, v%d' % (vT1, x + 2, x))
        a('v_mul_f32 v%d, v%d, v%d' % (vT2, x + 2, x + 1))
        a('v_mul_f32 v%d, v%d, v%d' % (vT3, x + 2, x + 3))
        for k in range(1, 4):
            a('v_fmac_f32 v%d, v%d, v%d' % (vT1, x + 4 * k + 2, x + 4 * k))
            a('v_fmac_f32 v%d, v%d, v%d' % (vT2, x + 4 * k + 2, x + 4 * k + 1))
            a('v_fmac_f32 v%d, v%d, v%d' % (vT3, x + 4 * k + 2, x + 4 * k + 3))
        a('v_rcp_f32 v%d, v%d' % (vT3, vT3))
        a('v_mul_f32 v%d, v%d, v%d' % (vT1, vT1, vT3))
        a('v_mul_f32 v%d, v%d, v%d' % (vT2, vT2, vT3))
        a('v_cvt_pk_bf16_f32 v%d, v%d, v%d' % (vT1, vT1, vT2))
        a('s_lshl_b32 s%d, s2, 8' % sT0)
        a('v_lshlrev_b32 v%d, 2, v%d' % (vT0, vLane))
        a('v_add_u32 v%d, s%d, v%d' % (vT0, sT0, vT0))
        a('global_store_dword v%d, v%d, s[16:17]' % (vT0, vT1))
        stamp('out')
        dump_stamps()
    else:
        raise NotImplementedError(cfg.mode)
    if cfg.mode == 'two':
        stamp('end')
        dump_stamps()
    a.label('L_end')
    a('s_endpgm')
    return a, LDS, nvgpr


def gen_combine(cfg):
    a = Asm()
    a('s_cmp_ge_u32 s2, 64')
    a('s_cbranch_scc1 L_cend')
    a('s_load_dwordx2 s[4:5], s[0:1], 48')
    a('s_load_dwordx2 s[6:7], s[0:1], 64')
    a('v_lshlrev_b32 v1, 4, v0')
    a('v_and_b32 v2, 63, v0')
    a('v_lshrrev_b32 v3, 6, v0')
    a('v_lshlrev_b32 v1, 4, v2')
    a('v_lshlrev_b32 v4, 12, v3')
    a('s_lshl_b32 s3, s2, 14')
    a('v_add3_u32 v1, v1, v4, s3')
    a('s_lshl_b32 s8, s2, 10')
    a('v_lshlrev_b32 v5, 2, v0')
    a('v_add_u32 v5, s8, v5')
    a('s_waitcnt lgkmcnt(0)')
    for j in range(4):
        a('global_load_dwordx4 v[%d:%d], v1, s[6:7] offset:%d' % (8 + 4 * j, 11 + 4 * j, j * 1024))
    a('s_waitcnt vmcnt(0)')
    a('v_max3_f32 v6, v10, v14, v18')
    a('v_max_f32 v6, v6, v22')
    for j in range(4):
        a('v_sub_f32 v%d, v%d, v6' % (10 + 4 * j, 10 + 4 * j))
    for j in range(4):
        a('v_exp_f32 v%d, v%d' % (10 + 4 * j, 10 + 4 * j))
    a('v_mul_f32 v24, v10, v8')
    a('v_mul_f32 v25, v10, v9')
    a('v_mul_f32 v26, v10, v11')
    for j in range(1, 4):
        a('v_fmac_f32 v24, v%d, v%d' % (10 + 4 * j, 8 + 4 * j))
        a('v_fmac_f32 v25, v%d, v%d' % (10 + 4 * j, 9 + 4 * j))
        a('v_fmac_f32 v26, v%d, v%d' % (10 + 4 * j, 11 + 4 * j))
    a('v_rcp_f32 v26, v26')
    a('v_mul_f32 v24, v24, v26')
    a('v_mul_f32 v25, v25, v26')
    a('v_cvt_pk_bf16_f32 v24, v24, v25')
    a('global_store_dword v5, v24, s[4:5]')
    a.label('L_cend')
    a('s_endpgm')
    return a


KD = """.section .rodata,"a"
.p2align 6
.amdhsa_kernel %s
  .amdhsa_next_free_vgpr %d
  .amdhsa_next_free_sgpr %d
  .amdhsa_accum_offset %d
  .amdhsa_group_segment_fixed_size 0
  .amdhsa_kernarg_size 72
  .amdhsa_user_sgpr_count 2
  .amdhsa_user_sgpr_kernarg_segment_ptr 1
  .amdhsa_system_sgpr_workgroup_id_x 1
.end_amdhsa_kernel
"""


def kernel_text(name, body):
    return ('.text\n.globl %s\n.p2align 8\n.type %s,@function\n%s:\n' % (name, name, name)) + body


def generate(cfg):
    a, lds, nv = gen_main(cfg)
    out = HEADER
    blk = cfg.nw * 64
    if cfg.mode == 'two':
        out += '; @launch kernel=%s grid=(256,1,1) block=(%d,1,1) lds=%d\n' % (KMAIN, blk, lds)
        out += '; @launch kernel=%s grid=(64,1,1) block=(256,1,1) lds=0\n' % KCOMB
    else:
        out += '; @launch grid=(256,1,1) block=(%d,1,1) lds=%d\n' % (blk, lds)
    out += '.amdgcn_target "amdgcn-amd-amdhsa--gfx950"\n'
    out += kernel_text(KMAIN, a.finalize())
    if cfg.mode == 'two':
        out += kernel_text(KCOMB, gen_combine(cfg).finalize())
    nva = (nv + 7) // 8 * 8
    out += KD % (KMAIN, nva, 96, (nva + 3) // 4 * 4)
    if cfg.mode == 'two':
        out += KD % (KCOMB, 32, 32, 32)
    return out


if __name__ == '__main__':
    ap = argparse.ArgumentParser()
    ap.add_argument('-o', default='cdna_kernels/' + NAME + '.s')
    ap.add_argument('opts', nargs='*', help='key=value')
    args = ap.parse_args()
    kw = {}
    for o in args.opts:
        k, v = o.split('=', 1)
        try:
            v = int(v)
        except ValueError:
            pass
        kw[k] = v
    cfg = Cfg(**kw)
    txt = generate(cfg)
    open(args.o, 'w').write(txt)
    print('wrote', args.o, len(txt), 'bytes')
    if cfg.stamp:
        open(args.o[:-2] + '.names', 'w').write('\n'.join(cfg.stamp_names) + '\n')
```

```python
import argparse
import math
import re
import struct
import sys
import os

sys.path.insert(0, os.path.dirname(os.path.abspath(__file__)))
from asmlib import Asm

NAME = 'standalone__tree_speculative_verify_tree_attention_over_candidate_token_tree__decode'
KMAIN = NAME + '_kernel'

HEADER = """; Kernarg layout for this problem (72 bytes, ptrs only, base s[0:1]):
"""


def f2u(x):
    return struct.unpack('<I', struct.pack('<f', x))[0]


def hx(x):
    return '0x%08x' % (x & 0xffffffff)


SCALE_LOG2E = (128.0 ** -0.5) * math.log2(math.e)
NEG_BIG_LOG2E = -1.0e9 * math.log2(math.e)

PIECE = 1056
TILE = 8 * PIECE
NW = 4
NT = 8


class Cfg:
    def __init__(self, **kw):
        self.ns = 4
        self.pol = 'nt'
        self.low = 'w0j0w1j1'
        self.high = 'n0n2n1'
        self.stamp = 0
        self.local = 1
        self.early = 1
        self.psleep = 0
        self.spin = 0
        self.__dict__.update(kw)


class VM:
    def __init__(self, a):
        self.a = a
        self.ops = []

    def issue(self, text, tag):
        self.a(text)
        self.ops.append(tag)

    def count(self, *tags):
        last = max(i for i, t in enumerate(self.ops) if t in tags)
        n = len(self.ops) - 1 - last
        assert n <= 63, n
        return n

    def wait(self, *tags):
        self.a('s_waitcnt vmcnt(%d)' % self.count(*tags))


def gen_main(cfg):
    a = Asm()
    vm = VM(a)
    NS = cfg.ns
    RING = NS * TILE
    RED = NW * RING
    PSTR = 2240
    MLOFF = 2112
    LDS = RED + NW * PSTR
    assert LDS <= 163840, LDS

    sP, sJ = 36, 37
    sBase, sOff, sLds, sC = 32, 33, 34, 35
    sT0, sT1, sT2, sT3 = 38, 39, 40, 41
    sBig, sXcc, sFlag, sSpin = 42, 43, 22, 23
    vLane, vL16, vL16b, vK, vV = 1, 2, 3, 4, 5
    vT0, vT1, vT2, vT3 = 6, 7, 8, 9
    vTree, vVt, vMask = 10, 11, 12
    vM, vL = 13, 14
    vFlag, vFlagA = 15, 0
    vQ = 16
    vStage = 32
    vS = 64
    vP = vS + NT * 8
    vO = vP + NT * 4
    vKt = vO + 32
    vTD = vKt + 16
    nvgpr = vTD + 4
    vEp1, vEp2, vEp3, vPub, vOut = vKt, vKt + 1, vKt + 2, vKt + 3, vKt + 4
    vPa = vKt + 5
    vG = vKt + 8
    vW = vKt + 12
    assert vG % 2 == 0

    def r(base, n):
        return 'v[%d:%d]' % (base, base + n - 1)

    stamps = []

    def stamp(name):
        if not cfg.stamp:
            return
        i = len(stamps)
        assert 44 + 2 * i + 1 < 96
        stamps.append(name)
        a('s_memrealtime s[%d:%d]' % (44 + 2 * i, 45 + 2 * i))
        a('s_waitcnt lgkmcnt(0)')

    def dump_stamps():
        if not cfg.stamp:
            return
        v = vS
        a('v_mov_b32 v%d, 0' % v)
        for i in range(len(stamps)):
            a('v_writelane_b32 v%d, s%d, %d' % (v, 44 + 2 * i, i))
        a('v_writelane_b32 v%d, s%d, 62' % (v, sXcc))
        a('s_lshl_b32 s%d, s2, 3' % sT3)
        a('s_add_u32 s%d, s%d, s3' % (sT3, sT3))
        a('s_lshl_b32 s%d, s%d, 8' % (sT3, sT3))
        a('s_add_u32 s%d, s%d, 0x8000000' % (sT3, sT3))
        a('v_lshlrev_b32 v%d, 2, v%d' % (v + 1, vLane))
        a('v_add_u32 v%d, s%d, v%d' % (v + 1, sT3, v + 1))
        a('global_store_dword v%d, v%d, s[20:21]' % (v + 1, v))
        cfg.stamp_names = list(stamps)

    def spin_guard(exit_label):
        if cfg.spin:
            a('s_sub_u32 s%d, s%d, 1' % (sSpin, sSpin))
            a('s_cbranch_scc1 ' + exit_label)

    hi = re.findall(r'n\d', cfg.high)
    assert sorted(hi) == ['n0', 'n1', 'n2']
    npos = {int(nm[1]): 17 + pos for pos, nm in enumerate(hi)}

    def tile_delta(t):
        return sum(((t >> k) & 1) << npos[k] for k in range(3))

    def issue_tile(n, compact=False):
        isk = n < NT
        slot = n % NS
        srd = 's[24:27]' if isk else 's[28:31]'
        d = tile_delta(n % NT)
        if d:
            a('s_add_u32 s%d, s%d, %d' % (sOff, sBase, d))
            so = sOff
        else:
            so = sBase
        for i in range(8):
            if compact:
                if i > 0:
                    if i == 4:
                        a('s_add_u32 m0, m0, s%d' % sBig)
                    else:
                        a('s_add_u32 m0, m0, 32')
            else:
                m0 = slot * TILE + i * 32 + (4096 if i >= 4 else 0)
                a('s_add_u32 m0, s%d, %d' % (sLds, m0))
            voff = vL16 if i < 4 else vL16b
            off = (i & 3) * 1024
            txt = 'buffer_load_dwordx4 v%d, %s, s%d offen' % (voff, srd, so)
            if off:
                txt += ' offset:%d' % off
            if cfg.pol:
                txt += ' ' + cfg.pol.replace('+', ' ')
            txt += ' lds'
            vm.issue(txt, ('tile', n))

    if cfg.stamp:
        a('s_cmp_ge_u32 s2, 256')
        a('s_cbranch_scc1 L_end')
        stamp('entry')
    a('s_load_dwordx16 s[4:19], s[0:1], 0')
    a('s_load_dwordx2 s[20:21], s[0:1], 64')
    if not cfg.stamp:
        a('s_cmp_ge_u32 s2, 256')
        a('s_cbranch_scc1 L_end')
    a('v_readfirstlane_b32 s3, v0')
    a('v_and_b32 v%d, 63, v0' % vLane)
    a('v_lshlrev_b32 v%d, 4, v%d' % (vL16, vLane))
    a('s_mov_b32 s26, 0x4000000')
    a('s_mov_b32 s27, 0x20000')
    a('s_lshr_b32 s3, s3, 6')
    a('s_and_b32 s%d, s2, 7' % sT0)
    a('s_bfe_u32 s%d, s2, 0x20003' % sJ)
    a('s_lshr_b32 s%d, s2, 5' % sT1)
    a('s_lshl_b32 s%d, s%d, 3' % (sP, sT0))
    a('s_add_u32 s%d, s%d, s%d' % (sP, sP, sT1))
    if cfg.low == 'w0w1j0j1':
        a('s_lshl_b32 s%d, s%d, 2' % (sT0, sJ))
        a('s_add_u32 s%d, s%d, s3' % (sT0, sT0))
        a('s_lshl_b32 s%d, s%d, 13' % (sT0, sT0))
    elif cfg.low == 'w0j0w1j1':
        a('s_lshl_b32 s%d, s%d, 2' % (sT0, sJ))
        a('s_or_b32 s%d, s%d, s3' % (sT0, sT0))
        a('s_and_b32 s%d, s%d, 6' % (sT1, sT0))
        a('s_lshr_b32 s%d, s%d, 1' % (sT2, sT1))
        a('s_xor_b32 s%d, s%d, s%d' % (sT2, sT2, sT1))
        a('s_and_b32 s%d, s%d, 2' % (sT2, sT2))
        a('s_mul_i32 s%d, s%d, 3' % (sT2, sT2))
        a('s_xor_b32 s%d, s%d, s%d' % (sT0, sT0, sT2))
        a('s_lshl_b32 s%d, s%d, 13' % (sT0, sT0))
    else:
        raise ValueError(cfg.low)
    a('s_lshl_b32 s%d, s%d, 20' % (sBase, sP))
    a('s_add_u32 s%d, s%d, s%d' % (sBase, sBase, sT0))
    a('s_mul_i32 s%d, s3, %d' % (sLds, RING))
    a('s_movk_i32 s%d, 4128' % sBig)
    a('v_add_u32 v%d, 4096, v%d' % (vL16b, vL16))
    a('s_mov_b32 m0, s%d' % sLds)
    a('s_waitcnt lgkmcnt(0)')
    a('s_mov_b64 s[24:25], s[6:7]')
    stamp('karg')
    issue_tile(0, compact=True)
    a('s_mov_b64 s[28:29], s[8:9]')
    a('s_mov_b64 s[30:31], s[26:27]')
    a('s_lshl_b32 s2, s%d, 2' % sP)
    a('s_add_u32 s2, s2, s%d' % sJ)
    a('s_getreg_b32 s%d, hwreg(HW_REG_XCC_ID, 0, 4)' % sXcc)
    if cfg.spin:
        a('s_mov_b32 s%d, %d' % (sSpin, cfg.spin))

    a('s_cmp_eq_u32 s3, s%d' % sJ)
    a('s_cbranch_scc0 L_noclear')
    for i in range(4):
        a('v_mov_b32 v%d, -1' % (vStage + i))
    a('s_lshl_b32 s%d, s2, 12' % sT0)
    a('v_add_u32 v%d, s%d, v%d' % (vT0, sT0, vL16))
    for i in range(4):
        a('global_store_dwordx4 v%d, %s, s[20:21] offset:%d sc1' % (vT0, r(vStage, 4), i * 1024))
    a.label('L_noclear')

    a('v_and_b32 v%d, 3, v%d' % (vT0, vLane))
    a('v_lshlrev_b32 v%d, 8, v%d' % (vT0, vT0))
    a('v_lshrrev_b32 v%d, 4, v%d' % (vT1, vLane))
    a('v_lshlrev_b32 v%d, 4, v%d' % (vT1, vT1))
    a('s_lshl_b32 s%d, s%d, 10' % (sT0, sP))
    a('s_lshl_b32 s%d, s%d, 8' % (sT1, sP))
    a('v_add3_u32 v%d, v%d, v%d, s%d' % (vT0, vT0, vT1, sT0))
    a('v_add_u32 v%d, s%d, v%d' % (vT1, sT1, vT1))
    a('v_lshlrev_b32 v%d, 2, v%d' % (vT2, vLane))
    a('v_add_u32 v%d, s%d, v%d' % (vT2, sT1, vT2))
    a('s_lshr_b32 s%d, s%d, 3' % (sT2, sP))
    a('s_lshl_b32 s%d, s%d, 1' % (sT2, sT2))
    a('v_mov_b32 v%d, s%d' % (vT3, sT2))
    for s in range(4):
        vm.issue('global_load_dwordx4 %s, v%d, s[4:5] offset:%d' % (r(vQ + 4 * s, 4), vT0, s * 64), 'small')
    for s in range(4):
        vm.issue('global_load_dwordx4 %s, v%d, s[10:11] offset:%d' % (r(vKt + 4 * s, 4), vT1, s * 64), 'small')
    vm.issue('global_load_dword v%d, v%d, s[12:13]' % (vVt, vT2), 'small')
    vm.issue('global_load_ushort v%d, v%d, s[14:15]' % (vMask, vT3), 'small')
    for n in range(1, NS):
        issue_tile(n)

    a('v_and_b32 v%d, 7, v%d' % (vT0, vLane))
    a('v_mul_u32_u24 v%d, %d, v%d' % (vT0, PIECE, vT0))
    a('v_bfe_u32 v%d, v%d, 3, 1' % (vT1, vLane))
    a('v_lshlrev_b32 v%d, 8, v%d' % (vT1, vT1))
    a('v_lshrrev_b32 v%d, 4, v%d' % (vT2, vLane))
    a('v_lshlrev_b32 v%d, 4, v%d' % (vT2, vT2))
    a('v_add3_u32 v%d, v%d, v%d, v%d' % (vK, vT0, vT1, vT2))
    a('v_add_u32 v%d, s%d, v%d' % (vK, sLds, vK))
    a('v_bfe_u32 v%d, v%d, 2, 3' % (vT0, vLane))
    a('v_mul_u32_u24 v%d, %d, v%d' % (vT0, PIECE, vT0))
    a('v_lshrrev_b32 v%d, 5, v%d' % (vT1, vLane))
    a('v_lshlrev_b32 v%d, 8, v%d' % (vT1, vT1))
    a('v_and_b32 v%d, 3, v%d' % (vT2, vLane))
    a('v_lshlrev_b32 v%d, 3, v%d' % (vT2, vT2))
    a('v_add3_u32 v%d, v%d, v%d, v%d' % (vV, vT0, vT1, vT2))
    a('v_add_u32 v%d, s%d, v%d' % (vV, sLds, vV))
    a('s_mov_b32 s%d, %s' % (sC, hx(f2u(SCALE_LOG2E))))
    for i in range(32):
        a('v_mov_b32 v%d, 0' % (vO + i))

    def tree_score():
        for s in range(4):
            a('v_mfma_f32_16x16x32_bf16 %s, %s, %s, %s' % (
                r(vTD, 4), r(vKt + 4 * s, 4), r(vQ + 4 * s, 4), '0' if s == 0 else r(vTD, 4)))
        a('v_lshlrev_b32 v%d, 16, v%d' % (vMask, vMask))
        a('v_sub_f32 v%d, 1.0, v%d' % (vMask, vMask))
        a('v_mul_f32 v%d, %s, v%d' % (vMask, hx(f2u(NEG_BIG_LOG2E)), vMask))
        a('s_cmp_eq_u32 s%d, 0' % sJ)
        a('s_cselect_b32 s%d, 0, 0xff800000' % sT1)
        a('v_readlane_b32 s%d, v%d, s3' % (sT2, vTD))
        a('v_mov_b32 v%d, s%d' % (vTree, sT2))
        a('v_fma_f32 v%d, v%d, s%d, v%d' % (vTree, vTree, sC, vMask))
        a('v_add_f32 v%d, s%d, v%d' % (vTree, sT1, vTree))

    def k_tile(n):
        t = n
        slot = n % NS
        if n == 0:
            vm.wait(('tile', 0), 'small')
            a('s_cmp_eq_u32 s3, s%d' % sJ)
            a('s_cbranch_scc0 L_noflag')
            a('s_or_b32 s%d, s%d, 0x80' % (sT0, sXcc))
            a('v_mov_b32 v%d, s2' % vT0)
            a('v_mov_b32 v%d, s%d' % (vT1, sT0))
            a('s_mov_b64 exec, 1')
            a('global_store_byte v%d, v%d, s[18:19] sc1' % (vT0, vT1))
            a('s_mov_b64 exec, -1')
            a.label('L_noflag')
        else:
            vm.wait(('tile', n))
        if n in (0, 3, 7):
            stamp('tile%d' % n)
        for w in range(2):
            for s in range(4):
                a('ds_read_b128 %s, v%d offset:%d' % (
                    r(vStage + 16 * w + 4 * s, 4), vK, slot * TILE + w * 512 + s * 64))
        a('s_waitcnt lgkmcnt(0)')
        issue_tile(n + NS)
        for s in range(4):
            for w in range(2):
                d = r(vS + 8 * t + 4 * w, 4)
                a('v_mfma_f32_16x16x32_bf16 %s, %s, %s, %s' % (
                    d, r(vStage + 16 * w + 4 * s, 4), r(vQ + 4 * s, 4), '0' if s == 0 else d))
        if n == 0:
            tree_score()

    def xg_reduce(v, op):
        a('v_mov_b32 v%d, v%d' % (vT0, v))
        a('v_permlane32_swap_b32 v%d, v%d' % (vT0, v))
        a('%s v%d, v%d, v%d' % (op, v, v, vT0))
        a('v_mov_b32 v%d, v%d' % (vT0, v))
        a('v_permlane16_swap_b32 v%d, v%d' % (vT0, v))
        a('%s v%d, v%d, v%d' % (op, v, v, vT0))

    def softmax():
        n = NT * 8
        acc = [vM, vT1, vT2, vT3]
        idx = 0
        for k in range(4):
            a('v_max3_f32 v%d, v%d, v%d, v%d' % (acc[k], vS + idx, vS + idx + 1, vS + idx + 2))
            idx += 3
        k = 0
        while idx + 1 < n:
            a('v_max3_f32 v%d, v%d, v%d, v%d' % (acc[k], acc[k], vS + idx, vS + idx + 1))
            idx += 2
            k = (k + 1) % 4
        while idx < n:
            a('v_max_f32 v%d, v%d, v%d' % (acc[k], acc[k], vS + idx))
            idx += 1
        a('v_max3_f32 v%d, v%d, v%d, v%d' % (vM, vM, vT1, vT2))
        a('v_max_f32 v%d, v%d, v%d' % (vM, vM, vT3))
        xg_reduce(vM, 'v_max_f32')
        a('v_mul_f32 v%d, s%d, v%d' % (vM, sC, vM))
        a('v_mov_b32 v%d, 0' % vL)
        a('v_mov_b32 v%d, 0' % vT1)
        for t in range(NT):
            b = vS + 8 * t
            for i in range(8):
                a('v_fma_f32 v%d, v%d, s%d, -v%d' % (b + i, b + i, sC, vM))
            for i in range(8):
                a('v_exp_f32 v%d, v%d' % (b + i, b + i))
            for i in range(4):
                a('v_cvt_pk_bf16_f32 v%d, v%d, v%d' % (vP + 4 * t + i, b + 2 * i, b + 2 * i + 1))
            for i in range(4):
                a('v_add_f32 v%d, v%d, v%d' % (vL, vL, b + 2 * i))
                a('v_add_f32 v%d, v%d, v%d' % (vT1, vT1, b + 2 * i + 1))
        a('v_add_f32 v%d, v%d, v%d' % (vL, vL, vT1))
        xg_reduce(vL, 'v_add_f32')

    def mid_setup():
        a('s_lshl_b32 s%d, s%d, 2' % (sT0, sP))
        a('s_add_u32 s%d, s%d, s3' % (sT0, sT0))
        a('v_mov_b32 v%d, s%d' % (vFlagA, sT0))
        vm.issue('global_load_ubyte v%d, v%d, s[18:19] sc1' % (vFlag, vFlagA), 'flag')
        a('s_lshl_b32 s%d, s%d, 2' % (sT0, sT0))
        a('s_add_u32 s%d, s%d, s%d' % (sT0, sT0, sJ))
        a('s_lshl_b32 s%d, s%d, 10' % (sT0, sT0))
        a('v_add_u32 v%d, s%d, v%d' % (vPub, sT0, vL16))
        a('s_lshl_b32 s%d, s2, 12' % sT0)
        for k in range(1, 4):
            a('s_add_u32 s%d, s%d, %d' % (sT1, sJ, k))
            a('s_and_b32 s%d, s%d, 3' % (sT1, sT1))
            a('s_lshl_b32 s%d, s%d, 10' % (sT1, sT1))
            a('s_add_u32 s%d, s%d, s%d' % (sT1, sT1, sT0))
            a('v_add_u32 v%d, s%d, v%d' % (vPa + k - 1, sT1, vL16))
        a('s_lshl_b32 s%d, s2, 8' % sT0)
        a('v_lshlrev_b32 v%d, 2, v%d' % (vOut, vLane))
        a('v_add_u32 v%d, s%d, v%d' % (vOut, sT0, vOut))
        a('s_mul_i32 s%d, s3, %d' % (sT0, PSTR))
        a('s_add_u32 s%d, s%d, %d' % (sT0, sT0, RED))
        a('v_and_b32 v%d, 3, v%d' % (vT0, vLane))
        a('v_mul_u32_u24 v%d, 528, v%d' % (vT1, vT0))
        a('v_lshrrev_b32 v%d, 4, v%d' % (vT2, vLane))
        a('v_lshlrev_b32 v%d, 4, v%d' % (vT3, vT2))
        a('v_add3_u32 v%d, v%d, v%d, s%d' % (vEp1, vT1, vT3, sT0))
        a('v_lshl_add_u32 v%d, v%d, 2, v%d' % (vT2, vT2, vT0))
        a('v_lshlrev_b32 v%d, 3, v%d' % (vT2, vT2))
        a('v_add_u32 v%d, s%d, v%d' % (vT2, sT0, vT2))
        a('v_mov_b32 v%d, v%d' % (vG, vM))
        a('v_mov_b32 v%d, v%d' % (vG + 1, vL))
        a('s_mov_b32 exec_lo, 0x000f000f')
        a('s_mov_b32 exec_hi, 0x000f000f')
        a('ds_write_b64 v%d, %s offset:%d' % (vT2, r(vG, 2), MLOFF))
        a('s_mov_b64 exec, -1')
        a('s_mul_i32 s%d, s3, 528' % sT0)
        a('s_add_u32 s%d, s%d, %d' % (sT0, sT0, RED))
        a('v_lshlrev_b32 v%d, 3, v%d' % (vEp2, vLane))
        a('v_add_u32 v%d, s%d, v%d' % (vEp2, sT0, vEp2))
        a('s_lshl_b32 s%d, s3, 3' % sT1)
        a('s_add_u32 s%d, s%d, %d' % (sT1, sT1, RED + MLOFF))
        a('v_mov_b32 v%d, s%d' % (vEp3, sT1))

    x = vS
    mreg = [x + 2 * w for w in range(NW)]
    lreg = [x + 1 + 2 * w for w in range(NW)]

    def weights():
        for w in range(NW):
            a('ds_read_b64 %s, v%d offset:%d' % (r(x + 2 * w, 2), vEp3, w * PSTR))
        a('v_lshlrev_b32 v%d, 16, v%d' % (vG, vVt))
        a('v_and_b32 v%d, 0xffff0000, v%d' % (vG + 1, vVt))
        a('s_waitcnt lgkmcnt(0)')
        a('v_max3_f32 v%d, v%d, v%d, v%d' % (vG + 2, vTree, mreg[0], mreg[1]))
        a('v_max3_f32 v%d, v%d, v%d, v%d' % (vG + 2, vG + 2, mreg[2], mreg[3]))
        for w in range(NW):
            a('v_sub_f32 v%d, v%d, v%d' % (vW + w, mreg[w], vG + 2))
        a('v_sub_f32 v%d, v%d, v%d' % (vTree, vTree, vG + 2))
        for w in range(NW):
            a('v_exp_f32 v%d, v%d' % (vW + w, vW + w))
        a('v_exp_f32 v%d, v%d' % (vTree, vTree))
        a('v_mul_f32 v%d, v%d, v%d' % (vG, vG, vTree))
        a('v_mul_f32 v%d, v%d, v%d' % (vG + 1, vG + 1, vTree))
        a('v_mov_b32 v%d, v%d' % (vG + 3, vTree))
        for w in range(NW):
            a('v_fmac_f32 v%d, v%d, v%d' % (vG + 3, vW + w, lreg[w]))

    flag_read = []

    def v_tile(n):
        t = n - NT
        slot = n % NS
        last = (n == 2 * NT - 1)
        if last and cfg.early:
            a('s_waitcnt lgkmcnt(0)')
            a('s_barrier')
            weights()
        vm.wait(('tile', n))
        if not flag_read and vm.ops.index('flag') < vm.ops.index(('tile', n)):
            a('v_readfirstlane_b32 s%d, v%d' % (sFlag, vFlag))
            flag_read.append(n)
        if n in (8, 11, 14, 15):
            stamp('tile%d' % n)
        for b in range(8):
            for w in range(2):
                a('ds_read_b64_tr_b16 %s, v%d offset:%d' % (
                    r(vStage + 4 * b + 2 * w, 2), vV, slot * TILE + w * 512 + b * 32))
        if n + NS < 2 * NT:
            a('s_waitcnt lgkmcnt(0)')
            issue_tile(n + NS)
            for b in range(8):
                a('v_mfma_f32_16x16x32_bf16 %s, %s, %s, %s' % (
                    r(vO + 4 * b, 4), r(vStage + 4 * b, 4), r(vP + 4 * t, 4), r(vO + 4 * b, 4)))
        else:
            for b in range(8):
                a('s_waitcnt lgkmcnt(%d)' % (14 - 2 * b))
                a('v_mfma_f32_16x16x32_bf16 %s, %s, %s, %s' % (
                    r(vO + 4 * b, 4), r(vStage + 4 * b, 4), r(vP + 4 * t, 4), r(vO + 4 * b, 4)))

    for n in range(NT):
        k_tile(n)
    if cfg.stamp: stamp('presm')
    softmax()
    mid_setup()
    stamp('softmax')
    for n in range(NT, 2 * NT):
        v_tile(n)
    assert flag_read
    stamp('pv_done')

    a('s_mov_b32 exec_lo, 0x000f000f')
    a('s_mov_b32 exec_hi, 0x000f000f')
    for b in range(8):
        a('ds_write_b128 v%d, %s offset:%d' % (vEp1, r(vO + 4 * b, 4), b * 64))
    a('s_mov_b64 exec, -1')
    a('s_waitcnt lgkmcnt(0)')
    stamp('ldsw')
    a('s_barrier')
    stamp('bar')
    y = vStage
    for w in range(NW):
        a('ds_read_b64 %s, v%d offset:%d' % (r(y + 2 * w, 2), vEp2, w * PSTR))
    if not cfg.early:
        weights()
    for w in range(NW):
        if cfg.early:
            a('s_waitcnt lgkmcnt(%d)' % (NW - 1 - w))
        a('v_fmac_f32 v%d, v%d, v%d' % (vG, vW + w, y + 2 * w))
        a('v_fmac_f32 v%d, v%d, v%d' % (vG + 1, vW + w, y + 2 * w + 1))
    stamp('red')
    a('s_cmp_eq_u32 s3, s%d' % sJ)
    a('s_cbranch_scc1 L_consumer')
    a('s_cmp_lg_u32 s%d, 0' % sFlag)
    a('s_cbranch_scc1 L_flagok')
    a.label('L_flagchk')
    a('global_load_ubyte v%d, v%d, s[18:19] sc1' % (vFlag, vFlagA))
    a('s_waitcnt vmcnt(0)')
    a('v_readfirstlane_b32 s%d, v%d' % (sFlag, vFlag))
    a.nop(4)
    spin_guard('L_end')
    a('s_cmp_eq_u32 s%d, 0' % sFlag)
    a('s_cbranch_scc1 L_flagchk')
    a.label('L_flagok')
    if cfg.local:
        a('s_and_b32 s%d, s%d, 15' % (sFlag, sFlag))
        a('s_cmp_eq_u32 s%d, s%d' % (sFlag, sXcc))
        a('s_cbranch_scc0 L_far')
        a('global_store_dwordx4 v%d, %s, s[20:21]' % (vPub, r(vG, 4)))
        stamp('published')
        n_pub = len(stamps)
        dump_stamps()
        a('s_endpgm')
        a.label('L_far')
    a('global_store_dwordx4 v%d, %s, s[20:21] sc1' % (vPub, r(vG, 4)))
    if not cfg.local:
        stamp('published')
    dump_stamps()
    a('s_endpgm')
    a.label('L_consumer')
    z = x + 16
    a.label('L_poll')
    for k in range(3):
        a('global_load_dwordx4 %s, v%d, s[20:21] sc1' % (r(z + 4 * k, 4), vPa + k))
    a('s_waitcnt vmcnt(0)')
    a('v_max3_u32 v%d, v%d, v%d, v%d' % (vT1, z, z + 1, z + 2))
    a('v_max3_u32 v%d, v%d, v%d, v%d' % (vT2, z + 3, z + 4, z + 5))
    a('v_max3_u32 v%d, v%d, v%d, v%d' % (vT3, z + 6, z + 7, z + 8))
    a('v_max3_u32 v%d, v%d, v%d, v%d' % (vT1, vT1, z + 9, z + 10))
    a('v_max3_u32 v%d, v%d, v%d, v%d' % (vT2, vT2, vT3, z + 11))
    a('v_max_u32 v%d, v%d, v%d' % (vT1, vT1, vT2))
    a('v_cmp_eq_u32 vcc, -1, v%d' % vT1)
    spin_guard('L_end')
    a.nop(5)
    if cfg.psleep:
        a('s_cbranch_vccz L_polled')
        a('s_sleep %d' % cfg.psleep)
        a('s_branch L_poll')
        a.label('L_polled')
    else:
        a('s_cbranch_vccnz L_poll')
    stamp('polled')
    ms = [vG + 2, z + 2, z + 6, z + 10]
    o0 = [vG, z, z + 4, z + 8]
    ls = [vG + 3, z + 3, z + 7, z + 11]
    a('v_max3_f32 v%d, v%d, v%d, v%d' % (vM, ms[0], ms[1], ms[2]))
    a('v_max_f32 v%d, v%d, v%d' % (vM, vM, ms[3]))
    for k in range(4):
        a('v_sub_f32 v%d, v%d, v%d' % (ms[k], ms[k], vM))
    for k in range(4):
        a('v_exp_f32 v%d, v%d' % (ms[k], ms[k]))
    a('v_mul_f32 v%d, v%d, v%d' % (vT3, ms[0], ls[0]))
    a('v_mul_f32 v%d, v%d, v%d' % (vT1, ms[0], o0[0]))
    a('v_mul_f32 v%d, v%d, v%d' % (vT2, ms[0], o0[0] + 1))
    for k in range(1, 4):
        a('v_fmac_f32 v%d, v%d, v%d' % (vT3, ms[k], ls[k]))
    a('v_rcp_f32 v%d, v%d' % (vT3, vT3))
    for k in range(1, 4):
        a('v_fmac_f32 v%d, v%d, v%d' % (vT1, ms[k], o0[k]))
        a('v_fmac_f32 v%d, v%d, v%d' % (vT2, ms[k], o0[k] + 1))
    a('v_mul_f32 v%d, v%d, v%d' % (vT1, vT1, vT3))
    a('v_mul_f32 v%d, v%d, v%d' % (vT2, vT2, vT3))
    a('v_cvt_pk_bf16_f32 v%d, v%d, v%d' % (vT1, vT1, vT2))
    a('global_store_dword v%d, v%d, s[16:17]' % (vOut, vT1))
    stamp('out')
    dump_stamps()
    a.label('L_end')
    a('s_endpgm')
    return a, LDS, nvgpr


KD = """.section .rodata,"a"
.p2align 6
.amdhsa_kernel %s
  .amdhsa_next_free_vgpr %d
  .amdhsa_next_free_sgpr %d
  .amdhsa_accum_offset %d
  .amdhsa_group_segment_fixed_size 0
  .amdhsa_kernarg_size 72
  .amdhsa_user_sgpr_count 2
  .amdhsa_user_sgpr_kernarg_segment_ptr 1
  .amdhsa_system_sgpr_workgroup_id_x 1
.end_amdhsa_kernel
"""


def kernel_text(name, body):
    return ('.text\n.globl %s\n.p2align 8\n.type %s,@function\n%s:\n' % (name, name, name)) + body


def generate(cfg):
    a, lds, nv = gen_main(cfg)
    out = HEADER
    out += '; @launch grid=(256,1,1) block=(256,1,1) lds=%d\n' % lds
    out += '.amdgcn_target "amdgcn-amd-amdhsa--gfx950"\n'
    out += kernel_text(KMAIN, a.finalize())
    nva = (nv + 7) // 8 * 8
    out += KD % (KMAIN, nva, 96, (nva + 3) // 4 * 4)
    return out


if __name__ == '__main__':
    ap = argparse.ArgumentParser()
    ap.add_argument('-o', default='cdna_kernels/' + NAME + '.s')
    ap.add_argument('opts', nargs='*', help='key=value')
    args = ap.parse_args()
    kw = {}
    for o in args.opts:
        k, v = o.split('=', 1)
        try:
            v = int(v)
        except ValueError:
            pass
        kw[k] = v
    cfg = Cfg(**kw)
    txt = generate(cfg)
    open(args.o, 'w').write(txt)
    print('wrote', args.o, len(txt), 'bytes')
    if cfg.stamp:
        open(args.o[:-2] + '.names', 'w').write('\n'.join(cfg.stamp_names) + '\n')
```

```python
import argparse
import math
import re
import struct
import sys
import os

sys.path.insert(0, os.path.dirname(os.path.abspath(__file__)))
from asmlib import Asm

NAME = 'standalone__tree_speculative_verify_tree_attention_over_candidate_token_tree__decode'
KMAIN = NAME + '_kernel'

HEADER = """; Kernarg layout for this problem (72 bytes, ptrs only, base s[0:1]):
"""


def f2u(x):
    return struct.unpack('<I', struct.pack('<f', x))[0]


def hx(x):
    return '0x%08x' % (x & 0xffffffff)


SCALE_LOG2E = (128.0 ** -0.5) * math.log2(math.e)
NEG_BIG_LOG2E = -1.0e9 * math.log2(math.e)

PIECE = 1056
TILE = 8 * PIECE
NW = 4
NT = 8


class Cfg:
    def __init__(self, **kw):
        self.ns = 4
        self.pol = 'nt'
        self.low = 'w0j0w1j1'
        self.high = 'n0n2n1'
        self.stamp = 0
        self.local = 1
        self.early = 1
        self.psleep = 0
        self.cpf = 0
        self.xr = 0
        self.spin = 0
        self.__dict__.update(kw)


class VM:
    def __init__(self, a):
        self.a = a
        self.ops = []

    def issue(self, text, tag):
        self.a(text)
        self.ops.append(tag)

    def count(self, *tags):
        last = max(i for i, t in enumerate(self.ops) if t in tags)
        n = len(self.ops) - 1 - last
        assert n <= 63, n
        return n

    def wait(self, *tags):
        self.a('s_waitcnt vmcnt(%d)' % self.count(*tags))


def gen_main(cfg):
    a = Asm()
    vm = VM(a)
    NS = cfg.ns
    RING = NS * TILE
    RED = NW * RING
    PSTR = 2240
    MLOFF = 2112
    LDS = RED + NW * PSTR
    assert LDS <= 163840, LDS

    sP, sJ = 36, 37
    sBase, sOff, sLds, sC = 32, 33, 34, 35
    sT0, sT1, sT2, sT3 = 38, 39, 40, 41
    sBig, sXcc, sFlag, sSpin = 42, 43, 22, 23
    vLane, vL16, vL16b, vK, vV = 1, 2, 3, 4, 5
    vT0, vT1, vT2, vT3 = 6, 7, 8, 9
    vTree, vVt, vMask = 10, 11, 12
    vM, vL = 13, 14
    vFlag, vFlagA = 15, 0
    vQ = 16
    vStage = 32
    vS = 64
    vP = vS + NT * 8
    vO = vP + NT * 4
    vKt = vO + 32
    vTD = vKt + 16
    nvgpr = vTD + 4
    vEp1, vEp2, vEp3, vPub, vOut = vKt, vKt + 1, vKt + 2, vKt + 3, vKt + 4
    vPa = vKt + 5
    vG = vKt + 8
    vW = vKt + 12
    assert vG % 2 == 0

    def r(base, n):
        return 'v[%d:%d]' % (base, base + n - 1)

    stamps = []

    def stamp(name):
        if not cfg.stamp:
            return
        i = len(stamps)
        assert 44 + 2 * i + 1 < 96
        stamps.append(name)
        a('s_memrealtime s[%d:%d]' % (44 + 2 * i, 45 + 2 * i))
        a('s_waitcnt lgkmcnt(0)')

    def dump_stamps():
        if not cfg.stamp:
            return
        v = vS
        a('v_mov_b32 v%d, 0' % v)
        for i in range(len(stamps)):
            a('v_writelane_b32 v%d, s%d, %d' % (v, 44 + 2 * i, i))
        a('v_writelane_b32 v%d, s%d, 62' % (v, sXcc))
        a('s_lshl_b32 s%d, s2, 3' % sT3)
        a('s_add_u32 s%d, s%d, s3' % (sT3, sT3))
        a('s_lshl_b32 s%d, s%d, 8' % (sT3, sT3))
        a('s_add_u32 s%d, s%d, 0x8000000' % (sT3, sT3))
        a('v_lshlrev_b32 v%d, 2, v%d' % (v + 1, vLane))
        a('v_add_u32 v%d, s%d, v%d' % (v + 1, sT3, v + 1))
        a('global_store_dword v%d, v%d, s[20:21]' % (v + 1, v))
        cfg.stamp_names = list(stamps)

    def spin_guard(exit_label):
        if cfg.spin:
            a('s_sub_u32 s%d, s%d, 1' % (sSpin, sSpin))
            a('s_cbranch_scc1 ' + exit_label)

    hi = re.findall(r'n\d', cfg.high)
    assert sorted(hi) == ['n0', 'n1', 'n2']
    npos = {int(nm[1]): 17 + pos for pos, nm in enumerate(hi)}

    def tile_delta(t):
        return sum(((t >> k) & 1) << npos[k] for k in range(3))

    def issue_tile(n, compact=False):
        isk = n < NT
        slot = n % NS
        srd = 's[24:27]' if isk else 's[28:31]'
        d = tile_delta(n % NT)
        if d:
            a('s_xor_b32 s%d, s%d, %d' % (sOff, sBase, d))
            so = sOff
        else:
            so = sBase
        for i in range(8):
            if compact:
                if i > 0:
                    if i == 4:
                        a('s_add_u32 m0, m0, s%d' % sBig)
                    else:
                        a('s_add_u32 m0, m0, 32')
            else:
                m0 = slot * TILE + i * 32 + (4096 if i >= 4 else 0)
                a('s_add_u32 m0, s%d, %d' % (sLds, m0))
            voff = vL16 if i < 4 else vL16b
            off = (i & 3) * 1024
            txt = 'buffer_load_dwordx4 v%d, %s, s%d offen' % (voff, srd, so)
            if off:
                txt += ' offset:%d' % off
            if cfg.pol:
                txt += ' ' + cfg.pol.replace('+', ' ')
            txt += ' lds'
            vm.issue(txt, ('tile', n))

    if cfg.stamp:
        a('s_cmp_ge_u32 s2, 256')
        a('s_cbranch_scc1 L_end')
        stamp('entry')
    a('s_load_dwordx16 s[4:19], s[0:1], 0')
    a('s_load_dwordx2 s[20:21], s[0:1], 64')
    if not cfg.stamp:
        a('s_cmp_ge_u32 s2, 256')
        a('s_cbranch_scc1 L_end')
    a('v_readfirstlane_b32 s3, v0')
    a('v_and_b32 v%d, 63, v0' % vLane)
    a('v_lshlrev_b32 v%d, 4, v%d' % (vL16, vLane))
    a('s_mov_b32 s26, 0x4000000')
    a('s_mov_b32 s27, 0x20000')
    a('s_lshr_b32 s3, s3, 6')
    a('s_and_b32 s%d, s2, 7' % sT0)
    a('s_bfe_u32 s%d, s2, 0x20003' % sJ)
    a('s_lshr_b32 s%d, s2, 5' % sT1)
    a('s_lshl_b32 s%d, s%d, 3' % (sP, sT0))
    a('s_add_u32 s%d, s%d, s%d' % (sP, sP, sT1))
    if cfg.low == 'w0w1j0j1':
        a('s_lshl_b32 s%d, s%d, 2' % (sT0, sJ))
        a('s_add_u32 s%d, s%d, s3' % (sT0, sT0))
        a('s_lshl_b32 s%d, s%d, 13' % (sT0, sT0))
    elif cfg.low == 'w0j0w1j1':
        a('s_lshl_b32 s%d, s%d, 2' % (sT0, sJ))
        a('s_or_b32 s%d, s%d, s3' % (sT0, sT0))
        a('s_and_b32 s%d, s%d, 6' % (sT1, sT0))
        a('s_lshr_b32 s%d, s%d, 1' % (sT2, sT1))
        a('s_xor_b32 s%d, s%d, s%d' % (sT2, sT2, sT1))
        a('s_and_b32 s%d, s%d, 2' % (sT2, sT2))
        a('s_mul_i32 s%d, s%d, 3' % (sT2, sT2))
        a('s_xor_b32 s%d, s%d, s%d' % (sT0, sT0, sT2))
        a('s_lshl_b32 s%d, s%d, 13' % (sT0, sT0))
    else:
        raise ValueError(cfg.low)
    a('s_lshl_b32 s%d, s%d, 20' % (sBase, sP))
    a('s_add_u32 s%d, s%d, s%d' % (sBase, sBase, sT0))
    if cfg.xr:
        if cfg.xr == 1:
            a('s_lshr_b32 s%d, s2, 5' % sT0)
        elif cfg.xr == 2:
            a('s_and_b32 s%d, s2, 7' % sT0)
        elif cfg.xr == 3:
            a('s_lshr_b32 s%d, s2, 5' % sT0)
            a('s_xor_b32 s%d, s%d, s2' % (sT0, sT0))
            a('s_and_b32 s%d, s%d, 7' % (sT0, sT0))
        elif cfg.xr == 4:
            a('s_bfe_u32 s%d, s2, 0x20005' % sT0)
        elif cfg.xr == 5:
            a('s_and_b32 s%d, s2, 3' % sT0)
        a('s_lshl_b32 s%d, s%d, 17' % (sT0, sT0))
        a('s_xor_b32 s%d, s%d, s%d' % (sBase, sBase, sT0))
    a('s_mul_i32 s%d, s3, %d' % (sLds, RING))
    a('s_movk_i32 s%d, 4128' % sBig)
    a('v_add_u32 v%d, 4096, v%d' % (vL16b, vL16))
    a('s_mov_b32 m0, s%d' % sLds)
    a('s_waitcnt lgkmcnt(0)')
    a('s_mov_b64 s[24:25], s[6:7]')
    stamp('karg')
    issue_tile(0, compact=True)
    a('s_mov_b64 s[28:29], s[8:9]')
    a('s_mov_b64 s[30:31], s[26:27]')
    a('s_lshl_b32 s2, s%d, 2' % sP)
    a('s_add_u32 s2, s2, s%d' % sJ)
    a('s_getreg_b32 s%d, hwreg(HW_REG_XCC_ID, 0, 4)' % sXcc)
    if cfg.spin:
        a('s_mov_b32 s%d, %d' % (sSpin, cfg.spin))

    if cfg.cpf:
        a('s_getpc_b64 s[%d:%d]' % (sT0, sT0 + 1))
        a.label('L_pc')
        a('s_sub_u32 s%d, s%d, L_pc-%s' % (sT0, sT0, KMAIN))
        a('s_subb_u32 s%d, s%d, 0' % (sT0 + 1, sT0 + 1))
        a('s_lshl_b32 s%d, s%d, 2' % (sT2, sJ))
        a('s_add_u32 s%d, s%d, s3' % (sT2, sT2))
        a('s_lshl_b32 s%d, s%d, 10' % (sT2, sT2))
        a('s_min_u32 s%d, s%d, L_codeend-%s-1024' % (sT2, sT2, KMAIN))
        a('v_add_u32 v%d, s%d, v%d' % (vT0, sT2, vL16))
        a('v_mov_b32 v%d, s%d' % (vT1, sT0 + 1))
        a('v_add_co_u32 v%d, vcc, s%d, v%d' % (vT0, sT0, vT0))
        a('v_addc_co_u32 v%d, vcc, 0, v%d, vcc' % (vT1, vT1))
        a('global_load_dwordx4 %s, %s, off' % (r(vO, 4), r(vT0, 2)))
    a('s_cmp_eq_u32 s3, s%d' % sJ)
    a('s_cbranch_scc0 L_noclear')
    for i in range(4):
        a('v_mov_b32 v%d, -1' % (vStage + i))
    a('s_lshl_b32 s%d, s2, 12' % sT0)
    a('v_add_u32 v%d, s%d, v%d' % (vT0, sT0, vL16))
    for i in range(4):
        a('global_store_dwordx4 v%d, %s, s[20:21] offset:%d sc1' % (vT0, r(vStage, 4), i * 1024))
    a.label('L_noclear')

    a('v_and_b32 v%d, 3, v%d' % (vT0, vLane))
    a('v_lshlrev_b32 v%d, 8, v%d' % (vT0, vT0))
    a('v_lshrrev_b32 v%d, 4, v%d' % (vT1, vLane))
    a('v_lshlrev_b32 v%d, 4, v%d' % (vT1, vT1))
    a('s_lshl_b32 s%d, s%d, 10' % (sT0, sP))
    a('s_lshl_b32 s%d, s%d, 8' % (sT1, sP))
    a('v_add3_u32 v%d, v%d, v%d, s%d' % (vT0, vT0, vT1, sT0))
    a('v_add_u32 v%d, s%d, v%d' % (vT1, sT1, vT1))
    a('v_lshlrev_b32 v%d, 2, v%d' % (vT2, vLane))
    a('v_add_u32 v%d, s%d, v%d' % (vT2, sT1, vT2))
    a('s_lshr_b32 s%d, s%d, 3' % (sT2, sP))
    a('s_lshl_b32 s%d, s%d, 1' % (sT2, sT2))
    a('v_mov_b32 v%d, s%d' % (vT3, sT2))
    for s in range(4):
        vm.issue('global_load_dwordx4 %s, v%d, s[4:5] offset:%d' % (r(vQ + 4 * s, 4), vT0, s * 64), 'small')
    for s in range(4):
        vm.issue('global_load_dwordx4 %s, v%d, s[10:11] offset:%d' % (r(vKt + 4 * s, 4), vT1, s * 64), 'small')
    vm.issue('global_load_dword v%d, v%d, s[12:13]' % (vVt, vT2), 'small')
    vm.issue('global_load_ushort v%d, v%d, s[14:15]' % (vMask, vT3), 'small')
    for n in range(1, NS):
        issue_tile(n)

    a('v_and_b32 v%d, 7, v%d' % (vT0, vLane))
    a('v_mul_u32_u24 v%d, %d, v%d' % (vT0, PIECE, vT0))
    a('v_bfe_u32 v%d, v%d, 3, 1' % (vT1, vLane))
    a('v_lshlrev_b32 v%d, 8, v%d' % (vT1, vT1))
    a('v_lshrrev_b32 v%d, 4, v%d' % (vT2, vLane))
    a('v_lshlrev_b32 v%d, 4, v%d' % (vT2, vT2))
    a('v_add3_u32 v%d, v%d, v%d, v%d' % (vK, vT0, vT1, vT2))
    a('v_add_u32 v%d, s%d, v%d' % (vK, sLds, vK))
    a('v_bfe_u32 v%d, v%d, 2, 3' % (vT0, vLane))
    a('v_mul_u32_u24 v%d, %d, v%d' % (vT0, PIECE, vT0))
    a('v_lshrrev_b32 v%d, 5, v%d' % (vT1, vLane))
    a('v_lshlrev_b32 v%d, 8, v%d' % (vT1, vT1))
    a('v_and_b32 v%d, 3, v%d' % (vT2, vLane))
    a('v_lshlrev_b32 v%d, 3, v%d' % (vT2, vT2))
    a('v_add3_u32 v%d, v%d, v%d, v%d' % (vV, vT0, vT1, vT2))
    a('v_add_u32 v%d, s%d, v%d' % (vV, sLds, vV))
    a('s_mov_b32 s%d, %s' % (sC, hx(f2u(SCALE_LOG2E))))
    if not cfg.cpf:
        for i in range(32):
            a('v_mov_b32 v%d, 0' % (vO + i))

    def tree_score():
        for s in range(4):
            a('v_mfma_f32_16x16x32_bf16 %s, %s, %s, %s' % (
                r(vTD, 4), r(vKt + 4 * s, 4), r(vQ + 4 * s, 4), '0' if s == 0 else r(vTD, 4)))
        a('v_lshlrev_b32 v%d, 16, v%d' % (vMask, vMask))
        a('v_sub_f32 v%d, 1.0, v%d' % (vMask, vMask))
        a('v_mul_f32 v%d, %s, v%d' % (vMask, hx(f2u(NEG_BIG_LOG2E)), vMask))
        a('s_cmp_eq_u32 s%d, 0' % sJ)
        a('s_cselect_b32 s%d, 0, 0xff800000' % sT1)
        a('v_readlane_b32 s%d, v%d, s3' % (sT2, vTD))
        a('v_mov_b32 v%d, s%d' % (vTree, sT2))
        a('v_fma_f32 v%d, v%d, s%d, v%d' % (vTree, vTree, sC, vMask))
        a('v_add_f32 v%d, s%d, v%d' % (vTree, sT1, vTree))

    def k_tile(n):
        t = n
        slot = n % NS
        if n == 0:
            vm.wait(('tile', 0), 'small')
            a('s_cmp_eq_u32 s3, s%d' % sJ)
            a('s_cbranch_scc0 L_noflag')
            a('s_or_b32 s%d, s%d, 0x80' % (sT0, sXcc))
            a('v_mov_b32 v%d, s2' % vT0)
            a('v_mov_b32 v%d, s%d' % (vT1, sT0))
            a('s_mov_b64 exec, 1')
            a('global_store_byte v%d, v%d, s[18:19] sc1' % (vT0, vT1))
            a('s_mov_b64 exec, -1')
            a.label('L_noflag')
        else:
            vm.wait(('tile', n))
        if n in (0, 3, 7):
            stamp('tile%d' % n)
        for w in range(2):
            for s in range(4):
                a('ds_read_b128 %s, v%d offset:%d' % (
                    r(vStage + 16 * w + 4 * s, 4), vK, slot * TILE + w * 512 + s * 64))
        a('s_waitcnt lgkmcnt(0)')
        issue_tile(n + NS)
        for s in range(4):
            for w in range(2):
                d = r(vS + 8 * t + 4 * w, 4)
                a('v_mfma_f32_16x16x32_bf16 %s, %s, %s, %s' % (
                    d, r(vStage + 16 * w + 4 * s, 4), r(vQ + 4 * s, 4), '0' if s == 0 else d))
        if n == 0:
            tree_score()
            if cfg.cpf:
                for i in range(32):
                    a('v_mov_b32 v%d, 0' % (vO + i))

    def xg_reduce(v, op):
        a('v_mov_b32 v%d, v%d' % (vT0, v))
        a('v_permlane32_swap_b32 v%d, v%d' % (vT0, v))
        a('%s v%d, v%d, v%d' % (op, v, v, vT0))
        a('v_mov_b32 v%d, v%d' % (vT0, v))
        a('v_permlane16_swap_b32 v%d, v%d' % (vT0, v))
        a('%s v%d, v%d, v%d' % (op, v, v, vT0))

    def softmax():
        n = NT * 8
        acc = [vM, vT1, vT2, vT3]
        idx = 0
        for k in range(4):
            a('v_max3_f32 v%d, v%d, v%d, v%d' % (acc[k], vS + idx, vS + idx + 1, vS + idx + 2))
            idx += 3
        k = 0
        while idx + 1 < n:
            a('v_max3_f32 v%d, v%d, v%d, v%d' % (acc[k], acc[k], vS + idx, vS + idx + 1))
            idx += 2
            k = (k + 1) % 4
        while idx < n:
            a('v_max_f32 v%d, v%d, v%d' % (acc[k], acc[k], vS + idx))
            idx += 1
        a('v_max3_f32 v%d, v%d, v%d, v%d' % (vM, vM, vT1, vT2))
        a('v_max_f32 v%d, v%d, v%d' % (vM, vM, vT3))
        xg_reduce(vM, 'v_max_f32')
        a('v_mul_f32 v%d, s%d, v%d' % (vM, sC, vM))
        a('v_mov_b32 v%d, 0' % vL)
        a('v_mov_b32 v%d, 0' % vT1)
        for t in range(NT):
            b = vS + 8 * t
            for i in range(8):
                a('v_fma_f32 v%d, v%d, s%d, -v%d' % (b + i, b + i, sC, vM))
            for i in range(8):
                a('v_exp_f32 v%d, v%d' % (b + i, b + i))
            for i in range(4):
                a('v_cvt_pk_bf16_f32 v%d, v%d, v%d' % (vP + 4 * t + i, b + 2 * i, b + 2 * i + 1))
            for i in range(4):
                a('v_add_f32 v%d, v%d, v%d' % (vL, vL, b + 2 * i))
                a('v_add_f32 v%d, v%d, v%d' % (vT1, vT1, b + 2 * i + 1))
        a('v_add_f32 v%d, v%d, v%d' % (vL, vL, vT1))
        xg_reduce(vL, 'v_add_f32')

    def mid_setup():
        a('s_lshl_b32 s%d, s%d, 2' % (sT0, sP))
        a('s_add_u32 s%d, s%d, s3' % (sT0, sT0))
        a('v_mov_b32 v%d, s%d' % (vFlagA, sT0))
        vm.issue('global_load_ubyte v%d, v%d, s[18:19] sc1' % (vFlag, vFlagA), 'flag')
        a('s_lshl_b32 s%d, s%d, 2' % (sT0, sT0))
        a('s_add_u32 s%d, s%d, s%d' % (sT0, sT0, sJ))
        a('s_lshl_b32 s%d, s%d, 10' % (sT0, sT0))
        a('v_add_u32 v%d, s%d, v%d' % (vPub, sT0, vL16))
        a('s_lshl_b32 s%d, s2, 12' % sT0)
        for k in range(1, 4):
            a('s_add_u32 s%d, s%d, %d' % (sT1, sJ, k))
            a('s_and_b32 s%d, s%d, 3' % (sT1, sT1))
            a('s_lshl_b32 s%d, s%d, 10' % (sT1, sT1))
            a('s_add_u32 s%d, s%d, s%d' % (sT1, sT1, sT0))
            a('v_add_u32 v%d, s%d, v%d' % (vPa + k - 1, sT1, vL16))
        a('s_lshl_b32 s%d, s2, 8' % sT0)
        a('v_lshlrev_b32 v%d, 2, v%d' % (vOut, vLane))
        a('v_add_u32 v%d, s%d, v%d' % (vOut, sT0, vOut))
        a('s_mul_i32 s%d, s3, %d' % (sT0, PSTR))
        a('s_add_u32 s%d, s%d, %d' % (sT0, sT0, RED))
        a('v_and_b32 v%d, 3, v%d' % (vT0, vLane))
        a('v_mul_u32_u24 v%d, 528, v%d' % (vT1, vT0))
        a('v_lshrrev_b32 v%d, 4, v%d' % (vT2, vLane))
        a('v_lshlrev_b32 v%d, 4, v%d' % (vT3, vT2))
        a('v_add3_u32 v%d, v%d, v%d, s%d' % (vEp1, vT1, vT3, sT0))
        a('v_lshl_add_u32 v%d, v%d, 2, v%d' % (vT2, vT2, vT0))
        a('v_lshlrev_b32 v%d, 3, v%d' % (vT2, vT2))
        a('v_add_u32 v%d, s%d, v%d' % (vT2, sT0, vT2))
        a('v_mov_b32 v%d, v%d' % (vG, vM))
        a('v_mov_b32 v%d, v%d' % (vG + 1, vL))
        a('s_mov_b32 exec_lo, 0x000f000f')
        a('s_mov_b32 exec_hi, 0x000f000f')
        a('ds_write_b64 v%d, %s offset:%d' % (vT2, r(vG, 2), MLOFF))
        a('s_mov_b64 exec, -1')
        a('s_mul_i32 s%d, s3, 528' % sT0)
        a('s_add_u32 s%d, s%d, %d' % (sT0, sT0, RED))
        a('v_lshlrev_b32 v%d, 3, v%d' % (vEp2, vLane))
        a('v_add_u32 v%d, s%d, v%d' % (vEp2, sT0, vEp2))
        a('s_lshl_b32 s%d, s3, 3' % sT1)
        a('s_add_u32 s%d, s%d, %d' % (sT1, sT1, RED + MLOFF))
        a('v_mov_b32 v%d, s%d' % (vEp3, sT1))

    x = vS
    mreg = [x + 2 * w for w in range(NW)]
    lreg = [x + 1 + 2 * w for w in range(NW)]

    def weights():
        for w in range(NW):
            a('ds_read_b64 %s, v%d offset:%d' % (r(x + 2 * w, 2), vEp3, w * PSTR))
        a('v_lshlrev_b32 v%d, 16, v%d' % (vG, vVt))
        a('v_and_b32 v%d, 0xffff0000, v%d' % (vG + 1, vVt))
        a('s_waitcnt lgkmcnt(0)')
        a('v_max3_f32 v%d, v%d, v%d, v%d' % (vG + 2, vTree, mreg[0], mreg[1]))
        a('v_max3_f32 v%d, v%d, v%d, v%d' % (vG + 2, vG + 2, mreg[2], mreg[3]))
        for w in range(NW):
            a('v_sub_f32 v%d, v%d, v%d' % (vW + w, mreg[w], vG + 2))
        a('v_sub_f32 v%d, v%d, v%d' % (vTree, vTree, vG + 2))
        for w in range(NW):
            a('v_exp_f32 v%d, v%d' % (vW + w, vW + w))
        a('v_exp_f32 v%d, v%d' % (vTree, vTree))
        a('v_mul_f32 v%d, v%d, v%d' % (vG, vG, vTree))
        a('v_mul_f32 v%d, v%d, v%d' % (vG + 1, vG + 1, vTree))
        a('v_mov_b32 v%d, v%d' % (vG + 3, vTree))
        for w in range(NW):
            a('v_fmac_f32 v%d, v%d, v%d' % (vG + 3, vW + w, lreg[w]))

    flag_read = []

    def v_tile(n):
        t = n - NT
        slot = n % NS
        last = (n == 2 * NT - 1)
        if last and cfg.early:
            a('s_waitcnt lgkmcnt(0)')
            a('s_barrier')
            weights()
        vm.wait(('tile', n))
        if not flag_read and vm.ops.index('flag') < vm.ops.index(('tile', n)):
            a('v_readfirstlane_b32 s%d, v%d' % (sFlag, vFlag))
            flag_read.append(n)
        if n in (8, 11, 14, 15):
            stamp('tile%d' % n)
        for b in range(8):
            for w in range(2):
                a('ds_read_b64_tr_b16 %s, v%d offset:%d' % (
                    r(vStage + 4 * b + 2 * w, 2), vV, slot * TILE + w * 512 + b * 32))
        if n + NS < 2 * NT:
            a('s_waitcnt lgkmcnt(0)')
            issue_tile(n + NS)
            for b in range(8):
                a('v_mfma_f32_16x16x32_bf16 %s, %s, %s, %s' % (
                    r(vO + 4 * b, 4), r(vStage + 4 * b, 4), r(vP + 4 * t, 4), r(vO + 4 * b, 4)))
        else:
            for b in range(8):
                a('s_waitcnt lgkmcnt(%d)' % (14 - 2 * b))
                a('v_mfma_f32_16x16x32_bf16 %s, %s, %s, %s' % (
                    r(vO + 4 * b, 4), r(vStage + 4 * b, 4), r(vP + 4 * t, 4), r(vO + 4 * b, 4)))

    for n in range(NT):
        k_tile(n)
    if cfg.stamp: stamp('presm')
    softmax()
    mid_setup()
    stamp('softmax')
    for n in range(NT, 2 * NT):
        v_tile(n)
    assert flag_read
    stamp('pv_done')

    a('s_mov_b32 exec_lo, 0x000f000f')
    a('s_mov_b32 exec_hi, 0x000f000f')
    for b in range(8):
        a('ds_write_b128 v%d, %s offset:%d' % (vEp1, r(vO + 4 * b, 4), b * 64))
    a('s_mov_b64 exec, -1')
    a('s_waitcnt lgkmcnt(0)')
    stamp('ldsw')
    a('s_barrier')
    stamp('bar')
    y = vStage
    for w in range(NW):
        a('ds_read_b64 %s, v%d offset:%d' % (r(y + 2 * w, 2), vEp2, w * PSTR))
    if not cfg.early:
        weights()
    for w in range(NW):
        if cfg.early:
            a('s_waitcnt lgkmcnt(%d)' % (NW - 1 - w))
        a('v_fmac_f32 v%d, v%d, v%d' % (vG, vW + w, y + 2 * w))
        a('v_fmac_f32 v%d, v%d, v%d' % (vG + 1, vW + w, y + 2 * w + 1))
    stamp('red')
    a('s_cmp_eq_u32 s3, s%d' % sJ)
    a('s_cbranch_scc1 L_consumer')
    a('s_cmp_lg_u32 s%d, 0' % sFlag)
    a('s_cbranch_scc1 L_flagok')
    a.label('L_flagchk')
    a('global_load_ubyte v%d, v%d, s[18:19] sc1' % (vFlag, vFlagA))
    a('s_waitcnt vmcnt(0)')
    a('v_readfirstlane_b32 s%d, v%d' % (sFlag, vFlag))
    a.nop(4)
    spin_guard('L_end')
    a('s_cmp_eq_u32 s%d, 0' % sFlag)
    a('s_cbranch_scc1 L_flagchk')
    a.label('L_flagok')
    if cfg.local:
        a('s_and_b32 s%d, s%d, 15' % (sFlag, sFlag))
        a('s_cmp_eq_u32 s%d, s%d' % (sFlag, sXcc))
        a('s_cbranch_scc0 L_far')
        a('global_store_dwordx4 v%d, %s, s[20:21]' % (vPub, r(vG, 4)))
        stamp('published')
        n_pub = len(stamps)
        dump_stamps()
        a('s_endpgm')
        a.label('L_far')
    a('global_store_dwordx4 v%d, %s, s[20:21] sc1' % (vPub, r(vG, 4)))
    if not cfg.local:
        stamp('published')
    dump_stamps()
    a('s_endpgm')
    a.label('L_consumer')
    z = x + 16
    a.label('L_poll')
    for k in range(3):
        a('global_load_dwordx4 %s, v%d, s[20:21] sc1' % (r(z + 4 * k, 4), vPa + k))
    a('s_waitcnt vmcnt(0)')
    a('v_max3_u32 v%d, v%d, v%d, v%d' % (vT1, z, z + 1, z + 2))
    a('v_max3_u32 v%d, v%d, v%d, v%d' % (vT2, z + 3, z + 4, z + 5))
    a('v_max3_u32 v%d, v%d, v%d, v%d' % (vT3, z + 6, z + 7, z + 8))
    a('v_max3_u32 v%d, v%d, v%d, v%d' % (vT1, vT1, z + 9, z + 10))
    a('v_max3_u32 v%d, v%d, v%d, v%d' % (vT2, vT2, vT3, z + 11))
    a('v_max_u32 v%d, v%d, v%d' % (vT1, vT1, vT2))
    a('v_cmp_eq_u32 vcc, -1, v%d' % vT1)
    spin_guard('L_end')
    a.nop(5)
    if cfg.psleep:
        a('s_cbranch_vccz L_polled')
        a('s_sleep %d' % cfg.psleep)
        a('s_branch L_poll')
        a.label('L_polled')
    else:
        a('s_cbranch_vccnz L_poll')
    stamp('polled')
    ms = [vG + 2, z + 2, z + 6, z + 10]
    o0 = [vG, z, z + 4, z + 8]
    ls = [vG + 3, z + 3, z + 7, z + 11]
    a('v_max3_f32 v%d, v%d, v%d, v%d' % (vM, ms[0], ms[1], ms[2]))
    a('v_max_f32 v%d, v%d, v%d' % (vM, vM, ms[3]))
    for k in range(4):
        a('v_sub_f32 v%d, v%d, v%d' % (ms[k], ms[k], vM))
    for k in range(4):
        a('v_exp_f32 v%d, v%d' % (ms[k], ms[k]))
    a('v_mul_f32 v%d, v%d, v%d' % (vT3, ms[0], ls[0]))
    a('v_mul_f32 v%d, v%d, v%d' % (vT1, ms[0], o0[0]))
    a('v_mul_f32 v%d, v%d, v%d' % (vT2, ms[0], o0[0] + 1))
    for k in range(1, 4):
        a('v_fmac_f32 v%d, v%d, v%d' % (vT3, ms[k], ls[k]))
    a('v_rcp_f32 v%d, v%d' % (vT3, vT3))
    for k in range(1, 4):
        a('v_fmac_f32 v%d, v%d, v%d' % (vT1, ms[k], o0[k]))
        a('v_fmac_f32 v%d, v%d, v%d' % (vT2, ms[k], o0[k] + 1))
    a('v_mul_f32 v%d, v%d, v%d' % (vT1, vT1, vT3))
    a('v_mul_f32 v%d, v%d, v%d' % (vT2, vT2, vT3))
    a('v_cvt_pk_bf16_f32 v%d, v%d, v%d' % (vT1, vT1, vT2))
    a('global_store_dword v%d, v%d, s[16:17]' % (vOut, vT1))
    stamp('out')
    dump_stamps()
    a.label('L_end')
    a('s_endpgm')
    if cfg.cpf:
        a.label('L_codeend')
    return a, LDS, nvgpr


KD = """.section .rodata,"a"
.p2align 6
.amdhsa_kernel %s
  .amdhsa_next_free_vgpr %d
  .amdhsa_next_free_sgpr %d
  .amdhsa_accum_offset %d
  .amdhsa_group_segment_fixed_size 0
  .amdhsa_kernarg_size 72
  .amdhsa_user_sgpr_count 2
  .amdhsa_user_sgpr_kernarg_segment_ptr 1
  .amdhsa_system_sgpr_workgroup_id_x 1
.end_amdhsa_kernel
"""


def kernel_text(name, body):
    return ('.text\n.globl %s\n.p2align 8\n.type %s,@function\n%s:\n' % (name, name, name)) + body


def generate(cfg):
    a, lds, nv = gen_main(cfg)
    out = HEADER
    out += '; @launch grid=(256,1,1) block=(256,1,1) lds=%d\n' % lds
    out += '.amdgcn_target "amdgcn-amd-amdhsa--gfx950"\n'
    out += kernel_text(KMAIN, a.finalize())
    nva = (nv + 7) // 8 * 8
    out += KD % (KMAIN, nva, 96, (nva + 3) // 4 * 4)
    return out


if __name__ == '__main__':
    ap = argparse.ArgumentParser()
    ap.add_argument('-o', default='cdna_kernels/' + NAME + '.s')
    ap.add_argument('opts', nargs='*', help='key=value')
    args = ap.parse_args()
    kw = {}
    for o in args.opts:
        k, v = o.split('=', 1)
        try:
            v = int(v)
        except ValueError:
            pass
        kw[k] = v
    cfg = Cfg(**kw)
    txt = generate(cfg)
    open(args.o, 'w').write(txt)
    print('wrote', args.o, len(txt), 'bytes')
    if cfg.stamp:
        open(args.o[:-2] + '.names', 'w').write('\n'.join(cfg.stamp_names) + '\n')
```

```python
import argparse
import math
import re
import struct
import sys
import os

sys.path.insert(0, os.path.dirname(os.path.abspath(__file__)))
from asmlib import Asm

NAME = 'standalone__tree_speculative_verify_tree_attention_over_candidate_token_tree__decode'
KMAIN = NAME + '_kernel'

HEADER = """; Kernarg layout for this problem (72 bytes, ptrs only, base s[0:1]):
"""


def f2u(x):
    return struct.unpack('<I', struct.pack('<f', x))[0]


def hx(x):
    return '0x%08x' % (x & 0xffffffff)


SCALE_LOG2E = (128.0 ** -0.5) * math.log2(math.e)
NEG_BIG_LOG2E = -1.0e9 * math.log2(math.e)

PIECE = 1056
TILE = 8 * PIECE
NW = 4
NT = 8


class Cfg:
    def __init__(self, **kw):
        self.ns = 4
        self.pol = 'nt'
        self.low = 'w0j0w1j1'
        self.high = 'n0n2n1'
        self.stamp = 0
        self.local = 1
        self.early = 1
        self.psleep = 0
        self.nopub = 0
        self.nopoll = 0
        self.noEst = 0
        self.noE = 0
        self.noX = 0
        self.epoch = 1
        self.plainld = 0
        self.nclr = 4
        self.clrpol = 'sc1'
        self.flagst = 1
        self.noflagld = 0
        self.helper = 0
        self.lock = 0
        self.diag = 0
        self.ilv = 1
        self.ihigh = 'n0n1n2j0j1'
        self.split = 1
        self.cpf = 0
        self.xr = 0
        self.spin = 0
        self.__dict__.update(kw)


class VM:
    def __init__(self, a):
        self.a = a
        self.ops = []

    def issue(self, text, tag):
        self.a(text)
        self.ops.append(tag)

    def count(self, *tags):
        last = max(i for i, t in enumerate(self.ops) if t in tags)
        n = len(self.ops) - 1 - last
        assert n <= 63, n
        return n

    def wait(self, *tags):
        self.a('s_waitcnt vmcnt(%d)' % self.count(*tags))


def gen_main(cfg):
    a = Asm()
    vm = VM(a)
    NS = cfg.ns
    RING = NS * TILE
    RED = NW * RING
    PSTR = 2240
    MLOFF = 2112
    LDS = RED + NW * PSTR
    assert LDS <= 163840, LDS

    sP, sJ = 36, 37
    sBase, sOff, sLds, sC = 32, 33, 34, 35
    sT0, sT1, sT2, sT3 = 38, 39, 40, 41
    sBig, sXcc, sFlag, sSpin = 42, 43, 22, 23
    s4k = 97
    sE, sTag = 98, 99
    EOFF = 0x200000
    XOFF = 0x210000
    vL16w = 3
    vLane, vL16, vL16b, vK, vV = 1, 2, 3, 4, 5
    vT0, vT1, vT2, vT3 = 6, 7, 8, 9
    vTree, vVt, vMask = 10, 11, 12
    vM, vL = 13, 14
    vFlagA = 0
    vL2 = 12
    vQ = 16
    vStage = 32
    vS = 64
    vP = vS + NT * 8
    vO = vP + NT * 4
    vKt = vO + 32
    vTD = vKt + 16
    nvgpr = vTD + 4
    vFlag = vTD + 2
    vMLa = vTD
    vEp1, vEp2, vEp3, vPub, vOut = vKt, vKt + 1, vKt + 2, vKt + 3, vKt + 4
    vPa = vKt + 5
    vG = vKt + 8
    vW = vKt + 12
    assert vG % 2 == 0

    def r(base, n):
        return 'v[%d:%d]' % (base, base + n - 1)

    stamps = []

    def stamp(name):
        if not cfg.stamp:
            return
        i = len(stamps)
        assert 44 + 2 * i + 1 < 96
        stamps.append(name)
        a('s_memrealtime s[%d:%d]' % (44 + 2 * i, 45 + 2 * i))
        a('s_waitcnt lgkmcnt(0)')

    def dump_stamps():
        if not cfg.stamp:
            return
        v = vS
        a('v_mov_b32 v%d, 0' % v)
        for i in range(len(stamps)):
            a('v_writelane_b32 v%d, s%d, %d' % (v, 44 + 2 * i, i))
        a('v_writelane_b32 v%d, s%d, 62' % (v, sXcc))
        a('s_lshl_b32 s%d, s2, 3' % sT3)
        a('s_add_u32 s%d, s%d, s3' % (sT3, sT3))
        a('s_lshl_b32 s%d, s%d, 8' % (sT3, sT3))
        a('s_add_u32 s%d, s%d, 0x8000000' % (sT3, sT3))
        a('v_lshlrev_b32 v%d, 2, v%d' % (v + 1, vLane))
        a('v_add_u32 v%d, s%d, v%d' % (v + 1, sT3, v + 1))
        a('global_store_dword v%d, v%d, s[20:21]' % (v + 1, v))
        cfg.stamp_names = list(stamps)

    def spin_guard(exit_label):
        if cfg.spin:
            a('s_sub_u32 s%d, s%d, 1' % (sSpin, sSpin))
            a('s_cbranch_scc1 ' + exit_label)

    if cfg.ilv:
        hi = re.findall(r'[nj]\d', cfg.ihigh)
        assert sorted(hi) == ['j0', 'j1', 'n0', 'n1', 'n2']
        npos = {int(nm[1]): 15 + pos for pos, nm in enumerate(hi) if nm[0] == 'n'}
        jpos = {int(nm[1]): 15 + pos for pos, nm in enumerate(hi) if nm[0] == 'j'}
    else:
        hi = re.findall(r'n\d', cfg.high)
        assert sorted(hi) == ['n0', 'n1', 'n2']
        npos = {int(nm[1]): 17 + pos for pos, nm in enumerate(hi)}

    def tile_delta(t):
        return sum(((t >> k) & 1) << npos[k] for k in range(3))

    def issue_tile(n, compact=False):
        isk = n < NT
        slot = n % NS
        srd = 's[24:27]' if isk else 's[28:31]'
        d = tile_delta(n % NT)
        if cfg.ilv:
            for i in range(8):
                if compact:
                    if i > 0:
                        a('s_add_u32 m0, m0, s%d' % sBig)
                else:
                    a('s_add_u32 m0, s%d, %d' % (sLds, slot * TILE + i * PIECE))
                if i == 0:
                    if d:
                        a('s_xor_b32 s%d, s%d, %d' % (sOff, sBase, d))
                    else:
                        a('s_mov_b32 s%d, s%d' % (sOff, sBase))
                else:
                    a('s_add_u32 s%d, s%d, s%d' % (sOff, sOff, s4k))
                txt = 'buffer_load_dwordx4 v%d, %s, s%d offen' % (vL16w, srd, sOff)
                if cfg.pol:
                    txt += ' ' + cfg.pol.replace('+', ' ')
                txt += ' lds'
                vm.issue(txt, ('tile', n))
            return
        if d:
            a('s_xor_b32 s%d, s%d, %d' % (sOff, sBase, d))
            so = sOff
        else:
            so = sBase
        for i in range(8):
            if compact:
                if i > 0:
                    if i == 4:
                        a('s_add_u32 m0, m0, s%d' % sBig)
                    else:
                        a('s_add_u32 m0, m0, 32')
            else:
                m0 = slot * TILE + i * 32 + (4096 if i >= 4 else 0)
                a('s_add_u32 m0, s%d, %d' % (sLds, m0))
            voff = vL16 if i < 4 else vL16b
            off = (i & 3) * 1024
            txt = 'buffer_load_dwordx4 v%d, %s, s%d offen' % (voff, srd, so)
            if off:
                txt += ' offset:%d' % off
            if cfg.pol:
                txt += ' ' + cfg.pol.replace('+', ' ')
            txt += ' lds'
            vm.issue(txt, ('tile', n))

    if cfg.stamp:
        a('s_cmp_ge_u32 s2, 256')
        a('s_cbranch_scc1 L_end')
        stamp('entry')
    a('s_load_dwordx16 s[4:19], s[0:1], 0')
    a('s_load_dwordx2 s[20:21], s[0:1], 64')
    if not cfg.stamp:
        a('s_cmp_ge_u32 s2, 256')
        a('s_cbranch_scc1 L_end')
    a('v_readfirstlane_b32 s3, v0')
    a('v_and_b32 v%d, 63, v0' % vLane)
    a('v_lshlrev_b32 v%d, 4, v%d' % (vL16, vLane))
    a('s_mov_b32 s26, 0x4000000')
    a('s_mov_b32 s27, 0x20000')
    a('s_lshr_b32 s3, s3, 6')
    a('s_and_b32 s%d, s2, 7' % sT0)
    a('s_bfe_u32 s%d, s2, 0x20003' % sJ)
    a('s_lshr_b32 s%d, s2, 5' % sT1)
    a('s_lshl_b32 s%d, s%d, 3' % (sP, sT0))
    a('s_add_u32 s%d, s%d, s%d' % (sP, sP, sT1))
    if cfg.ilv:
        if jpos[1] == jpos[0] + 1:
            a('s_lshl_b32 s%d, s%d, %d' % (sT0, sJ, jpos[0]))
        else:
            a('s_and_b32 s%d, s%d, 1' % (sT0, sJ))
            a('s_lshl_b32 s%d, s%d, %d' % (sT0, sT0, jpos[0]))
            a('s_lshr_b32 s%d, s%d, 1' % (sT1, sJ))
            a('s_lshl_b32 s%d, s%d, %d' % (sT1, sT1, jpos[1]))
            a('s_or_b32 s%d, s%d, s%d' % (sT0, sT0, sT1))
        a('s_lshl_b32 s%d, s3, 10' % sT1)
        a('v_add_u32 v%d, s%d, v%d' % (vL16w, sT1, vL16))
        a('s_movk_i32 s%d, 0x1000' % s4k)
    elif cfg.low == 'w0w1j0j1':
        a('s_lshl_b32 s%d, s%d, 2' % (sT0, sJ))
        a('s_add_u32 s%d, s%d, s3' % (sT0, sT0))
        a('s_lshl_b32 s%d, s%d, 13' % (sT0, sT0))
    elif cfg.low == 'w0j0w1j1':
        a('s_lshl_b32 s%d, s%d, 2' % (sT0, sJ))
        a('s_or_b32 s%d, s%d, s3' % (sT0, sT0))
        a('s_and_b32 s%d, s%d, 6' % (sT1, sT0))
        a('s_lshr_b32 s%d, s%d, 1' % (sT2, sT1))
        a('s_xor_b32 s%d, s%d, s%d' % (sT2, sT2, sT1))
        a('s_and_b32 s%d, s%d, 2' % (sT2, sT2))
        a('s_mul_i32 s%d, s%d, 3' % (sT2, sT2))
        a('s_xor_b32 s%d, s%d, s%d' % (sT0, sT0, sT2))
        a('s_lshl_b32 s%d, s%d, 13' % (sT0, sT0))
    else:
        raise ValueError(cfg.low)
    a('s_lshl_b32 s%d, s%d, 20' % (sBase, sP))
    a('s_add_u32 s%d, s%d, s%d' % (sBase, sBase, sT0))
    if cfg.xr:
        if cfg.xr == 1:
            a('s_lshr_b32 s%d, s2, 5' % sT0)
        elif cfg.xr == 2:
            a('s_and_b32 s%d, s2, 7' % sT0)
        elif cfg.xr == 3:
            a('s_lshr_b32 s%d, s2, 5' % sT0)
            a('s_xor_b32 s%d, s%d, s2' % (sT0, sT0))
            a('s_and_b32 s%d, s%d, 7' % (sT0, sT0))
        elif cfg.xr == 4:
            a('s_bfe_u32 s%d, s2, 0x20005' % sT0)
        elif cfg.xr == 5:
            a('s_and_b32 s%d, s2, 3' % sT0)
        a('s_lshl_b32 s%d, s%d, 17' % (sT0, sT0))
        a('s_xor_b32 s%d, s%d, s%d' % (sBase, sBase, sT0))
    a('s_mul_i32 s%d, s3, %d' % (sLds, RING))
    if cfg.ilv:
        a('s_movk_i32 s%d, %d' % (sBig, PIECE))
    else:
        a('s_movk_i32 s%d, 4128' % sBig)
        a('v_add_u32 v%d, 4096, v%d' % (vL16b, vL16))
    a('s_mov_b32 m0, s%d' % sLds)
    a('s_waitcnt lgkmcnt(0)')
    a('s_mov_b64 s[24:25], s[6:7]')
    stamp('karg')
    issue_tile(0, compact=True)
    a('s_mov_b64 s[28:29], s[8:9]')
    a('s_mov_b64 s[30:31], s[26:27]')
    a('s_lshl_b32 s2, s%d, 2' % sP)
    a('s_add_u32 s2, s2, s%d' % sJ)
    a('s_getreg_b32 s%d, hwreg(HW_REG_XCC_ID, 0, 4)' % sXcc)
    if cfg.spin:
        a('s_mov_b32 s%d, %d' % (sSpin, cfg.spin))

    if cfg.cpf:
        a('s_getpc_b64 s[%d:%d]' % (sT0, sT0 + 1))
        a.label('L_pc')
        a('s_sub_u32 s%d, s%d, L_pc-%s' % (sT0, sT0, KMAIN))
        a('s_subb_u32 s%d, s%d, 0' % (sT0 + 1, sT0 + 1))
        a('s_lshl_b32 s%d, s%d, 2' % (sT2, sJ))
        a('s_add_u32 s%d, s%d, s3' % (sT2, sT2))
        a('s_lshl_b32 s%d, s%d, 10' % (sT2, sT2))
        a('s_min_u32 s%d, s%d, L_codeend-%s-1024' % (sT2, sT2, KMAIN))
        a('v_add_u32 v%d, s%d, v%d' % (vT0, sT2, vL16))
        a('v_mov_b32 v%d, s%d' % (vT1, sT0 + 1))
        a('v_add_co_u32 v%d, vcc, s%d, v%d' % (vT0, sT0, vT0))
        a('v_addc_co_u32 v%d, vcc, 0, v%d, vcc' % (vT1, vT1))
        a('global_load_dwordx4 %s, %s, off' % (r(vO, 4), r(vT0, 2)))
    a('s_lshl_b32 s%d, s%d, 2' % (sT0, sP))
    a('s_add_u32 s%d, s%d, s3' % (sT0, sT0))
    a('s_lshl_b32 s%d, s%d, 7' % (sT0, sT0))
    a('s_add_u32 s%d, s%d, %d' % (sT0, sT0, EOFF))
    a('s_load_dword s%d, s[20:21], s%d' % (sE, sT0))

    a('v_and_b32 v%d, 3, v%d' % (vT0, vLane))
    a('v_lshlrev_b32 v%d, 8, v%d' % (vT0, vT0))
    a('v_lshrrev_b32 v%d, 4, v%d' % (vT1, vLane))
    a('v_lshlrev_b32 v%d, 4, v%d' % (vT1, vT1))
    a('s_lshl_b32 s%d, s%d, 10' % (sT0, sP))
    a('s_lshl_b32 s%d, s%d, 8' % (sT1, sP))
    a('v_add3_u32 v%d, v%d, v%d, s%d' % (vT0, vT0, vT1, sT0))
    a('v_add_u32 v%d, s%d, v%d' % (vT1, sT1, vT1))
    a('v_lshlrev_b32 v%d, 2, v%d' % (vT2, vLane))
    a('v_add_u32 v%d, s%d, v%d' % (vT2, sT1, vT2))
    a('s_lshr_b32 s%d, s%d, 3' % (sT2, sP))
    a('s_lshl_b32 s%d, s%d, 1' % (sT2, sT2))
    a('v_mov_b32 v%d, s%d' % (vT3, sT2))
    for s in range(4):
        vm.issue('global_load_dwordx4 %s, v%d, s[4:5] offset:%d' % (r(vQ + 4 * s, 4), vT0, s * 64), 'small')
    for s in range(4):
        vm.issue('global_load_dwordx4 %s, v%d, s[10:11] offset:%d' % (r(vKt + 4 * s, 4), vT1, s * 64), 'small')
    vm.issue('global_load_dword v%d, v%d, s[12:13]' % (vVt, vT2), 'small')
    vm.issue('global_load_ushort v%d, v%d, s[14:15]' % (vMask, vT3), 'small')
    for n in range(1, NS):
        issue_tile(n)

    a('v_and_b32 v%d, 7, v%d' % (vT0, vLane))
    a('v_mul_u32_u24 v%d, %d, v%d' % (vT0, PIECE, vT0))
    a('v_bfe_u32 v%d, v%d, 3, 1' % (vT1, vLane))
    a('v_lshlrev_b32 v%d, 8, v%d' % (vT1, vT1))
    a('v_lshrrev_b32 v%d, 4, v%d' % (vT2, vLane))
    a('v_lshlrev_b32 v%d, 4, v%d' % (vT2, vT2))
    a('v_add3_u32 v%d, v%d, v%d, v%d' % (vK, vT0, vT1, vT2))
    a('v_add_u32 v%d, s%d, v%d' % (vK, sLds, vK))
    a('v_bfe_u32 v%d, v%d, 2, 3' % (vT0, vLane))
    a('v_mul_u32_u24 v%d, %d, v%d' % (vT0, PIECE, vT0))
    a('v_lshrrev_b32 v%d, 5, v%d' % (vT1, vLane))
    a('v_lshlrev_b32 v%d, 8, v%d' % (vT1, vT1))
    a('v_and_b32 v%d, 3, v%d' % (vT2, vLane))
    a('v_lshlrev_b32 v%d, 3, v%d' % (vT2, vT2))
    a('v_add3_u32 v%d, v%d, v%d, v%d' % (vV, vT0, vT1, vT2))
    a('v_add_u32 v%d, s%d, v%d' % (vV, sLds, vV))
    a('s_mov_b32 s%d, %s' % (sC, hx(f2u(SCALE_LOG2E))))
    if not cfg.cpf:
        for i in range(32):
            a('v_mov_b32 v%d, 0' % (vO + i))

    def tree_score():
        for s in range(4):
            a('v_mfma_f32_16x16x32_bf16 %s, %s, %s, %s' % (
                r(vTD, 4), r(vKt + 4 * s, 4), r(vQ + 4 * s, 4), '0' if s == 0 else r(vTD, 4)))
        a('v_lshlrev_b32 v%d, 16, v%d' % (vMask, vMask))
        a('v_sub_f32 v%d, 1.0, v%d' % (vMask, vMask))
        a('v_mul_f32 v%d, %s, v%d' % (vMask, hx(f2u(NEG_BIG_LOG2E)), vMask))
        a('s_cmp_eq_u32 s%d, 0' % sJ)
        a('s_cselect_b32 s%d, 0, 0xff800000' % sT1)
        a('v_readlane_b32 s%d, v%d, s3' % (sT2, vTD))
        a('v_mov_b32 v%d, s%d' % (vTree, sT2))
        a('v_fma_f32 v%d, v%d, s%d, v%d' % (vTree, vTree, sC, vMask))
        a('v_add_f32 v%d, s%d, v%d' % (vTree, sT1, vTree))

    def k_tile(n):
        t = n
        slot = n % NS
        if n == 0:
            vm.wait(('tile', 0), 'small')
        else:
            vm.wait(('tile', n))
        if n in (0, 3, 7):
            stamp('tile%d' % n)
        if cfg.diag >= 2:
            issue_tile(n + NS)
            return
        for w in range(2):
            for s in range(4):
                a('ds_read_b128 %s, v%d offset:%d' % (
                    r(vStage + 16 * w + 4 * s, 4), vK, slot * TILE + w * 512 + s * 64))
        a('s_waitcnt lgkmcnt(0)')
        if n == 0:
            a('s_mul_i32 s%d, s%d, 1664525' % (sTag, sE))
            a('s_add_u32 s%d, s%d, 1013904223' % (sTag, sTag))
            if cfg.local and not cfg.noX:
                a('s_cmp_eq_u32 s3, s%d' % sJ)
                a('s_cbranch_scc0 L_noxcc')
                a('s_or_b32 s%d, s%d, 0x80' % (sT1, sXcc))
                a('s_xor_b32 s%d, s%d, s%d' % (sT1, sT1, sTag))
                a('s_lshl_b32 s%d, s2, 7' % sT0)
                a('s_add_u32 s%d, s%d, %d' % (sT0, sT0, XOFF))
                a('v_mov_b32 v%d, s%d' % (vT0, sT0))
                a('v_mov_b32 v%d, s%d' % (vT2, sTag))
                a('v_mov_b32 v%d, s%d' % (vT3, sT1))
                a('s_mov_b64 exec, 1')
                a('global_store_dwordx2 v%d, %s, s[20:21] sc1' % (vT0, r(vT2, 2)))
                a('s_mov_b64 exec, -1')
                a.label('L_noxcc')
        if cfg.lock:
            a('s_barrier')
        issue_tile(n + NS)
        for s in range(4):
            for w in range(2):
                d = r(vS + 8 * t + 4 * w, 4)
                a('v_mfma_f32_16x16x32_bf16 %s, %s, %s, %s' % (
                    d, r(vStage + 16 * w + 4 * s, 4), r(vQ + 4 * s, 4), '0' if s == 0 else d))
        if n == 0:
            tree_score()
            if cfg.cpf:
                for i in range(32):
                    a('v_mov_b32 v%d, 0' % (vO + i))

    def xg_reduce(v, op):
        a('v_mov_b32 v%d, v%d' % (vT0, v))
        a('v_permlane32_swap_b32 v%d, v%d' % (vT0, v))
        a('%s v%d, v%d, v%d' % (op, v, v, vT0))
        a('v_mov_b32 v%d, v%d' % (vT0, v))
        a('v_permlane16_swap_b32 v%d, v%d' % (vT0, v))
        a('%s v%d, v%d, v%d' % (op, v, v, vT0))

    def softmax():
        n = NT * 8
        acc = [vM, vT1, vT2, vT3]
        idx = 0
        for k in range(4):
            a('v_max3_f32 v%d, v%d, v%d, v%d' % (acc[k], vS + idx, vS + idx + 1, vS + idx + 2))
            idx += 3
        k = 0
        while idx + 1 < n:
            a('v_max3_f32 v%d, v%d, v%d, v%d' % (acc[k], acc[k], vS + idx, vS + idx + 1))
            idx += 2
            k = (k + 1) % 4
        while idx < n:
            a('v_max_f32 v%d, v%d, v%d' % (acc[k], acc[k], vS + idx))
            idx += 1
        a('v_max3_f32 v%d, v%d, v%d, v%d' % (vM, vM, vT1, vT2))
        a('v_max_f32 v%d, v%d, v%d' % (vM, vM, vT3))
        xg_reduce(vM, 'v_max_f32')
        a('v_mul_f32 v%d, s%d, v%d' % (vM, sC, vM))
        a('v_mov_b32 v%d, 0' % vL)
        a('v_mov_b32 v%d, 0' % vL2)

    def probs(t):
        b = vS + 8 * t
        for i in range(8):
            a('v_fma_f32 v%d, v%d, s%d, -v%d' % (b + i, b + i, sC, vM))
        for i in range(8):
            a('v_exp_f32 v%d, v%d' % (b + i, b + i))
        for i in range(4):
            a('v_cvt_pk_bf16_f32 v%d, v%d, v%d' % (vP + 4 * t + i, b + 2 * i, b + 2 * i + 1))
        for i in range(4):
            a('v_add_f32 v%d, v%d, v%d' % (vL, vL, b + 2 * i))
            a('v_add_f32 v%d, v%d, v%d' % (vL2, vL2, b + 2 * i + 1))

    def finish_sum():
        a('v_add_f32 v%d, v%d, v%d' % (vL, vL, vL2))
        xg_reduce(vL, 'v_add_f32')

    def mid_setup():
        a('s_lshl_b32 s%d, s%d, 2' % (sT0, sP))
        a('s_add_u32 s%d, s%d, s3' % (sT0, sT0))
        a('s_lshl_b32 s%d, s%d, 7' % (sT1, sT0))
        a('s_add_u32 s%d, s%d, %d' % (sT1, sT1, XOFF))
        a('v_mov_b32 v%d, s%d' % (vFlagA, sT1))
        vm.issue('global_load_dwordx2 %s, v%d, s[20:21]' % (r(vFlag, 2), vFlagA), 'flag')
        a('s_lshl_b32 s%d, s%d, 2' % (sT0, sT0))
        a('s_add_u32 s%d, s%d, s%d' % (sT0, sT0, sJ))
        a('s_lshl_b32 s%d, s%d, 10' % (sT0, sT0))
        a('v_add_u32 v%d, s%d, v%d' % (vPub, sT0, vL16))
        a('s_lshl_b32 s%d, s2, 12' % sT0)
        for k in range(1, 4):
            a('s_add_u32 s%d, s%d, %d' % (sT1, sJ, k))
            a('s_and_b32 s%d, s%d, 3' % (sT1, sT1))
            a('s_lshl_b32 s%d, s%d, 10' % (sT1, sT1))
            a('s_add_u32 s%d, s%d, s%d' % (sT1, sT1, sT0))
            a('v_add_u32 v%d, s%d, v%d' % (vPa + k - 1, sT1, vL16))
        a('s_lshl_b32 s%d, s2, 8' % sT0)
        a('v_lshlrev_b32 v%d, 2, v%d' % (vOut, vLane))
        a('v_add_u32 v%d, s%d, v%d' % (vOut, sT0, vOut))
        a('s_mul_i32 s%d, s3, %d' % (sT0, PSTR))
        a('s_add_u32 s%d, s%d, %d' % (sT0, sT0, RED))
        a('v_and_b32 v%d, 3, v%d' % (vT0, vLane))
        a('v_mul_u32_u24 v%d, 528, v%d' % (vT1, vT0))
        a('v_lshrrev_b32 v%d, 4, v%d' % (vT2, vLane))
        a('v_lshlrev_b32 v%d, 4, v%d' % (vT3, vT2))
        a('v_add3_u32 v%d, v%d, v%d, s%d' % (vEp1, vT1, vT3, sT0))
        a('v_lshl_add_u32 v%d, v%d, 2, v%d' % (vT2, vT2, vT0))
        a('v_lshlrev_b32 v%d, 3, v%d' % (vMLa, vT2))
        a('v_add_u32 v%d, s%d, v%d' % (vMLa, sT0, vMLa))
        a('s_mul_i32 s%d, s3, 528' % sT0)
        a('s_add_u32 s%d, s%d, %d' % (sT0, sT0, RED))
        a('v_lshlrev_b32 v%d, 3, v%d' % (vEp2, vLane))
        a('v_add_u32 v%d, s%d, v%d' % (vEp2, sT0, vEp2))
        a('s_lshl_b32 s%d, s3, 3' % sT1)
        a('s_add_u32 s%d, s%d, %d' % (sT1, sT1, RED + MLOFF))
        a('v_mov_b32 v%d, s%d' % (vEp3, sT1))

    def write_ml():
        a('v_mov_b32 v%d, v%d' % (vG, vM))
        a('v_mov_b32 v%d, v%d' % (vG + 1, vL))
        a('s_mov_b32 exec_lo, 0x000f000f')
        a('s_mov_b32 exec_hi, 0x000f000f')
        a('ds_write_b64 v%d, %s offset:%d' % (vMLa, r(vG, 2), MLOFF))
        a('s_mov_b64 exec, -1')

    x = vS
    mreg = [x + 2 * w for w in range(NW)]
    lreg = [x + 1 + 2 * w for w in range(NW)]

    def weights():
        for w in range(NW):
            a('ds_read_b64 %s, v%d offset:%d' % (r(x + 2 * w, 2), vEp3, w * PSTR))
        a('v_lshlrev_b32 v%d, 16, v%d' % (vG, vVt))
        a('v_and_b32 v%d, 0xffff0000, v%d' % (vG + 1, vVt))
        a('s_waitcnt lgkmcnt(0)')
        a('v_max3_f32 v%d, v%d, v%d, v%d' % (vG + 2, vTree, mreg[0], mreg[1]))
        a('v_max3_f32 v%d, v%d, v%d, v%d' % (vG + 2, vG + 2, mreg[2], mreg[3]))
        for w in range(NW):
            a('v_sub_f32 v%d, v%d, v%d' % (vW + w, mreg[w], vG + 2))
        a('v_sub_f32 v%d, v%d, v%d' % (vTree, vTree, vG + 2))
        for w in range(NW):
            a('v_exp_f32 v%d, v%d' % (vW + w, vW + w))
        a('v_exp_f32 v%d, v%d' % (vTree, vTree))
        a('v_mov_b32 v%d, v%d' % (vG + 3, vTree))
        for w in range(NW):
            a('v_fmac_f32 v%d, v%d, v%d' % (vG + 3, vW + w, lreg[w]))
        if cfg.epoch:
            a('v_rcp_f32 v%d, v%d' % (vT1, vG + 3))
            a('v_log_f32 v%d, v%d' % (vT2, vG + 3))
            a('v_mov_b32 v%d, s%d' % (vG + 3, sTag))
            a('v_mul_f32 v%d, v%d, v%d' % (vTree, vTree, vT1))
            for w in range(NW):
                a('v_mul_f32 v%d, v%d, v%d' % (vW + w, vW + w, vT1))
            a('v_add_f32 v%d, v%d, v%d' % (vG + 2, vG + 2, vT2))
            a('v_mul_f32 v%d, v%d, v%d' % (vG, vG, vTree))
            a('v_mul_f32 v%d, v%d, v%d' % (vG + 1, vG + 1, vTree))

    flag_read = []
    sched = {0: [1, 2], 1: [3, 4], 2: [5, 6], 3: [7]} if cfg.split else {}

    def after_step(t):
        for u in sched.get(t, []):
            probs(u)
        if cfg.split and t == 0:
            mid_setup()
        if cfg.split and t == 3:
            finish_sum()
            write_ml()

    def v_tile(n):
        t = n - NT
        slot = n % NS
        last = (n == 2 * NT - 1)
        if last and cfg.early and not cfg.diag:
            a('s_waitcnt lgkmcnt(0)')
            a('s_barrier')
            weights()
        vm.wait(('tile', n))
        if not flag_read and 'flag' in vm.ops and vm.ops.index('flag') < vm.ops.index(('tile', n)):
            a('v_readfirstlane_b32 s%d, v%d' % (sT0, vFlag))
            a('v_readfirstlane_b32 s%d, v%d' % (sFlag, vFlag + 1))
            a('s_xor_b32 s%d, s%d, s%d' % (sFlag, sFlag, sTag))
            a('s_cmp_eq_u32 s%d, s%d' % (sT0, sTag))
            a('s_cselect_b32 s%d, s%d, 0' % (sFlag, sFlag))
            flag_read.append(n)
        if n in (8, 11, 14, 15):
            stamp('tile%d' % n)
        if cfg.diag >= 2:
            if n + NS < 2 * NT:
                issue_tile(n + NS)
            return
        for b in range(8):
            for w in range(2):
                a('ds_read_b64_tr_b16 %s, v%d offset:%d' % (
                    r(vStage + 4 * b + 2 * w, 2), vV, slot * TILE + w * 512 + b * 32))
        if n + NS < 2 * NT:
            a('s_waitcnt lgkmcnt(0)')
            if cfg.lock:
                a('s_barrier')
            issue_tile(n + NS)
            for b in range(8):
                a('v_mfma_f32_16x16x32_bf16 %s, %s, %s, %s' % (
                    r(vO + 4 * b, 4), r(vStage + 4 * b, 4), r(vP + 4 * t, 4), r(vO + 4 * b, 4)))
            after_step(t)
        else:
            for b in range(8):
                a('s_waitcnt lgkmcnt(%d)' % (14 - 2 * b))
                a('v_mfma_f32_16x16x32_bf16 %s, %s, %s, %s' % (
                    r(vO + 4 * b, 4), r(vStage + 4 * b, 4), r(vP + 4 * t, 4), r(vO + 4 * b, 4)))

    for n in range(NT):
        k_tile(n)
    if cfg.stamp: stamp('presm')
    if cfg.diag < 2:
        softmax()
    if cfg.diag >= 2:
        mid_setup()
    elif cfg.split:
        assert NS >= 4
        probs(0)
    else:
        for t in range(NT):
            probs(t)
        finish_sum()
        mid_setup()
        write_ml()
    stamp('softmax')
    for n in range(NT, 2 * NT):
        v_tile(n)
    assert flag_read
    stamp('pv_done')
    if cfg.diag:
        a('s_endpgm')

    a('s_mov_b32 exec_lo, 0x000f000f')
    a('s_mov_b32 exec_hi, 0x000f000f')
    for b in range(8):
        a('ds_write_b128 v%d, %s offset:%d' % (vEp1, r(vO + 4 * b, 4), b * 64))
    a('s_mov_b64 exec, -1')
    a('s_waitcnt lgkmcnt(0)')
    stamp('ldsw')
    a('s_barrier')
    stamp('bar')
    y = vStage
    for w in range(NW):
        a('ds_read_b64 %s, v%d offset:%d' % (r(y + 2 * w, 2), vEp2, w * PSTR))
    if not cfg.early:
        weights()
    for w in range(NW):
        if cfg.early:
            a('s_waitcnt lgkmcnt(%d)' % (NW - 1 - w))
        a('v_fmac_f32 v%d, v%d, v%d' % (vG, vW + w, y + 2 * w))
        a('v_fmac_f32 v%d, v%d, v%d' % (vG + 1, vW + w, y + 2 * w + 1))
    stamp('red')
    a('s_cmp_eq_u32 s3, s%d' % sJ)
    a('s_cbranch_scc1 L_consumer')
    if cfg.local:
        if cfg.epoch:
            a('s_xor_b32 s%d, s%d, 0x80' % (sFlag, sFlag))
        else:
            a('s_and_b32 s%d, s%d, 15' % (sFlag, sFlag))
        a('s_cmp_eq_u32 s%d, s%d' % (sFlag, sXcc))
        a('s_cbranch_scc0 L_far')
        if not cfg.nopub:
            a('global_store_dwordx4 v%d, %s, s[20:21]' % (vPub, r(vG, 4)))
        stamp('published')
        n_pub = len(stamps)
        dump_stamps()
        a('s_endpgm')
        a.label('L_far')
    a('global_store_dwordx4 v%d, %s, s[20:21] sc1' % (vPub, r(vG, 4)))
    if not cfg.local:
        stamp('published')
    dump_stamps()
    a('s_endpgm')
    a.label('L_consumer')
    z = x + 16
    a.label('L_poll')
    if cfg.nopoll:
        a('s_branch L_polled2')
    for k in range(3):
        a('global_load_dwordx4 %s, v%d, s[20:21] sc1' % (r(z + 4 * k, 4), vPa + k))
    a('s_waitcnt vmcnt(0)')
    if cfg.epoch:
        for k in range(3):
            a('v_readfirstlane_b32 s%d, v%d' % (sT0 + k, z + 4 * k + 2))
        a('v_xor_b32 v%d, s%d, v%d' % (vT1, sTag, z + 3))
        a('v_xor_b32 v%d, s%d, v%d' % (vT2, sTag, z + 7))
        a('v_xor_b32 v%d, s%d, v%d' % (vT3, sTag, z + 11))
        a('v_or3_b32 v%d, v%d, v%d, v%d' % (vT1, vT1, vT2, vT3))
        a('v_xor_b32 v%d, s%d, v%d' % (vT0, sT0, z + 2))
        a('v_xor_b32 v%d, s%d, v%d' % (vT2, sT0 + 1, z + 6))
        a('v_xor_b32 v%d, s%d, v%d' % (vT3, sT0 + 2, z + 10))
        a('v_or3_b32 v%d, v%d, v%d, v%d' % (vT0, vT0, vT2, vT3))
        a('v_or_b32 v%d, v%d, v%d' % (vT1, vT1, vT0))
        a('v_cmp_ne_u32 vcc, 0, v%d' % vT1)
    else:
        a('v_max3_u32 v%d, v%d, v%d, v%d' % (vT1, z, z + 1, z + 2))
        a('v_max3_u32 v%d, v%d, v%d, v%d' % (vT2, z + 3, z + 4, z + 5))
        a('v_max3_u32 v%d, v%d, v%d, v%d' % (vT3, z + 6, z + 7, z + 8))
        a('v_max3_u32 v%d, v%d, v%d, v%d' % (vT1, vT1, z + 9, z + 10))
        a('v_max3_u32 v%d, v%d, v%d, v%d' % (vT2, vT2, vT3, z + 11))
        a('v_max_u32 v%d, v%d, v%d' % (vT1, vT1, vT2))
        a('v_cmp_eq_u32 vcc, -1, v%d' % vT1)
    spin_guard('L_end')
    a.nop(5)
    if cfg.psleep:
        a('s_cbranch_vccz L_polled')
        a('s_sleep %d' % cfg.psleep)
        a('s_branch L_poll')
        a.label('L_polled')
    else:
        a('s_cbranch_vccnz L_poll')
    if cfg.nopoll:
        a.label('L_polled2')
    stamp('polled')
    ms = [vG + 2, z + 2, z + 6, z + 10]
    o0 = [vG, z, z + 4, z + 8]
    ls = [vG + 3, z + 3, z + 7, z + 11]
    a('v_max3_f32 v%d, v%d, v%d, v%d' % (vM, ms[0], ms[1], ms[2]))
    a('v_max_f32 v%d, v%d, v%d' % (vM, vM, ms[3]))
    for k in range(4):
        a('v_sub_f32 v%d, v%d, v%d' % (ms[k], ms[k], vM))
    for k in range(4):
        a('v_exp_f32 v%d, v%d' % (ms[k], ms[k]))
    if cfg.epoch:
        a('v_add_f32 v%d, v%d, v%d' % (vT3, ms[0], ms[1]))
        a('v_add_f32 v%d, v%d, v%d' % (vT0, ms[2], ms[3]))
        a('v_mul_f32 v%d, v%d, v%d' % (vT1, ms[0], o0[0]))
        a('v_mul_f32 v%d, v%d, v%d' % (vT2, ms[0], o0[0] + 1))
        a('v_add_f32 v%d, v%d, v%d' % (vT3, vT3, vT0))
    else:
        a('v_mul_f32 v%d, v%d, v%d' % (vT3, ms[0], ls[0]))
        a('v_mul_f32 v%d, v%d, v%d' % (vT1, ms[0], o0[0]))
        a('v_mul_f32 v%d, v%d, v%d' % (vT2, ms[0], o0[0] + 1))
        for k in range(1, 4):
            a('v_fmac_f32 v%d, v%d, v%d' % (vT3, ms[k], ls[k]))
    a('v_rcp_f32 v%d, v%d' % (vT3, vT3))
    for k in range(1, 4):
        a('v_fmac_f32 v%d, v%d, v%d' % (vT1, ms[k], o0[k]))
        a('v_fmac_f32 v%d, v%d, v%d' % (vT2, ms[k], o0[k] + 1))
    a('v_mul_f32 v%d, v%d, v%d' % (vT1, vT1, vT3))
    a('v_mul_f32 v%d, v%d, v%d' % (vT2, vT2, vT3))
    a('v_cvt_pk_bf16_f32 v%d, v%d, v%d' % (vT1, vT1, vT2))
    a('global_store_dword v%d, v%d, s[16:17]' % (vOut, vT1))
    if cfg.epoch and not cfg.noEst:
        a('s_lshl_b32 s%d, s2, 7' % sT0)
        a('s_add_u32 s%d, s%d, %d' % (sT0, sT0, EOFF))
        a('v_mov_b32 v%d, s%d' % (vT0, sT0))
        a('v_mov_b32 v%d, s%d' % (vT2, sTag))
        a('s_mov_b64 exec, 1')
        a('global_store_dword v%d, v%d, s[20:21]' % (vT0, vT2))
    stamp('out')
    dump_stamps()
    a.label('L_end')
    a('s_endpgm')
    if cfg.cpf:
        a.label('L_codeend')
    return a, LDS, nvgpr


KD = """.section .rodata,"a"
.p2align 6
.amdhsa_kernel %s
  .amdhsa_next_free_vgpr %d
  .amdhsa_next_free_sgpr %d
  .amdhsa_accum_offset %d
  .amdhsa_group_segment_fixed_size 0
  .amdhsa_kernarg_size 72
  .amdhsa_user_sgpr_count 2
  .amdhsa_user_sgpr_kernarg_segment_ptr 1
  .amdhsa_system_sgpr_workgroup_id_x 1
.end_amdhsa_kernel
"""


def kernel_text(name, body):
    return ('.text\n.globl %s\n.p2align 8\n.type %s,@function\n%s:\n' % (name, name, name)) + body


def generate(cfg):
    a, lds, nv = gen_main(cfg)
    out = HEADER
    out += '; @launch grid=(256,1,1) block=(%d,1,1) lds=%d\n' % (256, lds)
    out += '.amdgcn_target "amdgcn-amd-amdhsa--gfx950"\n'
    out += kernel_text(KMAIN, a.finalize())
    nva = (nv + 7) // 8 * 8
    out += KD % (KMAIN, nva, 100, (nva + 3) // 4 * 4)
    return out


if __name__ == '__main__':
    ap = argparse.ArgumentParser()
    ap.add_argument('-o', default='cdna_kernels/' + NAME + '.s')
    ap.add_argument('opts', nargs='*', help='key=value')
    args = ap.parse_args()
    kw = {}
    for o in args.opts:
        k, v = o.split('=', 1)
        try:
            v = int(v)
        except ValueError:
            pass
        kw[k] = v
    cfg = Cfg(**kw)
    txt = generate(cfg)
    open(args.o, 'w').write(txt)
    print('wrote', args.o, len(txt), 'bytes')
    if cfg.stamp:
        open(args.o[:-2] + '.names', 'w').write('\n'.join(cfg.stamp_names) + '\n')
```

```python
import argparse
import math
import re
import struct
import sys
import os

sys.path.insert(0, os.path.dirname(os.path.abspath(__file__)))
from asmlib import Asm

NAME = 'standalone__tree_speculative_verify_tree_attention_over_candidate_token_tree__decode'
KMAIN = NAME + '_kernel'

HEADER = """; Kernarg layout for this problem (72 bytes, ptrs only, base s[0:1]):
"""


def f2u(x):
    return struct.unpack('<I', struct.pack('<f', x))[0]


def hx(x):
    return '0x%08x' % (x & 0xffffffff)


SCALE_LOG2E = (128.0 ** -0.5) * math.log2(math.e)
NEG_BIG_LOG2E = -1.0e9 * math.log2(math.e)

PIECE = 1056
TILE = 8 * PIECE
NW = 4
NT = 8


class Cfg:
    def __init__(self, **kw):
        self.ns = 4
        self.pol = 'nt'
        self.low = 'w0j0w1j1'
        self.high = 'n0n2n1'
        self.stamp = 0
        self.local = 1
        self.early = 1
        self.psleep = 0
        self.pfin = 1
        self.pollpol = 'sc1'
        self.nopub = 0
        self.nopoll = 0
        self.noEst = 0
        self.noE = 0
        self.noX = 0
        self.epoch = 1
        self.plainld = 0
        self.nclr = 4
        self.clrpol = 'sc1'
        self.flagst = 1
        self.noflagld = 0
        self.helper = 0
        self.lock = 0
        self.diag = 0
        self.ilv = 1
        self.ihigh = 'n0n1n2j0j1'
        self.split = 1
        self.cpf = 0
        self.xr = 0
        self.spin = 0
        self.__dict__.update(kw)


class VM:
    def __init__(self, a):
        self.a = a
        self.ops = []

    def issue(self, text, tag):
        self.a(text)
        self.ops.append(tag)

    def count(self, *tags):
        last = max(i for i, t in enumerate(self.ops) if t in tags)
        n = len(self.ops) - 1 - last
        assert n <= 63, n
        return n

    def wait(self, *tags):
        self.a('s_waitcnt vmcnt(%d)' % self.count(*tags))


def gen_main(cfg):
    a = Asm()
    vm = VM(a)
    NS = cfg.ns
    RING = NS * TILE
    RED = NW * RING
    PSTR = 2240
    MLOFF = 2112
    LDS = RED + NW * PSTR
    assert LDS <= 163840, LDS

    sP, sJ = 36, 37
    sBase, sOff, sLds, sC = 32, 33, 34, 35
    sT0, sT1, sT2, sT3 = 38, 39, 40, 41
    sBig, sXcc, sFlag, sSpin = 42, 43, 22, 23
    s4k = 97
    sE, sTag = 98, 99
    EOFF = 0x200000
    XOFF = 0x210000
    vL16w = 3
    vLane, vL16, vL16b, vK, vV = 1, 2, 3, 4, 5
    vT0, vT1, vT2, vT3 = 6, 7, 8, 9
    vTree, vVt, vMask = 10, 11, 12
    vM, vL = 13, 14
    vFlagA = 0
    vL2 = 12
    vQ = 16
    vStage = 32
    vS = 64
    vP = vS + NT * 8
    vO = vP + NT * 4
    vKt = vO + 32
    vTD = vKt + 16
    nvgpr = vTD + 4
    vFlag = vTD + 2
    vMLa = vTD
    vEp1, vEp2, vEp3, vPub, vOut = vKt, vKt + 1, vKt + 2, vKt + 3, vKt + 4
    vPa = vKt + 5
    vG = vKt + 8
    vW = vKt + 12
    assert vG % 2 == 0

    def r(base, n):
        return 'v[%d:%d]' % (base, base + n - 1)

    stamps = []

    def stamp(name):
        if not cfg.stamp:
            return
        i = len(stamps)
        assert 44 + 2 * i + 1 < 96
        stamps.append(name)
        a('s_memrealtime s[%d:%d]' % (44 + 2 * i, 45 + 2 * i))
        a('s_waitcnt lgkmcnt(0)')

    def dump_stamps():
        if not cfg.stamp:
            return
        v = vS
        a('v_mov_b32 v%d, 0' % v)
        for i in range(len(stamps)):
            a('v_writelane_b32 v%d, s%d, %d' % (v, 44 + 2 * i, i))
        a('v_writelane_b32 v%d, s%d, 62' % (v, sXcc))
        a('s_lshl_b32 s%d, s2, 3' % sT3)
        a('s_add_u32 s%d, s%d, s3' % (sT3, sT3))
        a('s_lshl_b32 s%d, s%d, 8' % (sT3, sT3))
        a('s_add_u32 s%d, s%d, 0x8000000' % (sT3, sT3))
        a('v_lshlrev_b32 v%d, 2, v%d' % (v + 1, vLane))
        a('v_add_u32 v%d, s%d, v%d' % (v + 1, sT3, v + 1))
        a('global_store_dword v%d, v%d, s[20:21]' % (v + 1, v))
        cfg.stamp_names = list(stamps)

    def spin_guard(exit_label):
        if cfg.spin:
            a('s_sub_u32 s%d, s%d, 1' % (sSpin, sSpin))
            a('s_cbranch_scc1 ' + exit_label)

    if cfg.ilv:
        hi = re.findall(r'[nj]\d', cfg.ihigh)
        assert sorted(hi) == ['j0', 'j1', 'n0', 'n1', 'n2']
        npos = {int(nm[1]): 15 + pos for pos, nm in enumerate(hi) if nm[0] == 'n'}
        jpos = {int(nm[1]): 15 + pos for pos, nm in enumerate(hi) if nm[0] == 'j'}
    else:
        hi = re.findall(r'n\d', cfg.high)
        assert sorted(hi) == ['n0', 'n1', 'n2']
        npos = {int(nm[1]): 17 + pos for pos, nm in enumerate(hi)}

    def tile_delta(t):
        return sum(((t >> k) & 1) << npos[k] for k in range(3))

    def issue_tile(n, compact=False):
        isk = n < NT
        slot = n % NS
        srd = 's[24:27]' if isk else 's[28:31]'
        d = tile_delta(n % NT)
        if cfg.ilv:
            for i in range(8):
                if compact:
                    if i > 0:
                        a('s_add_u32 m0, m0, s%d' % sBig)
                else:
                    a('s_add_u32 m0, s%d, %d' % (sLds, slot * TILE + i * PIECE))
                if i == 0:
                    if d:
                        a('s_xor_b32 s%d, s%d, %d' % (sOff, sBase, d))
                    else:
                        a('s_mov_b32 s%d, s%d' % (sOff, sBase))
                else:
                    a('s_add_u32 s%d, s%d, s%d' % (sOff, sOff, s4k))
                txt = 'buffer_load_dwordx4 v%d, %s, s%d offen' % (vL16w, srd, sOff)
                if cfg.pol:
                    txt += ' ' + cfg.pol.replace('+', ' ')
                txt += ' lds'
                vm.issue(txt, ('tile', n))
            return
        if d:
            a('s_xor_b32 s%d, s%d, %d' % (sOff, sBase, d))
            so = sOff
        else:
            so = sBase
        for i in range(8):
            if compact:
                if i > 0:
                    if i == 4:
                        a('s_add_u32 m0, m0, s%d' % sBig)
                    else:
                        a('s_add_u32 m0, m0, 32')
            else:
                m0 = slot * TILE + i * 32 + (4096 if i >= 4 else 0)
                a('s_add_u32 m0, s%d, %d' % (sLds, m0))
            voff = vL16 if i < 4 else vL16b
            off = (i & 3) * 1024
            txt = 'buffer_load_dwordx4 v%d, %s, s%d offen' % (voff, srd, so)
            if off:
                txt += ' offset:%d' % off
            if cfg.pol:
                txt += ' ' + cfg.pol.replace('+', ' ')
            txt += ' lds'
            vm.issue(txt, ('tile', n))

    if cfg.stamp:
        a('s_cmp_ge_u32 s2, 256')
        a('s_cbranch_scc1 L_end')
        stamp('entry')
    a('s_load_dwordx16 s[4:19], s[0:1], 0')
    a('s_load_dwordx2 s[20:21], s[0:1], 64')
    if not cfg.stamp:
        a('s_cmp_ge_u32 s2, 256')
        a('s_cbranch_scc1 L_end')
    a('v_readfirstlane_b32 s3, v0')
    a('v_and_b32 v%d, 63, v0' % vLane)
    a('v_lshlrev_b32 v%d, 4, v%d' % (vL16, vLane))
    a('s_mov_b32 s26, 0x4000000')
    a('s_mov_b32 s27, 0x20000')
    a('s_lshr_b32 s3, s3, 6')
    a('s_and_b32 s%d, s2, 7' % sT0)
    a('s_bfe_u32 s%d, s2, 0x20003' % sJ)
    a('s_lshr_b32 s%d, s2, 5' % sT1)
    a('s_lshl_b32 s%d, s%d, 3' % (sP, sT0))
    a('s_add_u32 s%d, s%d, s%d' % (sP, sP, sT1))
    if cfg.ilv:
        if jpos[1] == jpos[0] + 1:
            a('s_lshl_b32 s%d, s%d, %d' % (sT0, sJ, jpos[0]))
        else:
            a('s_and_b32 s%d, s%d, 1' % (sT0, sJ))
            a('s_lshl_b32 s%d, s%d, %d' % (sT0, sT0, jpos[0]))
            a('s_lshr_b32 s%d, s%d, 1' % (sT1, sJ))
            a('s_lshl_b32 s%d, s%d, %d' % (sT1, sT1, jpos[1]))
            a('s_or_b32 s%d, s%d, s%d' % (sT0, sT0, sT1))
        a('s_lshl_b32 s%d, s3, 10' % sT1)
        a('v_add_u32 v%d, s%d, v%d' % (vL16w, sT1, vL16))
        a('s_movk_i32 s%d, 0x1000' % s4k)
    elif cfg.low == 'w0w1j0j1':
        a('s_lshl_b32 s%d, s%d, 2' % (sT0, sJ))
        a('s_add_u32 s%d, s%d, s3' % (sT0, sT0))
        a('s_lshl_b32 s%d, s%d, 13' % (sT0, sT0))
    elif cfg.low == 'w0j0w1j1':
        a('s_lshl_b32 s%d, s%d, 2' % (sT0, sJ))
        a('s_or_b32 s%d, s%d, s3' % (sT0, sT0))
        a('s_and_b32 s%d, s%d, 6' % (sT1, sT0))
        a('s_lshr_b32 s%d, s%d, 1' % (sT2, sT1))
        a('s_xor_b32 s%d, s%d, s%d' % (sT2, sT2, sT1))
        a('s_and_b32 s%d, s%d, 2' % (sT2, sT2))
        a('s_mul_i32 s%d, s%d, 3' % (sT2, sT2))
        a('s_xor_b32 s%d, s%d, s%d' % (sT0, sT0, sT2))
        a('s_lshl_b32 s%d, s%d, 13' % (sT0, sT0))
    else:
        raise ValueError(cfg.low)
    a('s_lshl_b32 s%d, s%d, 20' % (sBase, sP))
    a('s_add_u32 s%d, s%d, s%d' % (sBase, sBase, sT0))
    if cfg.xr:
        if cfg.xr == 1:
            a('s_lshr_b32 s%d, s2, 5' % sT0)
        elif cfg.xr == 2:
            a('s_and_b32 s%d, s2, 7' % sT0)
        elif cfg.xr == 3:
            a('s_lshr_b32 s%d, s2, 5' % sT0)
            a('s_xor_b32 s%d, s%d, s2' % (sT0, sT0))
            a('s_and_b32 s%d, s%d, 7' % (sT0, sT0))
        elif cfg.xr == 4:
            a('s_bfe_u32 s%d, s2, 0x20005' % sT0)
        elif cfg.xr == 5:
            a('s_and_b32 s%d, s2, 3' % sT0)
        a('s_lshl_b32 s%d, s%d, 17' % (sT0, sT0))
        a('s_xor_b32 s%d, s%d, s%d' % (sBase, sBase, sT0))
    a('s_mul_i32 s%d, s3, %d' % (sLds, RING))
    if cfg.ilv:
        a('s_movk_i32 s%d, %d' % (sBig, PIECE))
    else:
        a('s_movk_i32 s%d, 4128' % sBig)
        a('v_add_u32 v%d, 4096, v%d' % (vL16b, vL16))
    a('s_mov_b32 m0, s%d' % sLds)
    a('s_waitcnt lgkmcnt(0)')
    a('s_mov_b64 s[24:25], s[6:7]')
    stamp('karg')
    issue_tile(0, compact=True)
    a('s_mov_b64 s[28:29], s[8:9]')
    a('s_mov_b64 s[30:31], s[26:27]')
    a('s_lshl_b32 s2, s%d, 2' % sP)
    a('s_add_u32 s2, s2, s%d' % sJ)
    a('s_getreg_b32 s%d, hwreg(HW_REG_XCC_ID, 0, 4)' % sXcc)
    if cfg.spin:
        a('s_mov_b32 s%d, %d' % (sSpin, cfg.spin))

    if cfg.cpf:
        a('s_getpc_b64 s[%d:%d]' % (sT0, sT0 + 1))
        a.label('L_pc')
        a('s_sub_u32 s%d, s%d, L_pc-%s' % (sT0, sT0, KMAIN))
        a('s_subb_u32 s%d, s%d, 0' % (sT0 + 1, sT0 + 1))
        a('s_lshl_b32 s%d, s%d, 2' % (sT2, sJ))
        a('s_add_u32 s%d, s%d, s3' % (sT2, sT2))
        a('s_lshl_b32 s%d, s%d, 10' % (sT2, sT2))
        a('s_min_u32 s%d, s%d, L_codeend-%s-1024' % (sT2, sT2, KMAIN))
        a('v_add_u32 v%d, s%d, v%d' % (vT0, sT2, vL16))
        a('v_mov_b32 v%d, s%d' % (vT1, sT0 + 1))
        a('v_add_co_u32 v%d, vcc, s%d, v%d' % (vT0, sT0, vT0))
        a('v_addc_co_u32 v%d, vcc, 0, v%d, vcc' % (vT1, vT1))
        a('global_load_dwordx4 %s, %s, off' % (r(vO, 4), r(vT0, 2)))
    a('s_lshl_b32 s%d, s%d, 7' % (sT0, sP))
    a('s_add_u32 s%d, s%d, %d' % (sT0, sT0, EOFF))
    a('s_load_dword s%d, s[20:21], s%d' % (sE, sT0))

    a('v_and_b32 v%d, 3, v%d' % (vT0, vLane))
    a('v_lshlrev_b32 v%d, 8, v%d' % (vT0, vT0))
    a('v_lshrrev_b32 v%d, 4, v%d' % (vT1, vLane))
    a('v_lshlrev_b32 v%d, 4, v%d' % (vT1, vT1))
    a('s_lshl_b32 s%d, s%d, 10' % (sT0, sP))
    a('s_lshl_b32 s%d, s%d, 8' % (sT1, sP))
    a('v_add3_u32 v%d, v%d, v%d, s%d' % (vT0, vT0, vT1, sT0))
    a('v_add_u32 v%d, s%d, v%d' % (vT1, sT1, vT1))
    a('v_lshlrev_b32 v%d, 2, v%d' % (vT2, vLane))
    a('v_add_u32 v%d, s%d, v%d' % (vT2, sT1, vT2))
    a('s_lshr_b32 s%d, s%d, 3' % (sT2, sP))
    a('s_lshl_b32 s%d, s%d, 1' % (sT2, sT2))
    a('v_mov_b32 v%d, s%d' % (vT3, sT2))
    for s in range(4):
        vm.issue('global_load_dwordx4 %s, v%d, s[4:5] offset:%d' % (r(vQ + 4 * s, 4), vT0, s * 64), 'small')
    for s in range(4):
        vm.issue('global_load_dwordx4 %s, v%d, s[10:11] offset:%d' % (r(vKt + 4 * s, 4), vT1, s * 64), 'small')
    vm.issue('global_load_dword v%d, v%d, s[12:13]' % (vVt, vT2), 'small')
    vm.issue('global_load_ushort v%d, v%d, s[14:15]' % (vMask, vT3), 'small')
    for n in range(1, NS):
        issue_tile(n)

    a('v_and_b32 v%d, 7, v%d' % (vT0, vLane))
    a('v_mul_u32_u24 v%d, %d, v%d' % (vT0, PIECE, vT0))
    a('v_bfe_u32 v%d, v%d, 3, 1' % (vT1, vLane))
    a('v_lshlrev_b32 v%d, 8, v%d' % (vT1, vT1))
    a('v_lshrrev_b32 v%d, 4, v%d' % (vT2, vLane))
    a('v_lshlrev_b32 v%d, 4, v%d' % (vT2, vT2))
    a('v_add3_u32 v%d, v%d, v%d, v%d' % (vK, vT0, vT1, vT2))
    a('v_add_u32 v%d, s%d, v%d' % (vK, sLds, vK))
    a('v_bfe_u32 v%d, v%d, 2, 3' % (vT0, vLane))
    a('v_mul_u32_u24 v%d, %d, v%d' % (vT0, PIECE, vT0))
    a('v_lshrrev_b32 v%d, 5, v%d' % (vT1, vLane))
    a('v_lshlrev_b32 v%d, 8, v%d' % (vT1, vT1))
    a('v_and_b32 v%d, 3, v%d' % (vT2, vLane))
    a('v_lshlrev_b32 v%d, 3, v%d' % (vT2, vT2))
    a('v_add3_u32 v%d, v%d, v%d, v%d' % (vV, vT0, vT1, vT2))
    a('v_add_u32 v%d, s%d, v%d' % (vV, sLds, vV))
    a('s_mov_b32 s%d, %s' % (sC, hx(f2u(SCALE_LOG2E))))
    if not cfg.cpf:
        for i in range(32):
            a('v_mov_b32 v%d, 0' % (vO + i))

    def tree_score():
        for s in range(4):
            a('v_mfma_f32_16x16x32_bf16 %s, %s, %s, %s' % (
                r(vTD, 4), r(vKt + 4 * s, 4), r(vQ + 4 * s, 4), '0' if s == 0 else r(vTD, 4)))
        a('v_lshlrev_b32 v%d, 16, v%d' % (vMask, vMask))
        a('v_sub_f32 v%d, 1.0, v%d' % (vMask, vMask))
        a('v_mul_f32 v%d, %s, v%d' % (vMask, hx(f2u(NEG_BIG_LOG2E)), vMask))
        a('s_cmp_eq_u32 s%d, 0' % sJ)
        a('s_cselect_b32 s%d, 0, 0xff800000' % sT1)
        a('v_readlane_b32 s%d, v%d, s3' % (sT2, vTD))
        a('v_mov_b32 v%d, s%d' % (vTree, sT2))
        a('v_fma_f32 v%d, v%d, s%d, v%d' % (vTree, vTree, sC, vMask))
        a('v_add_f32 v%d, s%d, v%d' % (vTree, sT1, vTree))

    def k_tile(n):
        t = n
        slot = n % NS
        if n == 0:
            vm.wait(('tile', 0), 'small')
        else:
            vm.wait(('tile', n))
        if n in (0, 3, 7):
            stamp('tile%d' % n)
        if cfg.diag >= 2:
            issue_tile(n + NS)
            return
        for w in range(2):
            for s in range(4):
                a('ds_read_b128 %s, v%d offset:%d' % (
                    r(vStage + 16 * w + 4 * s, 4), vK, slot * TILE + w * 512 + s * 64))
        a('s_waitcnt lgkmcnt(0)')
        if n == 0:
            a('s_mul_i32 s%d, s%d, 1664525' % (sTag, sE))
            a('s_add_u32 s%d, s%d, 1013904223' % (sTag, sTag))
            if cfg.local and not cfg.noX:
                a('s_cmp_eq_u32 s3, s%d' % sJ)
                a('s_cbranch_scc0 L_noxcc')
                a('s_or_b32 s%d, s%d, 0x80' % (sT1, sXcc))
                a('s_xor_b32 s%d, s%d, s%d' % (sT1, sT1, sTag))
                a('s_lshl_b32 s%d, s%d, 7' % (sT0, sP))
                a('s_lshl_b32 s%d, s%d, 3' % (sT2, sJ))
                a('s_add_u32 s%d, s%d, s%d' % (sT0, sT0, sT2))
                a('s_add_u32 s%d, s%d, %d' % (sT0, sT0, XOFF))
                a('v_mov_b32 v%d, s%d' % (vT0, sT0))
                a('v_mov_b32 v%d, s%d' % (vT2, sTag))
                a('v_mov_b32 v%d, s%d' % (vT3, sT1))
                a('s_mov_b64 exec, 1')
                a('global_store_dwordx2 v%d, %s, s[20:21] sc1' % (vT0, r(vT2, 2)))
                a('s_mov_b64 exec, -1')
                a.label('L_noxcc')
        if cfg.lock:
            a('s_barrier')
        issue_tile(n + NS)
        for s in range(4):
            for w in range(2):
                d = r(vS + 8 * t + 4 * w, 4)
                a('v_mfma_f32_16x16x32_bf16 %s, %s, %s, %s' % (
                    d, r(vStage + 16 * w + 4 * s, 4), r(vQ + 4 * s, 4), '0' if s == 0 else d))
        if n == 0:
            tree_score()
            if cfg.cpf:
                for i in range(32):
                    a('v_mov_b32 v%d, 0' % (vO + i))

    def xg_reduce(v, op):
        a('v_mov_b32 v%d, v%d' % (vT0, v))
        a('v_permlane32_swap_b32 v%d, v%d' % (vT0, v))
        a('%s v%d, v%d, v%d' % (op, v, v, vT0))
        a('v_mov_b32 v%d, v%d' % (vT0, v))
        a('v_permlane16_swap_b32 v%d, v%d' % (vT0, v))
        a('%s v%d, v%d, v%d' % (op, v, v, vT0))

    def softmax():
        n = NT * 8
        acc = [vM, vT1, vT2, vT3]
        idx = 0
        for k in range(4):
            a('v_max3_f32 v%d, v%d, v%d, v%d' % (acc[k], vS + idx, vS + idx + 1, vS + idx + 2))
            idx += 3
        k = 0
        while idx + 1 < n:
            a('v_max3_f32 v%d, v%d, v%d, v%d' % (acc[k], acc[k], vS + idx, vS + idx + 1))
            idx += 2
            k = (k + 1) % 4
        while idx < n:
            a('v_max_f32 v%d, v%d, v%d' % (acc[k], acc[k], vS + idx))
            idx += 1
        a('v_max3_f32 v%d, v%d, v%d, v%d' % (vM, vM, vT1, vT2))
        a('v_max_f32 v%d, v%d, v%d' % (vM, vM, vT3))
        xg_reduce(vM, 'v_max_f32')
        a('v_mul_f32 v%d, s%d, v%d' % (vM, sC, vM))
        a('v_mov_b32 v%d, 0' % vL)
        a('v_mov_b32 v%d, 0' % vL2)

    def probs(t):
        b = vS + 8 * t
        for i in range(8):
            a('v_fma_f32 v%d, v%d, s%d, -v%d' % (b + i, b + i, sC, vM))
        for i in range(8):
            a('v_exp_f32 v%d, v%d' % (b + i, b + i))
        for i in range(4):
            a('v_cvt_pk_bf16_f32 v%d, v%d, v%d' % (vP + 4 * t + i, b + 2 * i, b + 2 * i + 1))
        for i in range(4):
            a('v_add_f32 v%d, v%d, v%d' % (vL, vL, b + 2 * i))
            a('v_add_f32 v%d, v%d, v%d' % (vL2, vL2, b + 2 * i + 1))

    def finish_sum():
        a('v_add_f32 v%d, v%d, v%d' % (vL, vL, vL2))
        xg_reduce(vL, 'v_add_f32')

    def mid_setup():
        a('s_lshl_b32 s%d, s%d, 7' % (sT1, sP))
        a('s_add_u32 s%d, s%d, %d' % (sT1, sT1, XOFF))
        a('v_and_b32 v%d, 7, v%d' % (vFlagA, vLane))
        a('v_lshlrev_b32 v%d, 2, v%d' % (vFlagA, vFlagA))
        a('v_add_u32 v%d, s%d, v%d' % (vFlagA, sT1, vFlagA))
        vm.issue('global_load_dword v%d, v%d, s[20:21]' % (vFlag, vFlagA), 'flag')
        a('s_or_b32 s%d, s%d, 0x80' % (sT1, sXcc))
        a('v_and_b32 v%d, 1, v%d' % (vFlag + 1, vLane))
        a('v_mul_u32_u24 v%d, s%d, v%d' % (vFlag + 1, sT1, vFlag + 1))
        a('v_xor_b32 v%d, s%d, v%d' % (vFlag + 1, sTag, vFlag + 1))
        a('s_lshl_b32 s%d, s%d, 2' % (sT0, sP))
        a('s_add_u32 s%d, s%d, s3' % (sT0, sT0))
        a('s_lshl_b32 s%d, s%d, 2' % (sT0, sT0))
        a('s_add_u32 s%d, s%d, s%d' % (sT0, sT0, sJ))
        a('s_lshl_b32 s%d, s%d, 10' % (sT0, sT0))
        a('v_add_u32 v%d, s%d, v%d' % (vPub, sT0, vL16))
        a('s_lshl_b32 s%d, s2, 12' % sT0)
        for k in range(1, 4):
            a('s_add_u32 s%d, s%d, %d' % (sT1, sJ, k))
            a('s_and_b32 s%d, s%d, 3' % (sT1, sT1))
            a('s_lshl_b32 s%d, s%d, 10' % (sT1, sT1))
            a('s_add_u32 s%d, s%d, s%d' % (sT1, sT1, sT0))
            a('v_add_u32 v%d, s%d, v%d' % (vPa + k - 1, sT1, vL16))
        a('s_lshl_b32 s%d, s2, 8' % sT0)
        a('v_lshlrev_b32 v%d, 2, v%d' % (vOut, vLane))
        a('v_add_u32 v%d, s%d, v%d' % (vOut, sT0, vOut))
        a('s_mul_i32 s%d, s3, %d' % (sT0, PSTR))
        a('s_add_u32 s%d, s%d, %d' % (sT0, sT0, RED))
        a('v_and_b32 v%d, 3, v%d' % (vT0, vLane))
        a('v_mul_u32_u24 v%d, 528, v%d' % (vT1, vT0))
        a('v_lshrrev_b32 v%d, 4, v%d' % (vT2, vLane))
        a('v_lshlrev_b32 v%d, 4, v%d' % (vT3, vT2))
        a('v_add3_u32 v%d, v%d, v%d, s%d' % (vEp1, vT1, vT3, sT0))
        a('v_lshl_add_u32 v%d, v%d, 2, v%d' % (vT2, vT2, vT0))
        a('v_lshlrev_b32 v%d, 3, v%d' % (vMLa, vT2))
        a('v_add_u32 v%d, s%d, v%d' % (vMLa, sT0, vMLa))
        a('s_mul_i32 s%d, s3, 528' % sT0)
        a('s_add_u32 s%d, s%d, %d' % (sT0, sT0, RED))
        a('v_lshlrev_b32 v%d, 3, v%d' % (vEp2, vLane))
        a('v_add_u32 v%d, s%d, v%d' % (vEp2, sT0, vEp2))
        a('s_lshl_b32 s%d, s3, 3' % sT1)
        a('s_add_u32 s%d, s%d, %d' % (sT1, sT1, RED + MLOFF))
        a('v_mov_b32 v%d, s%d' % (vEp3, sT1))

    def write_ml():
        a('v_mov_b32 v%d, v%d' % (vG, vM))
        a('v_mov_b32 v%d, v%d' % (vG + 1, vL))
        a('s_mov_b32 exec_lo, 0x000f000f')
        a('s_mov_b32 exec_hi, 0x000f000f')
        a('ds_write_b64 v%d, %s offset:%d' % (vMLa, r(vG, 2), MLOFF))
        a('s_mov_b64 exec, -1')

    x = vS
    mreg = [x + 2 * w for w in range(NW)]
    lreg = [x + 1 + 2 * w for w in range(NW)]

    def weights():
        for w in range(NW):
            a('ds_read_b64 %s, v%d offset:%d' % (r(x + 2 * w, 2), vEp3, w * PSTR))
        a('v_lshlrev_b32 v%d, 16, v%d' % (vG, vVt))
        a('v_and_b32 v%d, 0xffff0000, v%d' % (vG + 1, vVt))
        a('s_waitcnt lgkmcnt(0)')
        a('v_max3_f32 v%d, v%d, v%d, v%d' % (vG + 2, vTree, mreg[0], mreg[1]))
        a('v_max3_f32 v%d, v%d, v%d, v%d' % (vG + 2, vG + 2, mreg[2], mreg[3]))
        for w in range(NW):
            a('v_sub_f32 v%d, v%d, v%d' % (vW + w, mreg[w], vG + 2))
        a('v_sub_f32 v%d, v%d, v%d' % (vTree, vTree, vG + 2))
        for w in range(NW):
            a('v_exp_f32 v%d, v%d' % (vW + w, vW + w))
        a('v_exp_f32 v%d, v%d' % (vTree, vTree))
        a('v_mov_b32 v%d, v%d' % (vG + 3, vTree))
        for w in range(NW):
            a('v_fmac_f32 v%d, v%d, v%d' % (vG + 3, vW + w, lreg[w]))
        if cfg.epoch:
            a('v_rcp_f32 v%d, v%d' % (vT1, vG + 3))
            a('v_log_f32 v%d, v%d' % (vT2, vG + 3))
            a('v_mov_b32 v%d, s%d' % (vG + 3, sTag))
            a('v_mul_f32 v%d, v%d, v%d' % (vTree, vTree, vT1))
            for w in range(NW):
                a('v_mul_f32 v%d, v%d, v%d' % (vW + w, vW + w, vT1))
            a('v_add_f32 v%d, v%d, v%d' % (vG + 2, vG + 2, vT2))
            a('v_mul_f32 v%d, v%d, v%d' % (vG, vG, vTree))
            a('v_mul_f32 v%d, v%d, v%d' % (vG + 1, vG + 1, vTree))

    flag_read = []
    sched = {0: [1, 2], 1: [3, 4], 2: [5, 6], 3: [7]} if cfg.split else {}

    def after_step(t):
        for u in sched.get(t, []):
            probs(u)
        if cfg.split and t == 0:
            mid_setup()
        if cfg.split and t == 3:
            finish_sum()
            write_ml()

    def v_tile(n):
        t = n - NT
        slot = n % NS
        last = (n == 2 * NT - 1)
        if last and cfg.early and not cfg.diag:
            a('s_waitcnt lgkmcnt(0)')
            a('s_barrier')
            weights()
        vm.wait(('tile', n))
        if not flag_read and 'flag' in vm.ops and vm.ops.index('flag') < vm.ops.index(('tile', n)):
            a('v_cmp_ne_u32 vcc, v%d, v%d' % (vFlag, vFlag + 1))
            a.nop(5)
            a('s_cmp_eq_u64 vcc, 0')
            a('s_cselect_b32 s%d, 1, 0' % sFlag)
            if cfg.pfin:
                a('s_cbranch_scc0 L_nopfin')
                a('s_cmp_eq_u32 s3, s%d' % sJ)
                a('s_cbranch_scc0 L_nopfin')
                for k in range(3):
                    a('global_load_dword v%d, v%d, s[20:21]' % (vTD + 1, vPa + k))
                a.label('L_nopfin')
            flag_read.append(n)
        if n in (8, 11, 14, 15):
            stamp('tile%d' % n)
        if cfg.diag >= 2:
            if n + NS < 2 * NT:
                issue_tile(n + NS)
            return
        for b in range(8):
            for w in range(2):
                a('ds_read_b64_tr_b16 %s, v%d offset:%d' % (
                    r(vStage + 4 * b + 2 * w, 2), vV, slot * TILE + w * 512 + b * 32))
        if n + NS < 2 * NT:
            a('s_waitcnt lgkmcnt(0)')
            if cfg.lock:
                a('s_barrier')
            issue_tile(n + NS)
            for b in range(8):
                a('v_mfma_f32_16x16x32_bf16 %s, %s, %s, %s' % (
                    r(vO + 4 * b, 4), r(vStage + 4 * b, 4), r(vP + 4 * t, 4), r(vO + 4 * b, 4)))
            after_step(t)
        else:
            for b in range(8):
                a('s_waitcnt lgkmcnt(%d)' % (14 - 2 * b))
                a('v_mfma_f32_16x16x32_bf16 %s, %s, %s, %s' % (
                    r(vO + 4 * b, 4), r(vStage + 4 * b, 4), r(vP + 4 * t, 4), r(vO + 4 * b, 4)))

    for n in range(NT):
        k_tile(n)
    if cfg.stamp: stamp('presm')
    if cfg.diag < 2:
        softmax()
    if cfg.diag >= 2:
        mid_setup()
    elif cfg.split:
        assert NS >= 4
        probs(0)
    else:
        for t in range(NT):
            probs(t)
        finish_sum()
        mid_setup()
        write_ml()
    stamp('softmax')
    for n in range(NT, 2 * NT):
        v_tile(n)
    assert flag_read
    stamp('pv_done')
    if cfg.diag:
        a('s_endpgm')

    a('s_mov_b32 exec_lo, 0x000f000f')
    a('s_mov_b32 exec_hi, 0x000f000f')
    for b in range(8):
        a('ds_write_b128 v%d, %s offset:%d' % (vEp1, r(vO + 4 * b, 4), b * 64))
    a('s_mov_b64 exec, -1')
    a('s_waitcnt lgkmcnt(0)')
    stamp('ldsw')
    a('s_barrier')
    stamp('bar')
    y = vStage
    for w in range(NW):
        a('ds_read_b64 %s, v%d offset:%d' % (r(y + 2 * w, 2), vEp2, w * PSTR))
    if not cfg.early:
        weights()
    for w in range(NW):
        if cfg.early:
            a('s_waitcnt lgkmcnt(%d)' % (NW - 1 - w))
        a('v_fmac_f32 v%d, v%d, v%d' % (vG, vW + w, y + 2 * w))
        a('v_fmac_f32 v%d, v%d, v%d' % (vG + 1, vW + w, y + 2 * w + 1))
    stamp('red')
    a('s_cmp_eq_u32 s3, s%d' % sJ)
    a('s_cbranch_scc1 L_consumer')
    if cfg.local:
        a('s_cmp_eq_u32 s%d, 1' % sFlag)
        a('s_cbranch_scc0 L_far')
        if not cfg.nopub:
            a('global_store_dwordx4 v%d, %s, s[20:21]' % (vPub, r(vG, 4)))
        stamp('published')
        n_pub = len(stamps)
        dump_stamps()
        a('s_endpgm')
        a.label('L_far')
    a('global_store_dwordx4 v%d, %s, s[20:21] sc1' % (vPub, r(vG, 4)))
    if not cfg.local:
        stamp('published')
    dump_stamps()
    a('s_endpgm')
    a.label('L_consumer')
    z = x + 16
    a.label('L_poll')
    if cfg.nopoll:
        a('s_branch L_polled2')
    for k in range(3):
        a('global_load_dwordx4 %s, v%d, s[20:21] %s' % (r(z + 4 * k, 4), vPa + k, cfg.pollpol))
    a('s_waitcnt vmcnt(0)')
    if cfg.epoch:
        for k in range(3):
            a('v_readfirstlane_b32 s%d, v%d' % (sT0 + k, z + 4 * k + 2))
        a('v_xor_b32 v%d, s%d, v%d' % (vT1, sTag, z + 3))
        a('v_xor_b32 v%d, s%d, v%d' % (vT2, sTag, z + 7))
        a('v_xor_b32 v%d, s%d, v%d' % (vT3, sTag, z + 11))
        a('v_or3_b32 v%d, v%d, v%d, v%d' % (vT1, vT1, vT2, vT3))
        a('v_xor_b32 v%d, s%d, v%d' % (vT0, sT0, z + 2))
        a('v_xor_b32 v%d, s%d, v%d' % (vT2, sT0 + 1, z + 6))
        a('v_xor_b32 v%d, s%d, v%d' % (vT3, sT0 + 2, z + 10))
        a('v_or3_b32 v%d, v%d, v%d, v%d' % (vT0, vT0, vT2, vT3))
        a('v_or_b32 v%d, v%d, v%d' % (vT1, vT1, vT0))
        a('v_cmp_ne_u32 vcc, 0, v%d' % vT1)
    else:
        a('v_max3_u32 v%d, v%d, v%d, v%d' % (vT1, z, z + 1, z + 2))
        a('v_max3_u32 v%d, v%d, v%d, v%d' % (vT2, z + 3, z + 4, z + 5))
        a('v_max3_u32 v%d, v%d, v%d, v%d' % (vT3, z + 6, z + 7, z + 8))
        a('v_max3_u32 v%d, v%d, v%d, v%d' % (vT1, vT1, z + 9, z + 10))
        a('v_max3_u32 v%d, v%d, v%d, v%d' % (vT2, vT2, vT3, z + 11))
        a('v_max_u32 v%d, v%d, v%d' % (vT1, vT1, vT2))
        a('v_cmp_eq_u32 vcc, -1, v%d' % vT1)
    spin_guard('L_end')
    a.nop(5)
    if cfg.psleep:
        a('s_cbranch_vccz L_polled')
        a('s_sleep %d' % cfg.psleep)
        a('s_branch L_poll')
        a.label('L_polled')
    else:
        a('s_cbranch_vccnz L_poll')
    if cfg.nopoll:
        a.label('L_polled2')
    stamp('polled')
    ms = [vG + 2, z + 2, z + 6, z + 10]
    o0 = [vG, z, z + 4, z + 8]
    ls = [vG + 3, z + 3, z + 7, z + 11]
    a('v_max3_f32 v%d, v%d, v%d, v%d' % (vM, ms[0], ms[1], ms[2]))
    a('v_max_f32 v%d, v%d, v%d' % (vM, vM, ms[3]))
    for k in range(4):
        a('v_sub_f32 v%d, v%d, v%d' % (ms[k], ms[k], vM))
    for k in range(4):
        a('v_exp_f32 v%d, v%d' % (ms[k], ms[k]))
    if cfg.epoch:
        a('v_add_f32 v%d, v%d, v%d' % (vT3, ms[0], ms[1]))
        a('v_add_f32 v%d, v%d, v%d' % (vT0, ms[2], ms[3]))
        a('v_mul_f32 v%d, v%d, v%d' % (vT1, ms[0], o0[0]))
        a('v_mul_f32 v%d, v%d, v%d' % (vT2, ms[0], o0[0] + 1))
        a('v_add_f32 v%d, v%d, v%d' % (vT3, vT3, vT0))
    else:
        a('v_mul_f32 v%d, v%d, v%d' % (vT3, ms[0], ls[0]))
        a('v_mul_f32 v%d, v%d, v%d' % (vT1, ms[0], o0[0]))
        a('v_mul_f32 v%d, v%d, v%d' % (vT2, ms[0], o0[0] + 1))
        for k in range(1, 4):
            a('v_fmac_f32 v%d, v%d, v%d' % (vT3, ms[k], ls[k]))
    a('v_rcp_f32 v%d, v%d' % (vT3, vT3))
    for k in range(1, 4):
        a('v_fmac_f32 v%d, v%d, v%d' % (vT1, ms[k], o0[k]))
        a('v_fmac_f32 v%d, v%d, v%d' % (vT2, ms[k], o0[k] + 1))
    a('v_mul_f32 v%d, v%d, v%d' % (vT1, vT1, vT3))
    a('v_mul_f32 v%d, v%d, v%d' % (vT2, vT2, vT3))
    a('v_cvt_pk_bf16_f32 v%d, v%d, v%d' % (vT1, vT1, vT2))
    a('global_store_dword v%d, v%d, s[16:17]' % (vOut, vT1))
    if cfg.epoch and not cfg.noEst:
        a('s_lshl_b32 s%d, s%d, 7' % (sT0, sP))
        a('s_add_u32 s%d, s%d, %d' % (sT0, sT0, EOFF))
        a('v_mov_b32 v%d, s%d' % (vT0, sT0))
        a('v_mov_b32 v%d, s%d' % (vT2, sTag))
        a('s_cmp_eq_u32 s%d, 0' % sJ)
        a('s_cbranch_scc0 L_noEst')
        a('s_mov_b64 exec, 1')
        a('global_store_dword v%d, v%d, s[20:21]' % (vT0, vT2))
        a.label('L_noEst')
    stamp('out')
    dump_stamps()
    a.label('L_end')
    a('s_endpgm')
    if cfg.cpf:
        a.label('L_codeend')
    return a, LDS, nvgpr


KD = """.section .rodata,"a"
.p2align 6
.amdhsa_kernel %s
  .amdhsa_next_free_vgpr %d
  .amdhsa_next_free_sgpr %d
  .amdhsa_accum_offset %d
  .amdhsa_group_segment_fixed_size 0
  .amdhsa_kernarg_size 72
  .amdhsa_user_sgpr_count 2
  .amdhsa_user_sgpr_kernarg_segment_ptr 1
  .amdhsa_system_sgpr_workgroup_id_x 1
.end_amdhsa_kernel
"""


def kernel_text(name, body):
    return ('.text\n.globl %s\n.p2align 8\n.type %s,@function\n%s:\n' % (name, name, name)) + body


def generate(cfg):
    a, lds, nv = gen_main(cfg)
    out = HEADER
    out += '; @launch grid=(256,1,1) block=(%d,1,1) lds=%d\n' % (256, lds)
    out += '.amdgcn_target "amdgcn-amd-amdhsa--gfx950"\n'
    out += kernel_text(KMAIN, a.finalize())
    nva = (nv + 7) // 8 * 8
    out += KD % (KMAIN, nva, 100, (nva + 3) // 4 * 4)
    return out


if __name__ == '__main__':
    ap = argparse.ArgumentParser()
    ap.add_argument('-o', default='cdna_kernels/' + NAME + '.s')
    ap.add_argument('opts', nargs='*', help='key=value')
    args = ap.parse_args()
    kw = {}
    for o in args.opts:
        k, v = o.split('=', 1)
        try:
            v = int(v)
        except ValueError:
            pass
        kw[k] = v
    cfg = Cfg(**kw)
    txt = generate(cfg)
    open(args.o, 'w').write(txt)
    print('wrote', args.o, len(txt), 'bytes')
    if cfg.stamp:
        open(args.o[:-2] + '.names', 'w').write('\n'.join(cfg.stamp_names) + '\n')
```

```python
import argparse
import math
import re
import struct
import sys
import os

sys.path.insert(0, os.path.dirname(os.path.abspath(__file__)))
from asmlib import Asm

NAME = 'standalone__tree_speculative_verify_tree_attention_over_candidate_token_tree__decode'
KMAIN = NAME + '_kernel'

HEADER = """; Kernarg layout for this problem (72 bytes, ptrs only, base s[0:1]):
"""


def f2u(x):
    return struct.unpack('<I', struct.pack('<f', x))[0]


def hx(x):
    return '0x%08x' % (x & 0xffffffff)


SCALE_LOG2E = (128.0 ** -0.5) * math.log2(math.e)
NEG_BIG_LOG2E = -1.0e9 * math.log2(math.e)

PIECE = 1056
TILE = 8 * PIECE
NW = 4
NT = 8


class Cfg:
    def __init__(self, **kw):
        self.ns = 4
        self.pol = 'nt'
        self.low = 'w0j0w1j1'
        self.high = 'n0n2n1'
        self.stamp = 0
        self.local = 1
        self.early = 1
        self.psleep = 0
        self.vpol = 'same'
        self.pfin = 1
        self.pollpol = 'sc1'
        self.nopub = 0
        self.nopoll = 0
        self.noEst = 0
        self.noE = 0
        self.noX = 0
        self.epoch = 1
        self.plainld = 0
        self.nclr = 4
        self.clrpol = 'sc1'
        self.flagst = 1
        self.noflagld = 0
        self.helper = 0
        self.lock = 0
        self.diag = 0
        self.ilv = 1
        self.ihigh = 'n0n1n2j0j1'
        self.split = 1
        self.cpf = 0
        self.xr = 0
        self.spin = 0
        self.__dict__.update(kw)


class VM:
    def __init__(self, a):
        self.a = a
        self.ops = []

    def issue(self, text, tag):
        self.a(text)
        self.ops.append(tag)

    def count(self, *tags):
        last = max(i for i, t in enumerate(self.ops) if t in tags)
        n = len(self.ops) - 1 - last
        assert n <= 63, n
        return n

    def wait(self, *tags):
        self.a('s_waitcnt vmcnt(%d)' % self.count(*tags))


def gen_main(cfg):
    a = Asm()
    vm = VM(a)
    NS = cfg.ns
    RING = NS * TILE
    RED = NW * RING
    PSTR = 2240
    MLOFF = 2112
    LDS = RED + NW * PSTR
    assert LDS <= 163840, LDS

    sP, sJ = 36, 37
    sBase, sOff, sLds, sC = 32, 33, 34, 35
    sT0, sT1, sT2, sT3 = 38, 39, 40, 41
    sBig, sXcc, sFlag, sSpin = 42, 43, 22, 23
    s4k = 97
    sE, sTag = 98, 99
    EOFF = 0x200000
    XOFF = 0x210000
    vL16w = 3
    vLane, vL16, vL16b, vK, vV = 1, 2, 3, 4, 5
    vT0, vT1, vT2, vT3 = 6, 7, 8, 9
    vTree, vVt, vMask = 10, 11, 12
    vM, vL = 13, 14
    vFlagA = 0
    vL2 = 12
    vQ = 16
    vStage = 32
    vS = 64
    vP = vS + NT * 8
    vO = vP + NT * 4
    vKt = vO + 32
    vTD = vKt + 16
    nvgpr = vTD + 4
    vFlag = vTD + 2
    vMLa = vTD
    vEp1, vEp2, vEp3, vPub, vOut = vKt, vKt + 1, vKt + 2, vKt + 3, vKt + 4
    vPa = vKt + 5
    vG = vKt + 8
    vW = vKt + 12
    assert vG % 2 == 0

    def r(base, n):
        return 'v[%d:%d]' % (base, base + n - 1)

    stamps = []

    def stamp(name):
        if not cfg.stamp:
            return
        i = len(stamps)
        assert 44 + 2 * i + 1 < 96
        stamps.append(name)
        a('s_memrealtime s[%d:%d]' % (44 + 2 * i, 45 + 2 * i))
        a('s_waitcnt lgkmcnt(0)')

    def dump_stamps():
        if not cfg.stamp:
            return
        v = vS
        a('v_mov_b32 v%d, 0' % v)
        for i in range(len(stamps)):
            a('v_writelane_b32 v%d, s%d, %d' % (v, 44 + 2 * i, i))
        a('v_writelane_b32 v%d, s%d, 62' % (v, sXcc))
        a('s_lshl_b32 s%d, s2, 3' % sT3)
        a('s_add_u32 s%d, s%d, s3' % (sT3, sT3))
        a('s_lshl_b32 s%d, s%d, 8' % (sT3, sT3))
        a('s_add_u32 s%d, s%d, 0x8000000' % (sT3, sT3))
        a('v_lshlrev_b32 v%d, 2, v%d' % (v + 1, vLane))
        a('v_add_u32 v%d, s%d, v%d' % (v + 1, sT3, v + 1))
        a('global_store_dword v%d, v%d, s[20:21]' % (v + 1, v))
        cfg.stamp_names = list(stamps)

    def spin_guard(exit_label):
        if cfg.spin:
            a('s_sub_u32 s%d, s%d, 1' % (sSpin, sSpin))
            a('s_cbranch_scc1 ' + exit_label)

    if cfg.ilv:
        hi = re.findall(r'[nj]\d', cfg.ihigh)
        assert sorted(hi) == ['j0', 'j1', 'n0', 'n1', 'n2']
        npos = {int(nm[1]): 15 + pos for pos, nm in enumerate(hi) if nm[0] == 'n'}
        jpos = {int(nm[1]): 15 + pos for pos, nm in enumerate(hi) if nm[0] == 'j'}
    else:
        hi = re.findall(r'n\d', cfg.high)
        assert sorted(hi) == ['n0', 'n1', 'n2']
        npos = {int(nm[1]): 17 + pos for pos, nm in enumerate(hi)}

    def tile_delta(t):
        return sum(((t >> k) & 1) << npos[k] for k in range(3))

    def issue_tile(n, compact=False):
        isk = n < NT
        slot = n % NS
        srd = 's[24:27]' if isk else 's[28:31]'
        d = tile_delta(n % NT)
        if cfg.ilv:
            for i in range(8):
                if compact:
                    if i > 0:
                        a('s_add_u32 m0, m0, s%d' % sBig)
                else:
                    a('s_add_u32 m0, s%d, %d' % (sLds, slot * TILE + i * PIECE))
                if i == 0:
                    if d:
                        a('s_xor_b32 s%d, s%d, %d' % (sOff, sBase, d))
                    else:
                        a('s_mov_b32 s%d, s%d' % (sOff, sBase))
                else:
                    a('s_add_u32 s%d, s%d, s%d' % (sOff, sOff, s4k))
                txt = 'buffer_load_dwordx4 v%d, %s, s%d offen' % (vL16w, srd, sOff)
                pol = cfg.pol if isk else (cfg.vpol if cfg.vpol != 'same' else cfg.pol)
                if pol and pol != 'none':
                    txt += ' ' + pol.replace('+', ' ')
                txt += ' lds'
                vm.issue(txt, ('tile', n))
            return
        if d:
            a('s_xor_b32 s%d, s%d, %d' % (sOff, sBase, d))
            so = sOff
        else:
            so = sBase
        for i in range(8):
            if compact:
                if i > 0:
                    if i == 4:
                        a('s_add_u32 m0, m0, s%d' % sBig)
                    else:
                        a('s_add_u32 m0, m0, 32')
            else:
                m0 = slot * TILE + i * 32 + (4096 if i >= 4 else 0)
                a('s_add_u32 m0, s%d, %d' % (sLds, m0))
            voff = vL16 if i < 4 else vL16b
            off = (i & 3) * 1024
            txt = 'buffer_load_dwordx4 v%d, %s, s%d offen' % (voff, srd, so)
            if off:
                txt += ' offset:%d' % off
            if cfg.pol:
                txt += ' ' + cfg.pol.replace('+', ' ')
            txt += ' lds'
            vm.issue(txt, ('tile', n))

    if cfg.stamp:
        a('s_cmp_ge_u32 s2, 256')
        a('s_cbranch_scc1 L_end')
        stamp('entry')
    a('s_load_dwordx16 s[4:19], s[0:1], 0')
    a('s_load_dwordx2 s[20:21], s[0:1], 64')
    if not cfg.stamp:
        a('s_cmp_ge_u32 s2, 256')
        a('s_cbranch_scc1 L_end')
    a('v_readfirstlane_b32 s3, v0')
    a('v_and_b32 v%d, 63, v0' % vLane)
    a('v_lshlrev_b32 v%d, 4, v%d' % (vL16, vLane))
    a('s_mov_b32 s26, 0x4000000')
    a('s_mov_b32 s27, 0x20000')
    a('s_lshr_b32 s3, s3, 6')
    a('s_and_b32 s%d, s2, 7' % sT0)
    a('s_bfe_u32 s%d, s2, 0x20003' % sJ)
    a('s_lshr_b32 s%d, s2, 5' % sT1)
    a('s_lshl_b32 s%d, s%d, 3' % (sP, sT0))
    a('s_add_u32 s%d, s%d, s%d' % (sP, sP, sT1))
    if cfg.ilv:
        if jpos[1] == jpos[0] + 1:
            a('s_lshl_b32 s%d, s%d, %d' % (sT0, sJ, jpos[0]))
        else:
            a('s_and_b32 s%d, s%d, 1' % (sT0, sJ))
            a('s_lshl_b32 s%d, s%d, %d' % (sT0, sT0, jpos[0]))
            a('s_lshr_b32 s%d, s%d, 1' % (sT1, sJ))
            a('s_lshl_b32 s%d, s%d, %d' % (sT1, sT1, jpos[1]))
            a('s_or_b32 s%d, s%d, s%d' % (sT0, sT0, sT1))
        a('s_lshl_b32 s%d, s3, 10' % sT1)
        a('v_add_u32 v%d, s%d, v%d' % (vL16w, sT1, vL16))
        a('s_movk_i32 s%d, 0x1000' % s4k)
    elif cfg.low == 'w0w1j0j1':
        a('s_lshl_b32 s%d, s%d, 2' % (sT0, sJ))
        a('s_add_u32 s%d, s%d, s3' % (sT0, sT0))
        a('s_lshl_b32 s%d, s%d, 13' % (sT0, sT0))
    elif cfg.low == 'w0j0w1j1':
        a('s_lshl_b32 s%d, s%d, 2' % (sT0, sJ))
        a('s_or_b32 s%d, s%d, s3' % (sT0, sT0))
        a('s_and_b32 s%d, s%d, 6' % (sT1, sT0))
        a('s_lshr_b32 s%d, s%d, 1' % (sT2, sT1))
        a('s_xor_b32 s%d, s%d, s%d' % (sT2, sT2, sT1))
        a('s_and_b32 s%d, s%d, 2' % (sT2, sT2))
        a('s_mul_i32 s%d, s%d, 3' % (sT2, sT2))
        a('s_xor_b32 s%d, s%d, s%d' % (sT0, sT0, sT2))
        a('s_lshl_b32 s%d, s%d, 13' % (sT0, sT0))
    else:
        raise ValueError(cfg.low)
    a('s_lshl_b32 s%d, s%d, 20' % (sBase, sP))
    a('s_add_u32 s%d, s%d, s%d' % (sBase, sBase, sT0))
    if cfg.xr:
        if cfg.xr == 1:
            a('s_lshr_b32 s%d, s2, 5' % sT0)
        elif cfg.xr == 2:
            a('s_and_b32 s%d, s2, 7' % sT0)
        elif cfg.xr == 3:
            a('s_lshr_b32 s%d, s2, 5' % sT0)
            a('s_xor_b32 s%d, s%d, s2' % (sT0, sT0))
            a('s_and_b32 s%d, s%d, 7' % (sT0, sT0))
        elif cfg.xr == 4:
            a('s_bfe_u32 s%d, s2, 0x20005' % sT0)
        elif cfg.xr == 5:
            a('s_and_b32 s%d, s2, 3' % sT0)
        a('s_lshl_b32 s%d, s%d, 17' % (sT0, sT0))
        a('s_xor_b32 s%d, s%d, s%d' % (sBase, sBase, sT0))
    a('s_mul_i32 s%d, s3, %d' % (sLds, RING))
    if cfg.ilv:
        a('s_movk_i32 s%d, %d' % (sBig, PIECE))
    else:
        a('s_movk_i32 s%d, 4128' % sBig)
        a('v_add_u32 v%d, 4096, v%d' % (vL16b, vL16))
    a('s_mov_b32 m0, s%d' % sLds)
    a('s_waitcnt lgkmcnt(0)')
    a('s_mov_b64 s[24:25], s[6:7]')
    stamp('karg')
    issue_tile(0, compact=True)
    a('s_mov_b64 s[28:29], s[8:9]')
    a('s_mov_b64 s[30:31], s[26:27]')
    a('s_lshl_b32 s2, s%d, 2' % sP)
    a('s_add_u32 s2, s2, s%d' % sJ)
    a('s_getreg_b32 s%d, hwreg(HW_REG_XCC_ID, 0, 4)' % sXcc)
    if cfg.spin:
        a('s_mov_b32 s%d, %d' % (sSpin, cfg.spin))

    if cfg.cpf:
        a('s_getpc_b64 s[%d:%d]' % (sT0, sT0 + 1))
        a.label('L_pc')
        a('s_sub_u32 s%d, s%d, L_pc-%s' % (sT0, sT0, KMAIN))
        a('s_subb_u32 s%d, s%d, 0' % (sT0 + 1, sT0 + 1))
        a('s_lshl_b32 s%d, s%d, 2' % (sT2, sJ))
        a('s_add_u32 s%d, s%d, s3' % (sT2, sT2))
        a('s_lshl_b32 s%d, s%d, 10' % (sT2, sT2))
        a('s_min_u32 s%d, s%d, L_codeend-%s-1024' % (sT2, sT2, KMAIN))
        a('v_add_u32 v%d, s%d, v%d' % (vT0, sT2, vL16))
        a('v_mov_b32 v%d, s%d' % (vT1, sT0 + 1))
        a('v_add_co_u32 v%d, vcc, s%d, v%d' % (vT0, sT0, vT0))
        a('v_addc_co_u32 v%d, vcc, 0, v%d, vcc' % (vT1, vT1))
        a('global_load_dwordx4 %s, %s, off' % (r(vO, 4), r(vT0, 2)))
    a('s_lshl_b32 s%d, s%d, 7' % (sT0, sP))
    a('s_add_u32 s%d, s%d, %d' % (sT0, sT0, EOFF))
    a('s_load_dword s%d, s[20:21], s%d' % (sE, sT0))

    a('v_and_b32 v%d, 3, v%d' % (vT0, vLane))
    a('v_lshlrev_b32 v%d, 8, v%d' % (vT0, vT0))
    a('v_lshrrev_b32 v%d, 4, v%d' % (vT1, vLane))
    a('v_lshlrev_b32 v%d, 4, v%d' % (vT1, vT1))
    a('s_lshl_b32 s%d, s%d, 10' % (sT0, sP))
    a('s_lshl_b32 s%d, s%d, 8' % (sT1, sP))
    a('v_add3_u32 v%d, v%d, v%d, s%d' % (vT0, vT0, vT1, sT0))
    a('v_add_u32 v%d, s%d, v%d' % (vT1, sT1, vT1))
    a('v_lshlrev_b32 v%d, 2, v%d' % (vT2, vLane))
    a('v_add_u32 v%d, s%d, v%d' % (vT2, sT1, vT2))
    a('s_lshr_b32 s%d, s%d, 3' % (sT2, sP))
    a('s_lshl_b32 s%d, s%d, 1' % (sT2, sT2))
    a('v_mov_b32 v%d, s%d' % (vT3, sT2))
    for s in range(4):
        vm.issue('global_load_dwordx4 %s, v%d, s[4:5] offset:%d' % (r(vQ + 4 * s, 4), vT0, s * 64), 'small')
    for s in range(4):
        vm.issue('global_load_dwordx4 %s, v%d, s[10:11] offset:%d' % (r(vKt + 4 * s, 4), vT1, s * 64), 'small')
    vm.issue('global_load_dword v%d, v%d, s[12:13]' % (vVt, vT2), 'small')
    vm.issue('global_load_ushort v%d, v%d, s[14:15]' % (vMask, vT3), 'small')
    for n in range(1, NS):
        issue_tile(n)

    a('v_and_b32 v%d, 7, v%d' % (vT0, vLane))
    a('v_mul_u32_u24 v%d, %d, v%d' % (vT0, PIECE, vT0))
    a('v_bfe_u32 v%d, v%d, 3, 1' % (vT1, vLane))
    a('v_lshlrev_b32 v%d, 8, v%d' % (vT1, vT1))
    a('v_lshrrev_b32 v%d, 4, v%d' % (vT2, vLane))
    a('v_lshlrev_b32 v%d, 4, v%d' % (vT2, vT2))
    a('v_add3_u32 v%d, v%d, v%d, v%d' % (vK, vT0, vT1, vT2))
    a('v_add_u32 v%d, s%d, v%d' % (vK, sLds, vK))
    a('v_bfe_u32 v%d, v%d, 2, 3' % (vT0, vLane))
    a('v_mul_u32_u24 v%d, %d, v%d' % (vT0, PIECE, vT0))
    a('v_lshrrev_b32 v%d, 5, v%d' % (vT1, vLane))
    a('v_lshlrev_b32 v%d, 8, v%d' % (vT1, vT1))
    a('v_and_b32 v%d, 3, v%d' % (vT2, vLane))
    a('v_lshlrev_b32 v%d, 3, v%d' % (vT2, vT2))
    a('v_add3_u32 v%d, v%d, v%d, v%d' % (vV, vT0, vT1, vT2))
    a('v_add_u32 v%d, s%d, v%d' % (vV, sLds, vV))
    a('s_mov_b32 s%d, %s' % (sC, hx(f2u(SCALE_LOG2E))))
    if not cfg.cpf:
        for i in range(32):
            a('v_mov_b32 v%d, 0' % (vO + i))

    def tree_score():
        for s in range(4):
            a('v_mfma_f32_16x16x32_bf16 %s, %s, %s, %s' % (
                r(vTD, 4), r(vKt + 4 * s, 4), r(vQ + 4 * s, 4), '0' if s == 0 else r(vTD, 4)))
        a('v_lshlrev_b32 v%d, 16, v%d' % (vMask, vMask))
        a('v_sub_f32 v%d, 1.0, v%d' % (vMask, vMask))
        a('v_mul_f32 v%d, %s, v%d' % (vMask, hx(f2u(NEG_BIG_LOG2E)), vMask))
        a('s_cmp_eq_u32 s%d, 0' % sJ)
        a('s_cselect_b32 s%d, 0, 0xff800000' % sT1)
        a('v_readlane_b32 s%d, v%d, s3' % (sT2, vTD))
        a('v_mov_b32 v%d, s%d' % (vTree, sT2))
        a('v_fma_f32 v%d, v%d, s%d, v%d' % (vTree, vTree, sC, vMask))
        a('v_add_f32 v%d, s%d, v%d' % (vTree, sT1, vTree))

    def k_tile(n):
        t = n
        slot = n % NS
        if n == 0:
            vm.wait(('tile', 0), 'small')
        else:
            vm.wait(('tile', n))
        if n in (0, 3, 7):
            stamp('tile%d' % n)
        if cfg.diag >= 2:
            issue_tile(n + NS)
            return
        for w in range(2):
            for s in range(4):
                a('ds_read_b128 %s, v%d offset:%d' % (
                    r(vStage + 16 * w + 4 * s, 4), vK, slot * TILE + w * 512 + s * 64))
        a('s_waitcnt lgkmcnt(0)')
        if n == 0:
            a('s_mul_i32 s%d, s%d, 1664525' % (sTag, sE))
            a('s_add_u32 s%d, s%d, 1013904223' % (sTag, sTag))
            if cfg.local and not cfg.noX:
                a('s_cmp_eq_u32 s3, s%d' % sJ)
                a('s_cbranch_scc0 L_noxcc')
                a('s_or_b32 s%d, s%d, 0x80' % (sT1, sXcc))
                a('s_xor_b32 s%d, s%d, s%d' % (sT1, sT1, sTag))
                a('s_lshl_b32 s%d, s%d, 7' % (sT0, sP))
                a('s_lshl_b32 s%d, s%d, 3' % (sT2, sJ))
                a('s_add_u32 s%d, s%d, s%d' % (sT0, sT0, sT2))
                a('s_add_u32 s%d, s%d, %d' % (sT0, sT0, XOFF))
                a('v_mov_b32 v%d, s%d' % (vT0, sT0))
                a('v_mov_b32 v%d, s%d' % (vT2, sTag))
                a('v_mov_b32 v%d, s%d' % (vT3, sT1))
                a('s_mov_b64 exec, 1')
                a('global_store_dwordx2 v%d, %s, s[20:21] sc1' % (vT0, r(vT2, 2)))
                a('s_mov_b64 exec, -1')
                a.label('L_noxcc')
        if cfg.lock:
            a('s_barrier')
        issue_tile(n + NS)
        for s in range(4):
            for w in range(2):
                d = r(vS + 8 * t + 4 * w, 4)
                a('v_mfma_f32_16x16x32_bf16 %s, %s, %s, %s' % (
                    d, r(vStage + 16 * w + 4 * s, 4), r(vQ + 4 * s, 4), '0' if s == 0 else d))
        if n == 0:
            tree_score()
            if cfg.cpf:
                for i in range(32):
                    a('v_mov_b32 v%d, 0' % (vO + i))

    def xg_reduce(v, op):
        a('v_mov_b32 v%d, v%d' % (vT0, v))
        a('v_permlane32_swap_b32 v%d, v%d' % (vT0, v))
        a('%s v%d, v%d, v%d' % (op, v, v, vT0))
        a('v_mov_b32 v%d, v%d' % (vT0, v))
        a('v_permlane16_swap_b32 v%d, v%d' % (vT0, v))
        a('%s v%d, v%d, v%d' % (op, v, v, vT0))

    def softmax():
        n = NT * 8
        acc = [vM, vT1, vT2, vT3]
        idx = 0
        for k in range(4):
            a('v_max3_f32 v%d, v%d, v%d, v%d' % (acc[k], vS + idx, vS + idx + 1, vS + idx + 2))
            idx += 3
        k = 0
        while idx + 1 < n:
            a('v_max3_f32 v%d, v%d, v%d, v%d' % (acc[k], acc[k], vS + idx, vS + idx + 1))
            idx += 2
            k = (k + 1) % 4
        while idx < n:
            a('v_max_f32 v%d, v%d, v%d' % (acc[k], acc[k], vS + idx))
            idx += 1
        a('v_max3_f32 v%d, v%d, v%d, v%d' % (vM, vM, vT1, vT2))
        a('v_max_f32 v%d, v%d, v%d' % (vM, vM, vT3))
        xg_reduce(vM, 'v_max_f32')
        a('v_mul_f32 v%d, s%d, v%d' % (vM, sC, vM))
        a('v_mov_b32 v%d, 0' % vL)
        a('v_mov_b32 v%d, 0' % vL2)

    def probs(t):
        b = vS + 8 * t
        for i in range(8):
            a('v_fma_f32 v%d, v%d, s%d, -v%d' % (b + i, b + i, sC, vM))
        for i in range(8):
            a('v_exp_f32 v%d, v%d' % (b + i, b + i))
        for i in range(4):
            a('v_cvt_pk_bf16_f32 v%d, v%d, v%d' % (vP + 4 * t + i, b + 2 * i, b + 2 * i + 1))
        for i in range(4):
            a('v_add_f32 v%d, v%d, v%d' % (vL, vL, b + 2 * i))
            a('v_add_f32 v%d, v%d, v%d' % (vL2, vL2, b + 2 * i + 1))

    def finish_sum():
        a('v_add_f32 v%d, v%d, v%d' % (vL, vL, vL2))
        xg_reduce(vL, 'v_add_f32')

    def mid_setup():
        a('s_lshl_b32 s%d, s%d, 7' % (sT1, sP))
        a('s_add_u32 s%d, s%d, %d' % (sT1, sT1, XOFF))
        a('v_and_b32 v%d, 7, v%d' % (vFlagA, vLane))
        a('v_lshlrev_b32 v%d, 2, v%d' % (vFlagA, vFlagA))
        a('v_add_u32 v%d, s%d, v%d' % (vFlagA, sT1, vFlagA))
        vm.issue('global_load_dword v%d, v%d, s[20:21]' % (vFlag, vFlagA), 'flag')
        a('s_or_b32 s%d, s%d, 0x80' % (sT1, sXcc))
        a('v_and_b32 v%d, 1, v%d' % (vFlag + 1, vLane))
        a('v_mul_u32_u24 v%d, s%d, v%d' % (vFlag + 1, sT1, vFlag + 1))
        a('v_xor_b32 v%d, s%d, v%d' % (vFlag + 1, sTag, vFlag + 1))
        a('s_lshl_b32 s%d, s%d, 2' % (sT0, sP))
        a('s_add_u32 s%d, s%d, s3' % (sT0, sT0))
        a('s_lshl_b32 s%d, s%d, 2' % (sT0, sT0))
        a('s_add_u32 s%d, s%d, s%d' % (sT0, sT0, sJ))
        a('s_lshl_b32 s%d, s%d, 10' % (sT0, sT0))
        a('v_add_u32 v%d, s%d, v%d' % (vPub, sT0, vL16))
        a('s_lshl_b32 s%d, s2, 12' % sT0)
        for k in range(1, 4):
            a('s_add_u32 s%d, s%d, %d' % (sT1, sJ, k))
            a('s_and_b32 s%d, s%d, 3' % (sT1, sT1))
            a('s_lshl_b32 s%d, s%d, 10' % (sT1, sT1))
            a('s_add_u32 s%d, s%d, s%d' % (sT1, sT1, sT0))
            a('v_add_u32 v%d, s%d, v%d' % (vPa + k - 1, sT1, vL16))
        a('s_lshl_b32 s%d, s2, 8' % sT0)
        a('v_lshlrev_b32 v%d, 2, v%d' % (vOut, vLane))
        a('v_add_u32 v%d, s%d, v%d' % (vOut, sT0, vOut))
        a('s_mul_i32 s%d, s3, %d' % (sT0, PSTR))
        a('s_add_u32 s%d, s%d, %d' % (sT0, sT0, RED))
        a('v_and_b32 v%d, 3, v%d' % (vT0, vLane))
        a('v_mul_u32_u24 v%d, 528, v%d' % (vT1, vT0))
        a('v_lshrrev_b32 v%d, 4, v%d' % (vT2, vLane))
        a('v_lshlrev_b32 v%d, 4, v%d' % (vT3, vT2))
        a('v_add3_u32 v%d, v%d, v%d, s%d' % (vEp1, vT1, vT3, sT0))
        a('v_lshl_add_u32 v%d, v%d, 2, v%d' % (vT2, vT2, vT0))
        a('v_lshlrev_b32 v%d, 3, v%d' % (vMLa, vT2))
        a('v_add_u32 v%d, s%d, v%d' % (vMLa, sT0, vMLa))
        a('s_mul_i32 s%d, s3, 528' % sT0)
        a('s_add_u32 s%d, s%d, %d' % (sT0, sT0, RED))
        a('v_lshlrev_b32 v%d, 3, v%d' % (vEp2, vLane))
        a('v_add_u32 v%d, s%d, v%d' % (vEp2, sT0, vEp2))
        a('s_lshl_b32 s%d, s3, 3' % sT1)
        a('s_add_u32 s%d, s%d, %d' % (sT1, sT1, RED + MLOFF))
        a('v_mov_b32 v%d, s%d' % (vEp3, sT1))

    def write_ml():
        a('v_mov_b32 v%d, v%d' % (vG, vM))
        a('v_mov_b32 v%d, v%d' % (vG + 1, vL))
        a('s_mov_b32 exec_lo, 0x000f000f')
        a('s_mov_b32 exec_hi, 0x000f000f')
        a('ds_write_b64 v%d, %s offset:%d' % (vMLa, r(vG, 2), MLOFF))
        a('s_mov_b64 exec, -1')

    x = vS
    mreg = [x + 2 * w for w in range(NW)]
    lreg = [x + 1 + 2 * w for w in range(NW)]

    def weights():
        for w in range(NW):
            a('ds_read_b64 %s, v%d offset:%d' % (r(x + 2 * w, 2), vEp3, w * PSTR))
        a('v_lshlrev_b32 v%d, 16, v%d' % (vG, vVt))
        a('v_and_b32 v%d, 0xffff0000, v%d' % (vG + 1, vVt))
        a('s_waitcnt lgkmcnt(0)')
        a('v_max3_f32 v%d, v%d, v%d, v%d' % (vG + 2, vTree, mreg[0], mreg[1]))
        a('v_max3_f32 v%d, v%d, v%d, v%d' % (vG + 2, vG + 2, mreg[2], mreg[3]))
        for w in range(NW):
            a('v_sub_f32 v%d, v%d, v%d' % (vW + w, mreg[w], vG + 2))
        a('v_sub_f32 v%d, v%d, v%d' % (vTree, vTree, vG + 2))
        for w in range(NW):
            a('v_exp_f32 v%d, v%d' % (vW + w, vW + w))
        a('v_exp_f32 v%d, v%d' % (vTree, vTree))
        a('v_mov_b32 v%d, v%d' % (vG + 3, vTree))
        for w in range(NW):
            a('v_fmac_f32 v%d, v%d, v%d' % (vG + 3, vW + w, lreg[w]))
        if cfg.epoch:
            a('v_rcp_f32 v%d, v%d' % (vT1, vG + 3))
            a('v_log_f32 v%d, v%d' % (vT2, vG + 3))
            a('v_mov_b32 v%d, s%d' % (vG + 3, sTag))
            a('v_mul_f32 v%d, v%d, v%d' % (vTree, vTree, vT1))
            for w in range(NW):
                a('v_mul_f32 v%d, v%d, v%d' % (vW + w, vW + w, vT1))
            a('v_add_f32 v%d, v%d, v%d' % (vG + 2, vG + 2, vT2))
            a('v_mul_f32 v%d, v%d, v%d' % (vG, vG, vTree))
            a('v_mul_f32 v%d, v%d, v%d' % (vG + 1, vG + 1, vTree))

    flag_read = []
    sched = {0: [1, 2], 1: [3, 4], 2: [5, 6], 3: [7]} if cfg.split else {}

    def after_step(t):
        for u in sched.get(t, []):
            probs(u)
        if cfg.split and t == 0:
            mid_setup()
        if cfg.split and t == 3:
            finish_sum()
            write_ml()

    def v_tile(n):
        t = n - NT
        slot = n % NS
        last = (n == 2 * NT - 1)
        if last and cfg.early and not cfg.diag:
            a('s_waitcnt lgkmcnt(0)')
            a('s_barrier')
            weights()
        vm.wait(('tile', n))
        if not flag_read and 'flag' in vm.ops and vm.ops.index('flag') < vm.ops.index(('tile', n)):
            a('v_cmp_ne_u32 vcc, v%d, v%d' % (vFlag, vFlag + 1))
            a.nop(5)
            a('s_cmp_eq_u64 vcc, 0')
            a('s_cselect_b32 s%d, 1, 0' % sFlag)
            if cfg.pfin:
                a('s_cbranch_scc0 L_nopfin')
                a('s_cmp_eq_u32 s3, s%d' % sJ)
                a('s_cbranch_scc0 L_nopfin')
                for k in range(3):
                    a('global_load_dword v%d, v%d, s[20:21]' % (vTD + 1, vPa + k))
                a.label('L_nopfin')
            flag_read.append(n)
        if n in (8, 11, 14, 15):
            stamp('tile%d' % n)
        if cfg.diag >= 2:
            if n + NS < 2 * NT:
                issue_tile(n + NS)
            return
        for b in range(8):
            for w in range(2):
                a('ds_read_b64_tr_b16 %s, v%d offset:%d' % (
                    r(vStage + 4 * b + 2 * w, 2), vV, slot * TILE + w * 512 + b * 32))
        if n + NS < 2 * NT:
            a('s_waitcnt lgkmcnt(0)')
            if cfg.lock:
                a('s_barrier')
            issue_tile(n + NS)
            for b in range(8):
                a('v_mfma_f32_16x16x32_bf16 %s, %s, %s, %s' % (
                    r(vO + 4 * b, 4), r(vStage + 4 * b, 4), r(vP + 4 * t, 4), r(vO + 4 * b, 4)))
            after_step(t)
        else:
            for b in range(8):
                a('s_waitcnt lgkmcnt(%d)' % (14 - 2 * b))
                a('v_mfma_f32_16x16x32_bf16 %s, %s, %s, %s' % (
                    r(vO + 4 * b, 4), r(vStage + 4 * b, 4), r(vP + 4 * t, 4), r(vO + 4 * b, 4)))

    for n in range(NT):
        k_tile(n)
    if cfg.stamp: stamp('presm')
    if cfg.diag < 2:
        softmax()
    if cfg.diag >= 2:
        mid_setup()
    elif cfg.split:
        assert NS >= 4
        probs(0)
    else:
        for t in range(NT):
            probs(t)
        finish_sum()
        mid_setup()
        write_ml()
    stamp('softmax')
    for n in range(NT, 2 * NT):
        v_tile(n)
    assert flag_read
    stamp('pv_done')
    if cfg.diag:
        a('s_endpgm')

    a('s_mov_b32 exec_lo, 0x000f000f')
    a('s_mov_b32 exec_hi, 0x000f000f')
    for b in range(8):
        a('ds_write_b128 v%d, %s offset:%d' % (vEp1, r(vO + 4 * b, 4), b * 64))
    a('s_mov_b64 exec, -1')
    a('s_waitcnt lgkmcnt(0)')
    stamp('ldsw')
    a('s_barrier')
    stamp('bar')
    y = vStage
    for w in range(NW):
        a('ds_read_b64 %s, v%d offset:%d' % (r(y + 2 * w, 2), vEp2, w * PSTR))
    if not cfg.early:
        weights()
    for w in range(NW):
        if cfg.early:
            a('s_waitcnt lgkmcnt(%d)' % (NW - 1 - w))
        a('v_fmac_f32 v%d, v%d, v%d' % (vG, vW + w, y + 2 * w))
        a('v_fmac_f32 v%d, v%d, v%d' % (vG + 1, vW + w, y + 2 * w + 1))
    stamp('red')
    a('s_cmp_eq_u32 s3, s%d' % sJ)
    a('s_cbranch_scc1 L_consumer')
    if cfg.local:
        a('s_cmp_eq_u32 s%d, 1' % sFlag)
        a('s_cbranch_scc0 L_far')
        if not cfg.nopub:
            a('global_store_dwordx4 v%d, %s, s[20:21]' % (vPub, r(vG, 4)))
        stamp('published')
        n_pub = len(stamps)
        dump_stamps()
        a('s_endpgm')
        a.label('L_far')
    a('global_store_dwordx4 v%d, %s, s[20:21] sc1' % (vPub, r(vG, 4)))
    if not cfg.local:
        stamp('published')
    dump_stamps()
    a('s_endpgm')
    a.label('L_consumer')
    z = x + 16
    a.label('L_poll')
    if cfg.nopoll:
        a('s_branch L_polled2')
    for k in range(3):
        a('global_load_dwordx4 %s, v%d, s[20:21] %s' % (r(z + 4 * k, 4), vPa + k, cfg.pollpol))
    a('s_waitcnt vmcnt(0)')
    if cfg.epoch:
        for k in range(3):
            a('v_readfirstlane_b32 s%d, v%d' % (sT0 + k, z + 4 * k + 2))
        a('v_xor_b32 v%d, s%d, v%d' % (vT1, sTag, z + 3))
        a('v_xor_b32 v%d, s%d, v%d' % (vT2, sTag, z + 7))
        a('v_xor_b32 v%d, s%d, v%d' % (vT3, sTag, z + 11))
        a('v_or3_b32 v%d, v%d, v%d, v%d' % (vT1, vT1, vT2, vT3))
        a('v_xor_b32 v%d, s%d, v%d' % (vT0, sT0, z + 2))
        a('v_xor_b32 v%d, s%d, v%d' % (vT2, sT0 + 1, z + 6))
        a('v_xor_b32 v%d, s%d, v%d' % (vT3, sT0 + 2, z + 10))
        a('v_or3_b32 v%d, v%d, v%d, v%d' % (vT0, vT0, vT2, vT3))
        a('v_or_b32 v%d, v%d, v%d' % (vT1, vT1, vT0))
        a('v_cmp_ne_u32 vcc, 0, v%d' % vT1)
    else:
        a('v_max3_u32 v%d, v%d, v%d, v%d' % (vT1, z, z + 1, z + 2))
        a('v_max3_u32 v%d, v%d, v%d, v%d' % (vT2, z + 3, z + 4, z + 5))
        a('v_max3_u32 v%d, v%d, v%d, v%d' % (vT3, z + 6, z + 7, z + 8))
        a('v_max3_u32 v%d, v%d, v%d, v%d' % (vT1, vT1, z + 9, z + 10))
        a('v_max3_u32 v%d, v%d, v%d, v%d' % (vT2, vT2, vT3, z + 11))
        a('v_max_u32 v%d, v%d, v%d' % (vT1, vT1, vT2))
        a('v_cmp_eq_u32 vcc, -1, v%d' % vT1)
    spin_guard('L_end')
    a.nop(5)
    if cfg.psleep:
        a('s_cbranch_vccz L_polled')
        a('s_sleep %d' % cfg.psleep)
        a('s_branch L_poll')
        a.label('L_polled')
    else:
        a('s_cbranch_vccnz L_poll')
    if cfg.nopoll:
        a.label('L_polled2')
    stamp('polled')
    ms = [vG + 2, z + 2, z + 6, z + 10]
    o0 = [vG, z, z + 4, z + 8]
    ls = [vG + 3, z + 3, z + 7, z + 11]
    a('v_max3_f32 v%d, v%d, v%d, v%d' % (vM, ms[0], ms[1], ms[2]))
    a('v_max_f32 v%d, v%d, v%d' % (vM, vM, ms[3]))
    for k in range(4):
        a('v_sub_f32 v%d, v%d, v%d' % (ms[k], ms[k], vM))
    for k in range(4):
        a('v_exp_f32 v%d, v%d' % (ms[k], ms[k]))
    if cfg.epoch:
        a('v_add_f32 v%d, v%d, v%d' % (vT3, ms[0], ms[1]))
        a('v_add_f32 v%d, v%d, v%d' % (vT0, ms[2], ms[3]))
        a('v_mul_f32 v%d, v%d, v%d' % (vT1, ms[0], o0[0]))
        a('v_mul_f32 v%d, v%d, v%d' % (vT2, ms[0], o0[0] + 1))
        a('v_add_f32 v%d, v%d, v%d' % (vT3, vT3, vT0))
    else:
        a('v_mul_f32 v%d, v%d, v%d' % (vT3, ms[0], ls[0]))
        a('v_mul_f32 v%d, v%d, v%d' % (vT1, ms[0], o0[0]))
        a('v_mul_f32 v%d, v%d, v%d' % (vT2, ms[0], o0[0] + 1))
        for k in range(1, 4):
            a('v_fmac_f32 v%d, v%d, v%d' % (vT3, ms[k], ls[k]))
    a('v_rcp_f32 v%d, v%d' % (vT3, vT3))
    for k in range(1, 4):
        a('v_fmac_f32 v%d, v%d, v%d' % (vT1, ms[k], o0[k]))
        a('v_fmac_f32 v%d, v%d, v%d' % (vT2, ms[k], o0[k] + 1))
    a('v_mul_f32 v%d, v%d, v%d' % (vT1, vT1, vT3))
    a('v_mul_f32 v%d, v%d, v%d' % (vT2, vT2, vT3))
    a('v_cvt_pk_bf16_f32 v%d, v%d, v%d' % (vT1, vT1, vT2))
    a('global_store_dword v%d, v%d, s[16:17]' % (vOut, vT1))
    if cfg.epoch and not cfg.noEst:
        a('s_lshl_b32 s%d, s%d, 7' % (sT0, sP))
        a('s_add_u32 s%d, s%d, %d' % (sT0, sT0, EOFF))
        a('v_mov_b32 v%d, s%d' % (vT0, sT0))
        a('v_mov_b32 v%d, s%d' % (vT2, sTag))
        a('s_cmp_eq_u32 s%d, 0' % sJ)
        a('s_cbranch_scc0 L_noEst')
        a('s_mov_b64 exec, 1')
        a('global_store_dword v%d, v%d, s[20:21]' % (vT0, vT2))
        a.label('L_noEst')
    stamp('out')
    dump_stamps()
    a.label('L_end')
    a('s_endpgm')
    if cfg.cpf:
        a.label('L_codeend')
    return a, LDS, nvgpr


KD = """.section .rodata,"a"
.p2align 6
.amdhsa_kernel %s
  .amdhsa_next_free_vgpr %d
  .amdhsa_next_free_sgpr %d
  .amdhsa_accum_offset %d
  .amdhsa_group_segment_fixed_size 0
  .amdhsa_kernarg_size 72
  .amdhsa_user_sgpr_count 2
  .amdhsa_user_sgpr_kernarg_segment_ptr 1
  .amdhsa_system_sgpr_workgroup_id_x 1
.end_amdhsa_kernel
"""


def kernel_text(name, body):
    return ('.text\n.globl %s\n.p2align 8\n.type %s,@function\n%s:\n' % (name, name, name)) + body


def generate(cfg):
    a, lds, nv = gen_main(cfg)
    out = HEADER
    out += '; @launch grid=(256,1,1) block=(%d,1,1) lds=%d\n' % (256, lds)
    out += '.amdgcn_target "amdgcn-amd-amdhsa--gfx950"\n'
    out += kernel_text(KMAIN, a.finalize())
    nva = (nv + 7) // 8 * 8
    out += KD % (KMAIN, nva, 100, (nva + 3) // 4 * 4)
    return out


if __name__ == '__main__':
    ap = argparse.ArgumentParser()
    ap.add_argument('-o', default='cdna_kernels/' + NAME + '.s')
    ap.add_argument('opts', nargs='*', help='key=value')
    args = ap.parse_args()
    kw = {}
    for o in args.opts:
        k, v = o.split('=', 1)
        try:
            v = int(v)
        except ValueError:
            pass
        kw[k] = v
    cfg = Cfg(**kw)
    txt = generate(cfg)
    open(args.o, 'w').write(txt)
    print('wrote', args.o, len(txt), 'bytes')
    if cfg.stamp:
        open(args.o[:-2] + '.names', 'w').write('\n'.join(cfg.stamp_names) + '\n')
```

```python
import argparse
import math
import re
import struct
import sys
import os

sys.path.insert(0, os.path.dirname(os.path.abspath(__file__)))
from asmlib import Asm

NAME = 'standalone__tree_speculative_verify_tree_attention_over_candidate_token_tree__decode'
KMAIN = NAME + '_kernel'

HEADER = """; Kernarg layout for this problem (72 bytes, ptrs only, base s[0:1]):
;   offset  24: d_in[3] k_tree  shape=(8, 8, 1, 128) dtype=bfloat16 strides=(2048, 256, 256, 2) contiguous=True
;   offset  32: d_in[4] v_tree  shape=(8, 8, 1, 128) dtype=bfloat16 strides=(2048, 256, 256, 2) contiguous=True
;   offset  40: d_in[5] tree_mask  shape=(8, 1, 1) dtype=bfloat16 strides=(2, 2, 2) contiguous=True
"""


def f2u(x):
    return struct.unpack('<I', struct.pack('<f', x))[0]


def hx(x):
    return '0x%08x' % (x & 0xffffffff)


SCALE_LOG2E = (128.0 ** -0.5) * math.log2(math.e)
NEG_BIG_LOG2E = -1.0e9 * math.log2(math.e)

PIECE = 1056
TILE = 8 * PIECE
NW = 4
NT = 8


class Cfg:
    def __init__(self, **kw):
        self.ns = 4
        self.pol = 'nt'
        self.low = 'w0j0w1j1'
        self.high = 'n0n2n1'
        self.stamp = 0
        self.local = 1
        self.early = 1
        self.psleep = 0
        self.treeskip = 0
        self.mix = 1
        self.pubpol = ''
        self.stag = 0
        self.nok = 0
        self.nov = 0
        self.nosm = 0
        self.notree = 0
        self.prio = 0
        self.wpos = '10,11'
        self.ppos = ''
        self.qpos = -1
        self.tpos = 0
        self.epos = 0
        self.compact = 1
        self.tight = 1
        self.map0 = 0
        self.vpol = 'same'
        self.pfin = 1
        self.pollpol = 'sc1'
        self.nopub = 0
        self.nopoll = 0
        self.noEst = 0
        self.noE = 0
        self.noX = 0
        self.epoch = 1
        self.plainld = 0
        self.nclr = 4
        self.clrpol = 'sc1'
        self.flagst = 1
        self.noflagld = 0
        self.helper = 0
        self.lock = 2
        self.diag = 0
        self.ilv = 1
        self.ihigh = 'n0n1n2j0j1'
        self.split = 1
        self.cpf = 0
        self.xr = 0
        self.spin = 0
        self.__dict__.update(kw)


class VM:
    def __init__(self, a):
        self.a = a
        self.ops = []

    def issue(self, text, tag):
        self.a(text)
        self.ops.append(tag)

    def count(self, *tags):
        last = max(i for i, t in enumerate(self.ops) if t in tags)
        n = len(self.ops) - 1 - last
        assert n <= 63, n
        return n

    def wait(self, *tags):
        self.a('s_waitcnt vmcnt(%d)' % self.count(*tags))


def gen_main(cfg):
    a = Asm()
    vm = VM(a)
    NS = cfg.ns
    RING = NS * TILE
    RED = NW * RING
    PSTR = 2240
    MLOFF = 2112
    LDS = RED + NW * PSTR
    assert LDS <= 163840, LDS

    sP, sJ = 36, 37
    sBase, sOff, sLds, sC = 32, 33, 34, 35
    sT0, sT1, sT2, sT3 = 38, 39, 40, 41
    sBig, sXcc, sFlag, sSpin = 42, 43, 22, 23
    s4k = 97
    sE, sTag = 98, 99
    EOFF = 0x200000
    XOFF = 0x210000
    vL16w = 3
    vLane, vL16, vL16b, vK, vV = 1, 2, 3, 4, 5
    vT0, vT1, vT2, vT3 = 6, 7, 8, 9
    vTree, vVt, vMask = 10, 11, 12
    vM, vL = 13, 14
    vFlagA = 0
    vL2 = 12
    vQ = 16
    vStage = 32
    vS = 64
    vP = vS + NT * 8
    vO = vP + NT * 4
    vKt = vO + 32
    vTD = vKt + 16
    nvgpr = vTD + 4
    vPm = vO + 8
    sMask = 88
    vFlag = vTD + 2
    vMLa = vTD
    vEp1, vEp2, vEp3, vPub, vOut = vKt, vKt + 1, vKt + 2, vKt + 3, vKt + 4
    vPa = vKt + 5
    vG = vKt + 8
    vW = vKt + 12
    assert vG % 2 == 0

    def r(base, n):
        return 'v[%d:%d]' % (base, base + n - 1)

    stamps = []

    def stamp(name):
        if not cfg.stamp:
            return
        i = len(stamps)
        assert 44 + 2 * i + 1 < 96
        stamps.append(name)
        a('s_memrealtime s[%d:%d]' % (44 + 2 * i, 45 + 2 * i))
        a('s_waitcnt lgkmcnt(0)')

    def dump_stamps():
        if not cfg.stamp:
            return
        v = vS
        a('v_mov_b32 v%d, 0' % v)
        for i in range(len(stamps)):
            a('v_writelane_b32 v%d, s%d, %d' % (v, 44 + 2 * i, i))
        a('v_writelane_b32 v%d, s%d, 62' % (v, sXcc))
        a('s_lshl_b32 s%d, s2, 3' % sT3)
        a('s_add_u32 s%d, s%d, s3' % (sT3, sT3))
        a('s_lshl_b32 s%d, s%d, 8' % (sT3, sT3))
        a('s_add_u32 s%d, s%d, 0x8000000' % (sT3, sT3))
        a('v_lshlrev_b32 v%d, 2, v%d' % (v + 1, vLane))
        a('v_add_u32 v%d, s%d, v%d' % (v + 1, sT3, v + 1))
        a('global_store_dword v%d, v%d, s[20:21]' % (v + 1, v))
        cfg.stamp_names = list(stamps)

    def spin_guard(exit_label):
        if cfg.spin:
            a('s_sub_u32 s%d, s%d, 1' % (sSpin, sSpin))
            a('s_cbranch_scc1 ' + exit_label)

    if cfg.ilv:
        hi = re.findall(r'[nj]\d', cfg.ihigh)
        assert sorted(hi) == ['j0', 'j1', 'n0', 'n1', 'n2']
        npos = {int(nm[1]): 15 + pos for pos, nm in enumerate(hi) if nm[0] == 'n'}
        jpos = {int(nm[1]): 15 + pos for pos, nm in enumerate(hi) if nm[0] == 'j'}
    else:
        hi = re.findall(r'n\d', cfg.high)
        assert sorted(hi) == ['n0', 'n1', 'n2']
        npos = {int(nm[1]): 17 + pos for pos, nm in enumerate(hi)}

    def tile_delta(t):
        return sum(((t >> k) & 1) << npos[k] for k in range(3))

    def issue_tile(n, compact=False):
        isk = n < NT
        slot = n % NS
        srd = 's[24:27]' if isk else 's[28:31]'
        d = tile_delta(n % NT)
        if cfg.ilv:
            for i in range(8):
                if (cfg.lock == 3 and i == 4) or (cfg.lock == 4 and i in (2, 4, 6)) or (cfg.lock == 5 and i > 0):
                    a('s_barrier')
                if compact:
                    if i > 0:
                        a('s_add_u32 m0, m0, s%d' % sBig)
                else:
                    a('s_add_u32 m0, s%d, %d' % (sLds, slot * TILE + i * PIECE))
                if cfg.wpos == '10,11':
                    if i == 0:
                        if d:
                            a('s_xor_b32 s%d, s%d, %d' % (sOff, sBase, d))
                        else:
                            a('s_mov_b32 s%d, s%d' % (sOff, sBase))
                    else:
                        a('s_add_u32 s%d, s%d, s%d' % (sOff, sOff, s4k))
                else:
                    wp = [int(x) for x in cfg.wpos.split(',')]
                    pp = [int(x) for x in cfg.ppos.split(',')] if cfg.ppos else [b for b in range(10, 15) if b not in wp]
                    assert sorted(pp + wp) == [10, 11, 12, 13, 14]
                    off = sum(((i >> k) & 1) << pp[k] for k in range(3))
                    a('s_xor_b32 s%d, s%d, %d' % (sOff, sBase, d ^ off))
                txt = 'buffer_load_dwordx4 v%d, %s, s%d offen' % (vL16w, srd, sOff)
                pol = cfg.pol if isk else (cfg.vpol if cfg.vpol != 'same' else cfg.pol)
                if pol and pol != 'none':
                    txt += ' ' + pol.replace('+', ' ')
                txt += ' lds'
                vm.issue(txt, ('tile', n))
            return
        if d:
            a('s_xor_b32 s%d, s%d, %d' % (sOff, sBase, d))
            so = sOff
        else:
            so = sBase
        for i in range(8):
            if compact:
                if i > 0:
                    if i == 4:
                        a('s_add_u32 m0, m0, s%d' % sBig)
                    else:
                        a('s_add_u32 m0, m0, 32')
            else:
                m0 = slot * TILE + i * 32 + (4096 if i >= 4 else 0)
                a('s_add_u32 m0, s%d, %d' % (sLds, m0))
            voff = vL16 if i < 4 else vL16b
            off = (i & 3) * 1024
            txt = 'buffer_load_dwordx4 v%d, %s, s%d offen' % (voff, srd, so)
            if off:
                txt += ' offset:%d' % off
            if cfg.pol:
                txt += ' ' + cfg.pol.replace('+', ' ')
            txt += ' lds'
            vm.issue(txt, ('tile', n))

    def epoch_load():
        a('s_lshl_b32 s%d, s%d, 7' % (sT2, sP))
        a('s_add_u32 s%d, s%d, %d' % (sT2, sT2, EOFF))
        if not cfg.noE:
            a('s_load_dword s%d, s[20:21], s%d' % (sE, sT2))

    def q_addr():
        a('v_and_b32 v%d, 3, v%d' % (vT0, vLane))
        a('v_lshlrev_b32 v%d, 8, v%d' % (vT0, vT0))
        a('v_lshrrev_b32 v%d, 4, v%d' % (vT1, vLane))
        a('v_lshlrev_b32 v%d, 4, v%d' % (vT1, vT1))
        a('s_lshl_b32 s%d, s%d, 10' % (sT0, sP))
        a('v_add3_u32 v%d, v%d, v%d, s%d' % (vT0, vT0, vT1, sT0))

    def q_loads():
        if cfg.qpos >= 0:
            q_addr()
        for s in range(4):
            vm.issue('global_load_dwordx4 %s, v%d, s[4:5] offset:%d' % (r(vQ + 4 * s, 4), vT0, s * 64), 'small')

    def tree_addr():
        a('v_lshrrev_b32 v%d, 4, v%d' % (vT1, vLane))
        a('v_lshlrev_b32 v%d, 4, v%d' % (vT1, vT1))
        a('s_lshl_b32 s%d, s%d, 8' % (sT1, sP))
        a('v_add_u32 v%d, s%d, v%d' % (vT1, sT1, vT1))
        a('v_lshlrev_b32 v%d, 2, v%d' % (vT2, vLane))
        a('v_add_u32 v%d, s%d, v%d' % (vT2, sT1, vT2))
        a('s_lshr_b32 s%d, s%d, 3' % (sT2, sP))
        a('s_lshl_b32 s%d, s%d, 1' % (sT2, sT2))
        a('v_mov_b32 v%d, s%d' % (vT3, sT2))

    def tree_loads():
        if cfg.treeskip:
            a('s_cmp_eq_u32 s%d, 0' % sJ)
            a('s_cbranch_scc0 L_notreeld')
        if cfg.tpos >= 0:
            tree_addr()
        for s in range(4):
            vm.issue('global_load_dwordx4 %s, v%d, s[10:11] offset:%d' % (r(vKt + 4 * s, 4), vT1, s * 64), 'tree')
        vm.issue('global_load_dword v%d, v%d, s[12:13]' % (vVt, vT2), 'tree')
        vm.issue('global_load_ushort v%d, v%d, s[14:15]' % (vMask, vT3), 'tree')
        if cfg.treeskip:
            a.label('L_notreeld')

    if cfg.stamp:
        a('s_cmp_ge_u32 s2, 256')
        a('s_cbranch_scc1 L_end')
        stamp('entry')
    a('s_load_dwordx16 s[4:19], s[0:1], 0')
    a('s_load_dwordx2 s[20:21], s[0:1], 64')
    if not cfg.stamp:
        a('s_cmp_ge_u32 s2, 256')
        a('s_cbranch_scc1 L_end')
    a('v_readfirstlane_b32 s3, v0')
    a('v_and_b32 v%d, 63, v0' % vLane)
    a('v_lshlrev_b32 v%d, 4, v%d' % (vL16, vLane))
    a('s_mov_b32 s26, 0x4000000')
    a('s_mov_b32 s27, 0x20000')
    a('s_lshr_b32 s3, s3, 6')
    if cfg.map0:
        a('s_lshr_b32 s%d, s2, 2' % sP)
        a('s_and_b32 s%d, s2, 3' % sJ)
    else:
        a('s_and_b32 s%d, s2, 7' % sT0)
        a('s_bfe_u32 s%d, s2, 0x20003' % sJ)
        a('s_lshr_b32 s%d, s2, 5' % sT1)
        a('s_lshl_b32 s%d, s%d, 3' % (sP, sT0))
        a('s_add_u32 s%d, s%d, s%d' % (sP, sP, sT1))
    if cfg.ilv:
        if jpos[1] == jpos[0] + 1:
            a('s_lshl_b32 s%d, s%d, %d' % (sT0, sJ, jpos[0]))
        else:
            a('s_and_b32 s%d, s%d, 1' % (sT0, sJ))
            a('s_lshl_b32 s%d, s%d, %d' % (sT0, sT0, jpos[0]))
            a('s_lshr_b32 s%d, s%d, 1' % (sT1, sJ))
            a('s_lshl_b32 s%d, s%d, %d' % (sT1, sT1, jpos[1]))
            a('s_or_b32 s%d, s%d, s%d' % (sT0, sT0, sT1))
        wp = [int(x) for x in cfg.wpos.split(',')]
        if wp[1] == wp[0] + 1:
            a('s_lshl_b32 s%d, s3, %d' % (sT1, wp[0]))
        else:
            a('s_and_b32 s%d, s3, 1' % sT1)
            a('s_lshl_b32 s%d, s%d, %d' % (sT1, sT1, wp[0]))
            a('s_lshr_b32 s%d, s3, 1' % sT2)
            a('s_lshl_b32 s%d, s%d, %d' % (sT2, sT2, wp[1]))
            a('s_or_b32 s%d, s%d, s%d' % (sT1, sT1, sT2))
        a('v_add_u32 v%d, s%d, v%d' % (vL16w, sT1, vL16))
        a('s_movk_i32 s%d, 0x1000' % s4k)
    elif cfg.low == 'w0w1j0j1':
        a('s_lshl_b32 s%d, s%d, 2' % (sT0, sJ))
        a('s_add_u32 s%d, s%d, s3' % (sT0, sT0))
        a('s_lshl_b32 s%d, s%d, 13' % (sT0, sT0))
    elif cfg.low == 'w0j0w1j1':
        a('s_lshl_b32 s%d, s%d, 2' % (sT0, sJ))
        a('s_or_b32 s%d, s%d, s3' % (sT0, sT0))
        a('s_and_b32 s%d, s%d, 6' % (sT1, sT0))
        a('s_lshr_b32 s%d, s%d, 1' % (sT2, sT1))
        a('s_xor_b32 s%d, s%d, s%d' % (sT2, sT2, sT1))
        a('s_and_b32 s%d, s%d, 2' % (sT2, sT2))
        a('s_mul_i32 s%d, s%d, 3' % (sT2, sT2))
        a('s_xor_b32 s%d, s%d, s%d' % (sT0, sT0, sT2))
        a('s_lshl_b32 s%d, s%d, 13' % (sT0, sT0))
    else:
        raise ValueError(cfg.low)
    a('s_lshl_b32 s%d, s%d, 20' % (sBase, sP))
    a('s_add_u32 s%d, s%d, s%d' % (sBase, sBase, sT0))
    if cfg.xr:
        if cfg.xr == 1:
            a('s_lshr_b32 s%d, s2, 5' % sT0)
        elif cfg.xr == 2:
            a('s_and_b32 s%d, s2, 7' % sT0)
        elif cfg.xr == 3:
            a('s_lshr_b32 s%d, s2, 5' % sT0)
            a('s_xor_b32 s%d, s%d, s2' % (sT0, sT0))
            a('s_and_b32 s%d, s%d, 7' % (sT0, sT0))
        elif cfg.xr == 4:
            a('s_bfe_u32 s%d, s2, 0x20005' % sT0)
        elif cfg.xr == 5:
            a('s_and_b32 s%d, s2, 3' % sT0)
        elif cfg.xr == 6:
            a('s_and_b32 s%d, s2, 1' % sT0)
            a('s_lshl_b32 s%d, s%d, 2' % (sT0, sT0))
        elif cfg.xr == 7:
            a('s_bfe_u32 s%d, s2, 0x10005' % sT0)
            a('s_lshl_b32 s%d, s%d, 2' % (sT0, sT0))
        elif cfg.xr == 8:
            a('s_mov_b32 s%d, s%d' % (sT0, sJ))
        a('s_lshl_b32 s%d, s%d, %d' % (sT0, sT0, 15 if cfg.ilv else 17))
        a('s_xor_b32 s%d, s%d, s%d' % (sBase, sBase, sT0))
    a('s_mul_i32 s%d, s3, %d' % (sLds, RING))
    if cfg.ilv:
        a('s_movk_i32 s%d, %d' % (sBig, PIECE))
    else:
        a('s_movk_i32 s%d, 4128' % sBig)
        a('v_add_u32 v%d, 4096, v%d' % (vL16b, vL16))
    a('s_mov_b32 m0, s%d' % sLds)
    if cfg.qpos < 0:
        q_addr()
    if cfg.tpos < 0:
        tree_addr()
    a('s_waitcnt lgkmcnt(0)')
    a('s_mov_b64 s[24:25], s[6:7]')
    stamp('karg')
    if cfg.qpos < 0:
        q_loads()
    if cfg.tpos < 0:
        tree_loads()
    if cfg.epos < 0:
        epoch_load()
    issue_tile(0, compact=True)
    a('s_mov_b64 s[28:29], s[8:9]')
    a('s_mov_b64 s[30:31], s[26:27]')
    a('s_lshl_b32 s2, s%d, 2' % sP)
    a('s_add_u32 s2, s2, s%d' % sJ)
    a('s_getreg_b32 s%d, hwreg(HW_REG_XCC_ID, 0, 4)' % sXcc)
    if cfg.spin:
        a('s_mov_b32 s%d, %d' % (sSpin, cfg.spin))
    if cfg.prio:
        pr = {1: [0, 1, 2, 3], 2: [3, 2, 1, 0], 3: [0, 0, 1, 1], 4: [0, 1, 0, 1]}[cfg.prio]
        for w in range(4):
            if pr[w]:
                a('s_cmp_eq_u32 s3, %d' % w)
                a('s_cbranch_scc0 L_prio%d' % w)
                a('s_setprio %d' % pr[w])
                a.label('L_prio%d' % w)

    if cfg.cpf:
        a('s_getpc_b64 s[%d:%d]' % (sT0, sT0 + 1))
        a.label('L_pc')
        a('s_sub_u32 s%d, s%d, L_pc-%s' % (sT0, sT0, KMAIN))
        a('s_subb_u32 s%d, s%d, 0' % (sT0 + 1, sT0 + 1))
        a('s_lshl_b32 s%d, s%d, 2' % (sT2, sJ))
        a('s_add_u32 s%d, s%d, s3' % (sT2, sT2))
        a('s_lshl_b32 s%d, s%d, 10' % (sT2, sT2))
        a('s_min_u32 s%d, s%d, L_codeend-%s-1024' % (sT2, sT2, KMAIN))
        a('v_add_u32 v%d, s%d, v%d' % (vT0, sT2, vL16))
        a('v_mov_b32 v%d, s%d' % (vT1, sT0 + 1))
        a('v_add_co_u32 v%d, vcc, s%d, v%d' % (vT0, sT0, vT0))
        a('v_addc_co_u32 v%d, vcc, 0, v%d, vcc' % (vT1, vT1))
        a('global_load_dwordx4 %s, %s, off' % (r(vO, 4), r(vT0, 2)))
    if cfg.epos == 0:
        epoch_load()
    if cfg.qpos == 0:
        q_loads()
    if cfg.tpos == 0:
        tree_loads()
    for n in range(1, NS):
        if cfg.lock >= 2:
            a('s_barrier')
        issue_tile(n)
        if cfg.tpos == n:
            tree_loads()

    a('v_and_b32 v%d, 7, v%d' % (vT0, vLane))
    a('v_mul_u32_u24 v%d, %d, v%d' % (vT0, PIECE, vT0))
    a('v_bfe_u32 v%d, v%d, 3, 1' % (vT1, vLane))
    a('v_lshlrev_b32 v%d, 8, v%d' % (vT1, vT1))
    a('v_lshrrev_b32 v%d, 4, v%d' % (vT2, vLane))
    a('v_lshlrev_b32 v%d, 4, v%d' % (vT2, vT2))
    a('v_add3_u32 v%d, v%d, v%d, v%d' % (vK, vT0, vT1, vT2))
    a('v_add_u32 v%d, s%d, v%d' % (vK, sLds, vK))
    a('v_bfe_u32 v%d, v%d, 2, 3' % (vT0, vLane))
    a('v_mul_u32_u24 v%d, %d, v%d' % (vT0, PIECE, vT0))
    a('v_lshrrev_b32 v%d, 5, v%d' % (vT1, vLane))
    a('v_lshlrev_b32 v%d, 8, v%d' % (vT1, vT1))
    a('v_and_b32 v%d, 3, v%d' % (vT2, vLane))
    a('v_lshlrev_b32 v%d, 3, v%d' % (vT2, vT2))
    a('v_add3_u32 v%d, v%d, v%d, v%d' % (vV, vT0, vT1, vT2))
    a('v_add_u32 v%d, s%d, v%d' % (vV, sLds, vV))
    a('s_mov_b32 s%d, %s' % (sC, hx(f2u(SCALE_LOG2E))))
    if cfg.compact:
        for i in range(8):
            a('v_mov_b32 v%d, 0' % (vO + i))
        for g in range(4):
            a('s_mov_b32 s%d, 0x%x' % (sMask + 2 * g, 0x000f000f << (4 * g)))
            a('s_mov_b32 s%d, s%d' % (sMask + 2 * g + 1, sMask + 2 * g))
    elif not cfg.cpf:
        for i in range(32):
            a('v_mov_b32 v%d, 0' % (vO + i))

    def tree_score():
        if cfg.treeskip:
            a('s_cmp_eq_u32 s%d, 0' % sJ)
            a('s_cbranch_scc1 L_tree')
            a('v_mov_b32 v%d, 0xff800000' % vTree)
            a('v_mov_b32 v%d, 0' % vVt)
            a('s_branch L_treedone')
            a.label('L_tree')
        for s in range(4):
            a('v_mfma_f32_16x16x32_bf16 %s, %s, %s, %s' % (
                r(vTD, 4), r(vKt + 4 * s, 4), r(vQ + 4 * s, 4), '0' if s == 0 else r(vTD, 4)))
        a('v_lshlrev_b32 v%d, 16, v%d' % (vMask, vMask))
        a('v_sub_f32 v%d, 1.0, v%d' % (vMask, vMask))
        a('v_mul_f32 v%d, %s, v%d' % (vMask, hx(f2u(NEG_BIG_LOG2E)), vMask))
        if not cfg.treeskip:
            a('s_cmp_eq_u32 s%d, 0' % sJ)
            a('s_cselect_b32 s%d, 0, 0xff800000' % sT1)
        a('v_readlane_b32 s%d, v%d, s3' % (sT2, vTD))
        a('v_mov_b32 v%d, s%d' % (vTree, sT2))
        a('v_fma_f32 v%d, v%d, s%d, v%d' % (vTree, vTree, sC, vMask))
        if not cfg.treeskip:
            a('v_add_f32 v%d, s%d, v%d' % (vTree, sT1, vTree))
        else:
            a.label('L_treedone')

    tree_done = []

    def k_tile(n):
        t = n
        slot = n % NS
        if n == 0:
            if cfg.tpos <= 0:
                vm.wait(('tile', 0), 'small', 'tree')
            else:
                vm.wait(('tile', 0), 'small')
        else:
            vm.wait(('tile', n))
        if n in (0, 3, 7):
            stamp('tile%d' % n)
        if cfg.diag >= 2 or cfg.nok:
            issue_tile(n + NS)
            return
        for w in range(2):
            for s in range(4):
                a('ds_read_b128 %s, v%d offset:%d' % (
                    r(vStage + 16 * w + 4 * s, 4), vK, slot * TILE + w * 512 + s * 64))
        a('s_waitcnt lgkmcnt(0)')
        if n == 0:
            a('s_mul_i32 s%d, s%d, 1664525' % (sTag, sE))
            a('s_add_u32 s%d, s%d, 1013904223' % (sTag, sTag))
            if cfg.local and not cfg.noX:
                a('s_cmp_eq_u32 s3, s%d' % sJ)
                a('s_cbranch_scc0 L_noxcc')
                a('s_or_b32 s%d, s%d, 0x80' % (sT1, sXcc))
                a('s_xor_b32 s%d, s%d, s%d' % (sT1, sT1, sTag))
                a('s_lshl_b32 s%d, s%d, 7' % (sT0, sP))
                a('s_lshl_b32 s%d, s%d, 3' % (sT2, sJ))
                a('s_add_u32 s%d, s%d, s%d' % (sT0, sT0, sT2))
                a('s_add_u32 s%d, s%d, %d' % (sT0, sT0, XOFF))
                a('v_mov_b32 v%d, s%d' % (vT0, sT0))
                a('v_mov_b32 v%d, s%d' % (vT2, sTag))
                a('v_mov_b32 v%d, s%d' % (vT3, sT1))
                a('s_mov_b64 exec, 1')
                a('global_store_dwordx2 v%d, %s, s[20:21] sc1' % (vT0, r(vT2, 2)))
                a('s_mov_b64 exec, -1')
                a.label('L_noxcc')
        if cfg.lock:
            a('s_barrier')
        issue_tile(n + NS)
        for s in range(4):
            for w in range(2):
                d = r(vS + 8 * t + 4 * w, 4)
                a('v_mfma_f32_16x16x32_bf16 %s, %s, %s, %s' % (
                    d, r(vStage + 16 * w + 4 * s, 4), r(vQ + 4 * s, 4), '0' if s == 0 else d))
        if not tree_done and vm.ops.index('tree') < vm.ops.index(('tile', n)) or (n == 0 and cfg.tpos <= 0):
            if not tree_done:
                if not cfg.notree:
                    tree_score()
                tree_done.append(n)

    def xg_reduce(v, op):
        a('v_mov_b32 v%d, v%d' % (vT0, v))
        a('v_permlane32_swap_b32 v%d, v%d' % (vT0, v))
        a('%s v%d, v%d, v%d' % (op, v, v, vT0))
        a('v_mov_b32 v%d, v%d' % (vT0, v))
        a('v_permlane16_swap_b32 v%d, v%d' % (vT0, v))
        a('%s v%d, v%d, v%d' % (op, v, v, vT0))

    def softmax():
        n = NT * 8
        acc = [vM, vT1, vT2, vT3]
        idx = 0
        for k in range(4):
            a('v_max3_f32 v%d, v%d, v%d, v%d' % (acc[k], vS + idx, vS + idx + 1, vS + idx + 2))
            idx += 3
        k = 0
        while idx + 1 < n:
            a('v_max3_f32 v%d, v%d, v%d, v%d' % (acc[k], acc[k], vS + idx, vS + idx + 1))
            idx += 2
            k = (k + 1) % 4
        while idx < n:
            a('v_max_f32 v%d, v%d, v%d' % (acc[k], acc[k], vS + idx))
            idx += 1
        a('v_max3_f32 v%d, v%d, v%d, v%d' % (vM, vM, vT1, vT2))
        a('v_max_f32 v%d, v%d, v%d' % (vM, vM, vT3))
        xg_reduce(vM, 'v_max_f32')
        a('v_mul_f32 v%d, s%d, v%d' % (vM, sC, vM))
        a('v_mov_b32 v%d, 0' % vL)
        a('v_mov_b32 v%d, 0' % vL2)

    def probs(t):
        if cfg.nosm:
            return
        b = vS + 8 * t
        for i in range(8):
            a('v_fma_f32 v%d, v%d, s%d, -v%d' % (b + i, b + i, sC, vM))
        for i in range(8):
            a('v_exp_f32 v%d, v%d' % (b + i, b + i))
        for i in range(4):
            a('v_cvt_pk_bf16_f32 v%d, v%d, v%d' % (vP + 4 * t + i, b + 2 * i, b + 2 * i + 1))
        for i in range(4):
            a('v_add_f32 v%d, v%d, v%d' % (vL, vL, b + 2 * i))
            a('v_add_f32 v%d, v%d, v%d' % (vL2, vL2, b + 2 * i + 1))

    def finish_sum():
        a('v_add_f32 v%d, v%d, v%d' % (vL, vL, vL2))
        xg_reduce(vL, 'v_add_f32')

    def mid_setup():
        a('s_lshl_b32 s%d, s%d, 7' % (sT1, sP))
        a('s_add_u32 s%d, s%d, %d' % (sT1, sT1, XOFF))
        a('v_and_b32 v%d, 7, v%d' % (vFlagA, vLane))
        a('v_lshlrev_b32 v%d, 2, v%d' % (vFlagA, vFlagA))
        a('v_add_u32 v%d, s%d, v%d' % (vFlagA, sT1, vFlagA))
        vm.issue('global_load_dword v%d, v%d, s[20:21]' % (vFlag, vFlagA), 'flag')
        a('s_or_b32 s%d, s%d, 0x80' % (sT1, sXcc))
        a('v_and_b32 v%d, 1, v%d' % (vFlag + 1, vLane))
        a('v_mul_u32_u24 v%d, s%d, v%d' % (vFlag + 1, sT1, vFlag + 1))
        a('v_xor_b32 v%d, s%d, v%d' % (vFlag + 1, sTag, vFlag + 1))
        a('s_lshl_b32 s%d, s%d, 2' % (sT0, sP))
        a('s_add_u32 s%d, s%d, s3' % (sT0, sT0))
        a('s_lshl_b32 s%d, s%d, 2' % (sT0, sT0))
        a('s_add_u32 s%d, s%d, s%d' % (sT0, sT0, sJ))
        a('s_lshl_b32 s%d, s%d, 10' % (sT0, sT0))
        a('v_add_u32 v%d, s%d, v%d' % (vPub, sT0, vL16))
        a('s_lshl_b32 s%d, s2, 12' % sT0)
        for k in range(1, 4):
            a('s_add_u32 s%d, s%d, %d' % (sT1, sJ, k))
            a('s_and_b32 s%d, s%d, 3' % (sT1, sT1))
            a('s_lshl_b32 s%d, s%d, 10' % (sT1, sT1))
            a('s_add_u32 s%d, s%d, s%d' % (sT1, sT1, sT0))
            a('v_add_u32 v%d, s%d, v%d' % (vPa + k - 1, sT1, vL16))
        a('s_lshl_b32 s%d, s2, 8' % sT0)
        a('v_lshlrev_b32 v%d, 2, v%d' % (vOut, vLane))
        a('v_add_u32 v%d, s%d, v%d' % (vOut, sT0, vOut))
        a('s_mul_i32 s%d, s3, %d' % (sT0, PSTR))
        a('s_add_u32 s%d, s%d, %d' % (sT0, sT0, RED))
        a('v_and_b32 v%d, 3, v%d' % (vT0, vLane))
        a('v_mul_u32_u24 v%d, 528, v%d' % (vT1, vT0))
        a('v_lshrrev_b32 v%d, 4, v%d' % (vT2, vLane))
        a('v_lshlrev_b32 v%d, 4, v%d' % (vT3, vT2))
        a('v_add3_u32 v%d, v%d, v%d, s%d' % (vEp1, vT1, vT3, sT0))
        if cfg.compact:
            a('v_bfe_u32 v%d, v%d, 2, 2' % (vT1, vLane))
            a('v_lshl_add_u32 v%d, v%d, 6, v%d' % (vEp1, vT1, vEp1))
        a('v_lshl_add_u32 v%d, v%d, 2, v%d' % (vT2, vT2, vT0))
        a('v_lshlrev_b32 v%d, 3, v%d' % (vMLa, vT2))
        a('v_add_u32 v%d, s%d, v%d' % (vMLa, sT0, vMLa))
        a('s_mul_i32 s%d, s3, 528' % sT0)
        a('s_add_u32 s%d, s%d, %d' % (sT0, sT0, RED))
        a('v_lshlrev_b32 v%d, 3, v%d' % (vEp2, vLane))
        a('v_add_u32 v%d, s%d, v%d' % (vEp2, sT0, vEp2))
        a('s_lshl_b32 s%d, s3, 3' % sT1)
        a('s_add_u32 s%d, s%d, %d' % (sT1, sT1, RED + MLOFF))
        a('v_mov_b32 v%d, s%d' % (vEp3, sT1))

    def write_ml():
        a('v_mov_b32 v%d, v%d' % (vG, vM))
        a('v_mov_b32 v%d, v%d' % (vG + 1, vL))
        a('s_mov_b32 exec_lo, 0x000f000f')
        a('s_mov_b32 exec_hi, 0x000f000f')
        a('ds_write_b64 v%d, %s offset:%d' % (vMLa, r(vG, 2), MLOFF))
        a('s_mov_b64 exec, -1')

    x = vS
    mreg = [x + 2 * w for w in range(NW)]
    lreg = [x + 1 + 2 * w for w in range(NW)]

    def weights():
        for w in range(NW):
            a('ds_read_b64 %s, v%d offset:%d' % (r(x + 2 * w, 2), vEp3, w * PSTR))
        a('v_lshlrev_b32 v%d, 16, v%d' % (vG, vVt))
        a('v_and_b32 v%d, 0xffff0000, v%d' % (vG + 1, vVt))
        a('s_waitcnt lgkmcnt(0)')
        a('v_max3_f32 v%d, v%d, v%d, v%d' % (vG + 2, vTree, mreg[0], mreg[1]))
        a('v_max3_f32 v%d, v%d, v%d, v%d' % (vG + 2, vG + 2, mreg[2], mreg[3]))
        for w in range(NW):
            a('v_sub_f32 v%d, v%d, v%d' % (vW + w, mreg[w], vG + 2))
        a('v_sub_f32 v%d, v%d, v%d' % (vTree, vTree, vG + 2))
        for w in range(NW):
            a('v_exp_f32 v%d, v%d' % (vW + w, vW + w))
        a('v_exp_f32 v%d, v%d' % (vTree, vTree))
        a('v_mov_b32 v%d, v%d' % (vG + 3, vTree))
        for w in range(NW):
            a('v_fmac_f32 v%d, v%d, v%d' % (vG + 3, vW + w, lreg[w]))
        if cfg.epoch:
            a('v_rcp_f32 v%d, v%d' % (vT1, vG + 3))
            a('v_log_f32 v%d, v%d' % (vT2, vG + 3))
            a('v_mov_b32 v%d, s%d' % (vG + 3, sTag))
            a('v_mul_f32 v%d, v%d, v%d' % (vTree, vTree, vT1))
            for w in range(NW):
                a('v_mul_f32 v%d, v%d, v%d' % (vW + w, vW + w, vT1))
            a('v_add_f32 v%d, v%d, v%d' % (vG + 2, vG + 2, vT2))
            a('v_mul_f32 v%d, v%d, v%d' % (vG, vG, vTree))
            a('v_mul_f32 v%d, v%d, v%d' % (vG + 1, vG + 1, vTree))

    def pv_mfma(t, b):
        if cfg.compact:
            d = r(vO + 4 * (b >> 2), 4)
            a('v_mfma_f32_16x16x32_bf16 %s, %s, %s, %s' % (d, r(vStage + 4 * b, 4), r(vPm + 4 * (b & 3), 4), d))
        else:
            a('v_mfma_f32_16x16x32_bf16 %s, %s, %s, %s' % (
                r(vO + 4 * b, 4), r(vStage + 4 * b, 4), r(vP + 4 * t, 4), r(vO + 4 * b, 4)))

    flag_read = []
    sched = {0: [1, 2], 1: [3, 4], 2: [5, 6], 3: [7]} if cfg.split else {}

    def after_step(t):
        for u in sched.get(t, []):
            probs(u)
        if cfg.split and t == 0:
            mid_setup()
        if cfg.split and t == 3:
            finish_sum()
            write_ml()

    def v_tile(n):
        t = n - NT
        slot = n % NS
        last = (n == 2 * NT - 1)
        if last and cfg.early and not cfg.diag:
            a('s_waitcnt lgkmcnt(0)')
            a('s_barrier')
            weights()
        if cfg.compact:
            for g in range(4):
                for i in range(4):
                    a('v_cndmask_b32 v%d, 0, v%d, s[%d:%d]' % (vPm + 4 * g + i, vP + 4 * t + i, sMask + 2 * g, sMask + 2 * g + 1))
        vm.wait(('tile', n))
        if not flag_read and 'flag' in vm.ops and vm.ops.index('flag') < vm.ops.index(('tile', n)):
            a('v_cmp_ne_u32 vcc, v%d, v%d' % (vFlag, vFlag + 1))
            a.nop(5)
            a('s_cmp_eq_u64 vcc, 0')
            a('s_cselect_b32 s%d, 1, 0' % sFlag)
            if cfg.pfin:
                a('s_cbranch_scc0 L_nopfin')
                a('s_cmp_eq_u32 s3, s%d' % sJ)
                a('s_cbranch_scc0 L_nopfin')
                for k in range(3):
                    a('global_load_dword v%d, v%d, s[20:21]' % (vTD + 1, vPa + k))
                a.label('L_nopfin')
            flag_read.append(n)
        if n in (8, 11, 14, 15):
            stamp('tile%d' % n)
        if cfg.diag >= 2 or cfg.nov:
            if n + NS < 2 * NT:
                issue_tile(n + NS)
                if cfg.nov and cfg.diag < 2:
                    after_step(t)
            return
        for b in range(8):
            for w in range(2):
                a('ds_read_b64_tr_b16 %s, v%d offset:%d' % (
                    r(vStage + 4 * b + 2 * w, 2), vV, slot * TILE + w * 512 + b * 32))
        if n + NS < 2 * NT:
            a('s_waitcnt lgkmcnt(0)')
            if cfg.lock:
                a('s_barrier')
            issue_tile(n + NS)
            for b in ([0, 4, 1, 5, 2, 6, 3, 7] if cfg.mix else range(8)):
                pv_mfma(t, b)
            after_step(t)
        else:
            for b in range(8):
                a('s_waitcnt lgkmcnt(%d)' % (14 - 2 * b))
                pv_mfma(t, b)

    for n in range(NT):
        k_tile(n)
    if cfg.stamp: stamp('presm')
    if cfg.diag < 2 and not cfg.nosm:
        softmax()
    if cfg.diag >= 2:
        mid_setup()
    elif cfg.split:
        assert NS >= 4
        probs(0)
    else:
        for t in range(NT):
            probs(t)
        finish_sum()
        mid_setup()
        write_ml()
    stamp('softmax')
    for n in range(NT, 2 * NT):
        v_tile(n)
    assert flag_read
    stamp('pv_done')
    if cfg.diag:
        a('s_endpgm')

    if cfg.compact:
        for acc in range(2):
            a('ds_write_b128 v%d, %s offset:%d' % (vEp1, r(vO + 4 * acc, 4), acc * 256))
    else:
        a('s_mov_b32 exec_lo, 0x000f000f')
        a('s_mov_b32 exec_hi, 0x000f000f')
        for b in range(8):
            a('ds_write_b128 v%d, %s offset:%d' % (vEp1, r(vO + 4 * b, 4), b * 64))
        a('s_mov_b64 exec, -1')
    a('s_waitcnt lgkmcnt(0)')
    stamp('ldsw')
    a('s_barrier')
    stamp('bar')
    y = vStage
    for w in range(NW):
        a('ds_read_b64 %s, v%d offset:%d' % (r(y + 2 * w, 2), vEp2, w * PSTR))
    if not cfg.early:
        weights()
    for w in range(NW):
        if cfg.early:
            a('s_waitcnt lgkmcnt(%d)' % (NW - 1 - w))
        a('v_fmac_f32 v%d, v%d, v%d' % (vG, vW + w, y + 2 * w))
        a('v_fmac_f32 v%d, v%d, v%d' % (vG + 1, vW + w, y + 2 * w + 1))
    stamp('red')
    a('s_cmp_eq_u32 s3, s%d' % sJ)
    a('s_cbranch_scc1 L_consumer')
    if cfg.local:
        a('s_cmp_eq_u32 s%d, 1' % sFlag)
        a('s_cbranch_scc0 L_far')
        if not cfg.nopub:
            a('global_store_dwordx4 v%d, %s, s[20:21]%s' % (vPub, r(vG, 4), (' ' + cfg.pubpol) if cfg.pubpol else ''))
        stamp('published')
        n_pub = len(stamps)
        dump_stamps()
        a('s_endpgm')
        a.label('L_far')
    a('global_store_dwordx4 v%d, %s, s[20:21] sc1' % (vPub, r(vG, 4)))
    if not cfg.local:
        stamp('published')
    dump_stamps()
    a('s_endpgm')
    a.label('L_consumer')
    z = x + 16
    def final_combine(z, sfx):
        ms = [vG + 2, z + 2, z + 6, z + 10]
        o0 = [vG, z, z + 4, z + 8]
        ls = [vG + 3, z + 3, z + 7, z + 11]
        a('v_max3_f32 v%d, v%d, v%d, v%d' % (vM, ms[0], ms[1], ms[2]))
        a('v_max_f32 v%d, v%d, v%d' % (vM, vM, ms[3]))
        for k in range(4):
            a('v_sub_f32 v%d, v%d, v%d' % (ms[k], ms[k], vM))
        for k in range(4):
            a('v_exp_f32 v%d, v%d' % (ms[k], ms[k]))
        if cfg.epoch:
            a('v_add_f32 v%d, v%d, v%d' % (vT3, ms[0], ms[1]))
            a('v_add_f32 v%d, v%d, v%d' % (vT0, ms[2], ms[3]))
            a('v_mul_f32 v%d, v%d, v%d' % (vT1, ms[0], o0[0]))
            a('v_mul_f32 v%d, v%d, v%d' % (vT2, ms[0], o0[0] + 1))
            a('v_add_f32 v%d, v%d, v%d' % (vT3, vT3, vT0))
        else:
            a('v_mul_f32 v%d, v%d, v%d' % (vT3, ms[0], ls[0]))
            a('v_mul_f32 v%d, v%d, v%d' % (vT1, ms[0], o0[0]))
            a('v_mul_f32 v%d, v%d, v%d' % (vT2, ms[0], o0[0] + 1))
            for k in range(1, 4):
                a('v_fmac_f32 v%d, v%d, v%d' % (vT3, ms[k], ls[k]))
        a('v_rcp_f32 v%d, v%d' % (vT3, vT3))
        for k in range(1, 4):
            a('v_fmac_f32 v%d, v%d, v%d' % (vT1, ms[k], o0[k]))
            a('v_fmac_f32 v%d, v%d, v%d' % (vT2, ms[k], o0[k] + 1))
        a('v_mul_f32 v%d, v%d, v%d' % (vT1, vT1, vT3))
        a('v_mul_f32 v%d, v%d, v%d' % (vT2, vT2, vT3))
        a('v_cvt_pk_bf16_f32 v%d, v%d, v%d' % (vT1, vT1, vT2))
        a('global_store_dword v%d, v%d, s[16:17]' % (vOut, vT1))
        if cfg.epoch and not cfg.noEst:
            a('s_lshl_b32 s%d, s%d, 7' % (sT0, sP))
            a('s_add_u32 s%d, s%d, %d' % (sT0, sT0, EOFF))
            a('v_mov_b32 v%d, s%d' % (vT0, sT0))
            a('v_mov_b32 v%d, s%d' % (vT2, sTag))
            a('s_cmp_eq_u32 s%d, 0' % sJ)
            a('s_cbranch_scc0 L_noEst' + sfx)
            a('s_mov_b64 exec, 1')
            a('global_store_dword v%d, v%d, s[20:21]' % (vT0, vT2))
            a.label('L_noEst' + sfx)

    def poll_loads(z):
        for k in range(3):
            a('global_load_dwordx4 %s, v%d, s[20:21] %s' % (r(z + 4 * k, 4), vPa + k, cfg.pollpol))

    def poll_check(z):
        for k in range(3):
            a('v_readfirstlane_b32 s%d, v%d' % (sT0 + k, z + 4 * k + 2))
        a('v_xor_b32 v%d, s%d, v%d' % (vT1, sTag, z + 3))
        a('v_xor_b32 v%d, s%d, v%d' % (vT2, sTag, z + 7))
        a('v_xor_b32 v%d, s%d, v%d' % (vT3, sTag, z + 11))
        a('v_or3_b32 v%d, v%d, v%d, v%d' % (vT1, vT1, vT2, vT3))
        a('v_xor_b32 v%d, s%d, v%d' % (vT0, sT0, z + 2))
        a('v_xor_b32 v%d, s%d, v%d' % (vT2, sT0 + 1, z + 6))
        a('v_xor_b32 v%d, s%d, v%d' % (vT3, sT0 + 2, z + 10))
        a('v_or3_b32 v%d, v%d, v%d, v%d' % (vT0, vT0, vT2, vT3))
        a('v_or_b32 v%d, v%d, v%d' % (vT1, vT1, vT0))
        a('v_cmp_ne_u32 vcc, 0, v%d' % vT1)

    if cfg.stag:
        z2 = z + 16
        poll_loads(z)
        a.label('L_poll')
        poll_loads(z2)
        a('s_waitcnt vmcnt(3)')
        poll_check(z)
        spin_guard('L_end')
        a('s_cbranch_vccz L_polled')
        poll_loads(z)
        a('s_waitcnt vmcnt(3)')
        poll_check(z2)
        a('s_cbranch_vccnz L_poll')
        final_combine(z2, 'b')
        a('s_endpgm')
        a.label('L_polled')
    else:
        a.label('L_poll')
        if cfg.nopoll:
            a('s_branch L_polled2')
        poll_loads(z)
        a('s_waitcnt vmcnt(0)')
        poll_check(z)
        spin_guard('L_end')
        if not cfg.tight:
            a.nop(5)
        if cfg.psleep:
            a('s_cbranch_vccz L_polled')
            a('s_sleep %d' % cfg.psleep)
            a('s_branch L_poll')
            a.label('L_polled')
        else:
            a('s_cbranch_vccnz L_poll')
    if cfg.nopoll:
        a.label('L_polled2')
    stamp('polled')
    final_combine(z, 'a')
    stamp('out')
    dump_stamps()
    a.label('L_end')
    a('s_endpgm')
    if cfg.cpf:
        a.label('L_codeend')
    return a, LDS, nvgpr


KD = """.section .rodata,"a"
.p2align 6
.amdhsa_kernel %s
  .amdhsa_next_free_vgpr %d
  .amdhsa_next_free_sgpr %d
  .amdhsa_accum_offset %d
  .amdhsa_group_segment_fixed_size 0
  .amdhsa_kernarg_size 72
  .amdhsa_user_sgpr_count 2
  .amdhsa_user_sgpr_kernarg_segment_ptr 1
  .amdhsa_system_sgpr_workgroup_id_x 1
.end_amdhsa_kernel
"""


def kernel_text(name, body):
    return ('.text\n.globl %s\n.p2align 8\n.type %s,@function\n%s:\n' % (name, name, name)) + body


def generate(cfg):
    a, lds, nv = gen_main(cfg)
    out = HEADER
    out += '; @launch grid=(256,1,1) block=(%d,1,1) lds=%d\n' % (256, lds)
    out += '.amdgcn_target "amdgcn-amd-amdhsa--gfx950"\n'
    out += kernel_text(KMAIN, a.finalize())
    nva = (nv + 7) // 8 * 8
    out += KD % (KMAIN, nva, 100, (nva + 3) // 4 * 4)
    return out


if __name__ == '__main__':
    ap = argparse.ArgumentParser()
    ap.add_argument('-o', default='cdna_kernels/' + NAME + '.s')
    ap.add_argument('opts', nargs='*', help='key=value')
    args = ap.parse_args()
    kw = {}
    for o in args.opts:
        k, v = o.split('=', 1)
        try:
            v = int(v)
        except ValueError:
            pass
        kw[k] = v
    cfg = Cfg(**kw)
    txt = generate(cfg)
    open(args.o, 'w').write(txt)
    print('wrote', args.o, len(txt), 'bytes')
    if cfg.stamp:
        open(args.o[:-2] + '.names', 'w').write('\n'.join(cfg.stamp_names) + '\n')
```

```python
import argparse
import math
import re
import struct
import sys
import os

sys.path.insert(0, os.path.dirname(os.path.abspath(__file__)))
from asmlib import Asm

NAME = 'standalone__tree_speculative_verify_tree_attention_over_candidate_token_tree__decode'
KMAIN = NAME + '_kernel'

HEADER = """; Kernarg layout for this problem (72 bytes, ptrs only, base s[0:1]):
;   offset  24: d_in[3] k_tree  shape=(8, 8, 1, 128) dtype=bfloat16 strides=(2048, 256, 256, 2) contiguous=True
;   offset  32: d_in[4] v_tree  shape=(8, 8, 1, 128) dtype=bfloat16 strides=(2048, 256, 256, 2) contiguous=True
;   offset  40: d_in[5] tree_mask  shape=(8, 1, 1) dtype=bfloat16 strides=(2, 2, 2) contiguous=True
"""


def f2u(x):
    return struct.unpack('<I', struct.pack('<f', x))[0]


def hx(x):
    return '0x%08x' % (x & 0xffffffff)


SCALE_LOG2E = (128.0 ** -0.5) * math.log2(math.e)
NEG_BIG_LOG2E = -1.0e9 * math.log2(math.e)

PIECE = 1056
TILE = 8 * PIECE
NW = 4
NT = 8


class Cfg:
    def __init__(self, **kw):
        self.ns = 4
        self.pol = 'nt'
        self.low = 'w0j0w1j1'
        self.high = 'n0n2n1'
        self.stamp = 0
        self.local = 1
        self.early = 1
        self.psleep = 0
        self.treeskip = 0
        self.mix = 1
        self.pubpol = ''
        self.stag = 0
        self.nok = 0
        self.nov = 0
        self.nosm = 0
        self.notree = 0
        self.prio = 0
        self.wpos = '10,11'
        self.ppos = ''
        self.bits = ''
        self.vtouch = 0
        self.qpos = -1
        self.tpos = 0
        self.epos = 0
        self.compact = 1
        self.tight = 1
        self.map0 = 0
        self.vpol = 'same'
        self.pfin = 1
        self.pollpol = 'sc1'
        self.nopub = 0
        self.nopoll = 0
        self.noEst = 0
        self.noE = 0
        self.noX = 0
        self.epoch = 1
        self.plainld = 0
        self.nclr = 4
        self.clrpol = 'sc1'
        self.flagst = 1
        self.noflagld = 0
        self.helper = 0
        self.lock = 2
        self.diag = 0
        self.ilv = 1
        self.ihigh = 'n0n1n2j0j1'
        self.split = 1
        self.cpf = 0
        self.xr = 0
        self.spin = 0
        self.__dict__.update(kw)


class VM:
    def __init__(self, a):
        self.a = a
        self.ops = []

    def issue(self, text, tag):
        self.a(text)
        self.ops.append(tag)

    def count(self, *tags):
        last = max(i for i, t in enumerate(self.ops) if t in tags)
        n = len(self.ops) - 1 - last
        assert n <= 63, n
        return n

    def wait(self, *tags):
        self.a('s_waitcnt vmcnt(%d)' % self.count(*tags))


def gen_main(cfg):
    a = Asm()
    vm = VM(a)
    NS = cfg.ns
    RING = NS * TILE
    RED = NW * RING
    PSTR = 2240
    MLOFF = 2112
    LDS = RED + NW * PSTR
    assert LDS <= 163840, LDS

    sP, sJ = 36, 37
    sBase, sOff, sLds, sC = 32, 33, 34, 35
    sT0, sT1, sT2, sT3 = 38, 39, 40, 41
    sBig, sXcc, sFlag, sSpin = 42, 43, 22, 23
    s4k = 97
    sE, sTag = 98, 99
    EOFF = 0x200000
    XOFF = 0x210000
    vL16w = 3
    vLane, vL16, vL16b, vK, vV = 1, 2, 3, 4, 5
    vT0, vT1, vT2, vT3 = 6, 7, 8, 9
    vTree, vVt, vMask = 10, 11, 12
    vM, vL = 13, 14
    vFlagA = 0
    vL2 = 12
    vQ = 16
    vStage = 32
    vS = 64
    vP = vS + NT * 8
    vO = vP + NT * 4
    vKt = vO + 32
    vTD = vKt + 16
    nvgpr = vTD + 4
    vPm = vO + 8
    sMask = 88
    vFlag = vTD + 2
    vMLa = vTD
    vEp1, vEp2, vEp3, vPub, vOut = vKt, vKt + 1, vKt + 2, vKt + 3, vKt + 4
    vPa = vKt + 5
    vG = vKt + 8
    vW = vKt + 12
    assert vG % 2 == 0

    def r(base, n):
        return 'v[%d:%d]' % (base, base + n - 1)

    stamps = []

    def stamp(name):
        if not cfg.stamp:
            return
        i = len(stamps)
        assert 44 + 2 * i + 1 < 96
        stamps.append(name)
        a('s_memrealtime s[%d:%d]' % (44 + 2 * i, 45 + 2 * i))
        a('s_waitcnt lgkmcnt(0)')

    def dump_stamps():
        if not cfg.stamp:
            return
        v = vS
        a('v_mov_b32 v%d, 0' % v)
        for i in range(len(stamps)):
            a('v_writelane_b32 v%d, s%d, %d' % (v, 44 + 2 * i, i))
        a('v_writelane_b32 v%d, s%d, 62' % (v, sXcc))
        a('s_lshl_b32 s%d, s2, 3' % sT3)
        a('s_add_u32 s%d, s%d, s3' % (sT3, sT3))
        a('s_lshl_b32 s%d, s%d, 8' % (sT3, sT3))
        a('s_add_u32 s%d, s%d, 0x8000000' % (sT3, sT3))
        a('v_lshlrev_b32 v%d, 2, v%d' % (v + 1, vLane))
        a('v_add_u32 v%d, s%d, v%d' % (v + 1, sT3, v + 1))
        a('global_store_dword v%d, v%d, s[20:21]' % (v + 1, v))
        cfg.stamp_names = list(stamps)

    def spin_guard(exit_label):
        if cfg.spin:
            a('s_sub_u32 s%d, s%d, 1' % (sSpin, sSpin))
            a('s_cbranch_scc1 ' + exit_label)

    gb = None
    if cfg.bits:
        names = re.findall(r'[wjni]\d', cfg.bits)
        assert sorted(names) == sorted(['w0', 'w1', 'i0', 'i1', 'i2', 'n0', 'n1', 'n2', 'j0', 'j1']), names
        gb = {nm: 10 + pos for pos, nm in enumerate(names)}
    if cfg.ilv:
        hi = re.findall(r'[nj]\d', cfg.ihigh)
        assert sorted(hi) == ['j0', 'j1', 'n0', 'n1', 'n2']
        npos = {int(nm[1]): 15 + pos for pos, nm in enumerate(hi) if nm[0] == 'n'}
        jpos = {int(nm[1]): 15 + pos for pos, nm in enumerate(hi) if nm[0] == 'j'}
        if gb:
            npos = {k: gb['n%d' % k] for k in range(3)}
            jpos = {k: gb['j%d' % k] for k in range(2)}
            cfg.wpos = '%d,%d' % (gb['w0'], gb['w1'])
            cfg.ppos = '%d,%d,%d' % (gb['i0'], gb['i1'], gb['i2'])
    else:
        hi = re.findall(r'n\d', cfg.high)
        assert sorted(hi) == ['n0', 'n1', 'n2']
        npos = {int(nm[1]): 17 + pos for pos, nm in enumerate(hi)}

    def tile_delta(t):
        return sum(((t >> k) & 1) << npos[k] for k in range(3))

    def issue_tile(n, compact=False):
        isk = n < NT
        slot = n % NS
        srd = 's[24:27]' if isk else 's[28:31]'
        d = tile_delta(n % NT)
        if cfg.ilv:
            for i in range(8):
                if (cfg.lock == 3 and i == 4) or (cfg.lock == 4 and i in (2, 4, 6)) or (cfg.lock == 5 and i > 0):
                    a('s_barrier')
                if compact:
                    if i > 0:
                        a('s_add_u32 m0, m0, s%d' % sBig)
                else:
                    a('s_add_u32 m0, s%d, %d' % (sLds, slot * TILE + i * PIECE))
                if cfg.wpos == '10,11' and not gb:
                    if i == 0:
                        if d:
                            a('s_xor_b32 s%d, s%d, %d' % (sOff, sBase, d))
                        else:
                            a('s_mov_b32 s%d, s%d' % (sOff, sBase))
                    else:
                        a('s_add_u32 s%d, s%d, s%d' % (sOff, sOff, s4k))
                else:
                    wp = [int(x) for x in cfg.wpos.split(',')]
                    pp = [int(x) for x in cfg.ppos.split(',')] if cfg.ppos else [b for b in range(10, 15) if b not in wp]
                    assert gb or sorted(pp + wp) == [10, 11, 12, 13, 14]
                    off = sum(((i >> k) & 1) << pp[k] for k in range(3))
                    a('s_xor_b32 s%d, s%d, %d' % (sOff, sBase, d ^ off))
                txt = 'buffer_load_dwordx4 v%d, %s, s%d offen' % (vL16w, srd, sOff)
                pol = cfg.pol if isk else (cfg.vpol if cfg.vpol != 'same' else cfg.pol)
                if pol and pol != 'none':
                    txt += ' ' + pol.replace('+', ' ')
                txt += ' lds'
                vm.issue(txt, ('tile', n))
            return
        if d:
            a('s_xor_b32 s%d, s%d, %d' % (sOff, sBase, d))
            so = sOff
        else:
            so = sBase
        for i in range(8):
            if compact:
                if i > 0:
                    if i == 4:
                        a('s_add_u32 m0, m0, s%d' % sBig)
                    else:
                        a('s_add_u32 m0, m0, 32')
            else:
                m0 = slot * TILE + i * 32 + (4096 if i >= 4 else 0)
                a('s_add_u32 m0, s%d, %d' % (sLds, m0))
            voff = vL16 if i < 4 else vL16b
            off = (i & 3) * 1024
            txt = 'buffer_load_dwordx4 v%d, %s, s%d offen' % (voff, srd, so)
            if off:
                txt += ' offset:%d' % off
            if cfg.pol:
                txt += ' ' + cfg.pol.replace('+', ' ')
            txt += ' lds'
            vm.issue(txt, ('tile', n))

    def epoch_load():
        a('s_lshl_b32 s%d, s%d, 7' % (sT2, sP))
        a('s_add_u32 s%d, s%d, %d' % (sT2, sT2, EOFF))
        if not cfg.noE:
            a('s_load_dword s%d, s[20:21], s%d' % (sE, sT2))

    def q_addr():
        a('v_and_b32 v%d, 3, v%d' % (vT0, vLane))
        a('v_lshlrev_b32 v%d, 8, v%d' % (vT0, vT0))
        a('v_lshrrev_b32 v%d, 4, v%d' % (vT1, vLane))
        a('v_lshlrev_b32 v%d, 4, v%d' % (vT1, vT1))
        a('s_lshl_b32 s%d, s%d, 10' % (sT0, sP))
        a('v_add3_u32 v%d, v%d, v%d, s%d' % (vT0, vT0, vT1, sT0))

    def q_loads():
        if cfg.qpos >= 0:
            q_addr()
        for s in range(4):
            vm.issue('global_load_dwordx4 %s, v%d, s[4:5] offset:%d' % (r(vQ + 4 * s, 4), vT0, s * 64), 'small')

    def tree_addr():
        a('v_lshrrev_b32 v%d, 4, v%d' % (vT1, vLane))
        a('v_lshlrev_b32 v%d, 4, v%d' % (vT1, vT1))
        a('s_lshl_b32 s%d, s%d, 8' % (sT1, sP))
        a('v_add_u32 v%d, s%d, v%d' % (vT1, sT1, vT1))
        a('v_lshlrev_b32 v%d, 2, v%d' % (vT2, vLane))
        a('v_add_u32 v%d, s%d, v%d' % (vT2, sT1, vT2))
        a('s_lshr_b32 s%d, s%d, 3' % (sT2, sP))
        a('s_lshl_b32 s%d, s%d, 1' % (sT2, sT2))
        a('v_mov_b32 v%d, s%d' % (vT3, sT2))

    def tree_loads():
        if cfg.treeskip:
            a('s_cmp_eq_u32 s%d, 0' % sJ)
            a('s_cbranch_scc0 L_notreeld')
        if cfg.tpos >= 0:
            tree_addr()
        for s in range(4):
            vm.issue('global_load_dwordx4 %s, v%d, s[10:11] offset:%d' % (r(vKt + 4 * s, 4), vT1, s * 64), 'tree')
        vm.issue('global_load_dword v%d, v%d, s[12:13]' % (vVt, vT2), 'tree')
        vm.issue('global_load_ushort v%d, v%d, s[14:15]' % (vMask, vT3), 'tree')
        if cfg.vtouch:
            vm.issue('buffer_load_dword v15, off, s[28:31], s%d%s' % (sBase, ' nt' if cfg.vtouch == 2 else ''), 'tree')
        if cfg.treeskip:
            a.label('L_notreeld')

    if cfg.stamp:
        a('s_cmp_ge_u32 s2, 256')
        a('s_cbranch_scc1 L_end')
        stamp('entry')
    a('s_load_dwordx16 s[4:19], s[0:1], 0')
    a('s_load_dwordx2 s[20:21], s[0:1], 64')
    if not cfg.stamp:
        a('s_cmp_ge_u32 s2, 256')
        a('s_cbranch_scc1 L_end')
    a('v_readfirstlane_b32 s3, v0')
    a('v_and_b32 v%d, 63, v0' % vLane)
    a('v_lshlrev_b32 v%d, 4, v%d' % (vL16, vLane))
    a('s_mov_b32 s26, 0x4000000')
    a('s_mov_b32 s27, 0x20000')
    a('s_lshr_b32 s3, s3, 6')
    if cfg.map0:
        a('s_lshr_b32 s%d, s2, 2' % sP)
        a('s_and_b32 s%d, s2, 3' % sJ)
    else:
        a('s_and_b32 s%d, s2, 7' % sT0)
        a('s_bfe_u32 s%d, s2, 0x20003' % sJ)
        a('s_lshr_b32 s%d, s2, 5' % sT1)
        a('s_lshl_b32 s%d, s%d, 3' % (sP, sT0))
        a('s_add_u32 s%d, s%d, s%d' % (sP, sP, sT1))
    if cfg.ilv:
        if jpos[1] == jpos[0] + 1:
            a('s_lshl_b32 s%d, s%d, %d' % (sT0, sJ, jpos[0]))
        else:
            a('s_and_b32 s%d, s%d, 1' % (sT0, sJ))
            a('s_lshl_b32 s%d, s%d, %d' % (sT0, sT0, jpos[0]))
            a('s_lshr_b32 s%d, s%d, 1' % (sT1, sJ))
            a('s_lshl_b32 s%d, s%d, %d' % (sT1, sT1, jpos[1]))
            a('s_or_b32 s%d, s%d, s%d' % (sT0, sT0, sT1))
        wp = [int(x) for x in cfg.wpos.split(',')]
        if wp[1] == wp[0] + 1:
            a('s_lshl_b32 s%d, s3, %d' % (sT1, wp[0]))
        else:
            a('s_and_b32 s%d, s3, 1' % sT1)
            a('s_lshl_b32 s%d, s%d, %d' % (sT1, sT1, wp[0]))
            a('s_lshr_b32 s%d, s3, 1' % sT2)
            a('s_lshl_b32 s%d, s%d, %d' % (sT2, sT2, wp[1]))
            a('s_or_b32 s%d, s%d, s%d' % (sT1, sT1, sT2))
        a('v_add_u32 v%d, s%d, v%d' % (vL16w, sT1, vL16))
        a('s_movk_i32 s%d, 0x1000' % s4k)
    elif cfg.low == 'w0w1j0j1':
        a('s_lshl_b32 s%d, s%d, 2' % (sT0, sJ))
        a('s_add_u32 s%d, s%d, s3' % (sT0, sT0))
        a('s_lshl_b32 s%d, s%d, 13' % (sT0, sT0))
    elif cfg.low == 'w0j0w1j1':
        a('s_lshl_b32 s%d, s%d, 2' % (sT0, sJ))
        a('s_or_b32 s%d, s%d, s3' % (sT0, sT0))
        a('s_and_b32 s%d, s%d, 6' % (sT1, sT0))
        a('s_lshr_b32 s%d, s%d, 1' % (sT2, sT1))
        a('s_xor_b32 s%d, s%d, s%d' % (sT2, sT2, sT1))
        a('s_and_b32 s%d, s%d, 2' % (sT2, sT2))
        a('s_mul_i32 s%d, s%d, 3' % (sT2, sT2))
        a('s_xor_b32 s%d, s%d, s%d' % (sT0, sT0, sT2))
        a('s_lshl_b32 s%d, s%d, 13' % (sT0, sT0))
    else:
        raise ValueError(cfg.low)
    a('s_lshl_b32 s%d, s%d, 20' % (sBase, sP))
    a('s_add_u32 s%d, s%d, s%d' % (sBase, sBase, sT0))
    if cfg.xr:
        if cfg.xr == 1:
            a('s_lshr_b32 s%d, s2, 5' % sT0)
        elif cfg.xr == 2:
            a('s_and_b32 s%d, s2, 7' % sT0)
        elif cfg.xr == 3:
            a('s_lshr_b32 s%d, s2, 5' % sT0)
            a('s_xor_b32 s%d, s%d, s2' % (sT0, sT0))
            a('s_and_b32 s%d, s%d, 7' % (sT0, sT0))
        elif cfg.xr == 4:
            a('s_bfe_u32 s%d, s2, 0x20005' % sT0)
        elif cfg.xr == 5:
            a('s_and_b32 s%d, s2, 3' % sT0)
        elif cfg.xr == 6:
            a('s_and_b32 s%d, s2, 1' % sT0)
            a('s_lshl_b32 s%d, s%d, 2' % (sT0, sT0))
        elif cfg.xr == 7:
            a('s_bfe_u32 s%d, s2, 0x10005' % sT0)
            a('s_lshl_b32 s%d, s%d, 2' % (sT0, sT0))
        elif cfg.xr == 8:
            a('s_mov_b32 s%d, s%d' % (sT0, sJ))
        a('s_lshl_b32 s%d, s%d, %d' % (sT0, sT0, 15 if cfg.ilv else 17))
        a('s_xor_b32 s%d, s%d, s%d' % (sBase, sBase, sT0))
    a('s_mul_i32 s%d, s3, %d' % (sLds, RING))
    if cfg.ilv:
        a('s_movk_i32 s%d, %d' % (sBig, PIECE))
    else:
        a('s_movk_i32 s%d, 4128' % sBig)
        a('v_add_u32 v%d, 4096, v%d' % (vL16b, vL16))
    a('s_mov_b32 m0, s%d' % sLds)
    if cfg.qpos < 0:
        q_addr()
    if cfg.tpos < 0:
        tree_addr()
    a('s_waitcnt lgkmcnt(0)')
    a('s_mov_b64 s[24:25], s[6:7]')
    stamp('karg')
    if cfg.qpos < 0:
        q_loads()
    if cfg.tpos < 0:
        tree_loads()
    if cfg.epos < 0:
        epoch_load()
    issue_tile(0, compact=True)
    a('s_mov_b64 s[28:29], s[8:9]')
    a('s_mov_b64 s[30:31], s[26:27]')
    a('s_lshl_b32 s2, s%d, 2' % sP)
    a('s_add_u32 s2, s2, s%d' % sJ)
    a('s_getreg_b32 s%d, hwreg(HW_REG_XCC_ID, 0, 4)' % sXcc)
    if cfg.spin:
        a('s_mov_b32 s%d, %d' % (sSpin, cfg.spin))
    if cfg.prio:
        pr = {1: [0, 1, 2, 3], 2: [3, 2, 1, 0], 3: [0, 0, 1, 1], 4: [0, 1, 0, 1]}[cfg.prio]
        for w in range(4):
            if pr[w]:
                a('s_cmp_eq_u32 s3, %d' % w)
                a('s_cbranch_scc0 L_prio%d' % w)
                a('s_setprio %d' % pr[w])
                a.label('L_prio%d' % w)

    if cfg.cpf:
        a('s_getpc_b64 s[%d:%d]' % (sT0, sT0 + 1))
        a.label('L_pc')
        a('s_sub_u32 s%d, s%d, L_pc-%s' % (sT0, sT0, KMAIN))
        a('s_subb_u32 s%d, s%d, 0' % (sT0 + 1, sT0 + 1))
        a('s_lshl_b32 s%d, s%d, 2' % (sT2, sJ))
        a('s_add_u32 s%d, s%d, s3' % (sT2, sT2))
        a('s_lshl_b32 s%d, s%d, 10' % (sT2, sT2))
        a('s_min_u32 s%d, s%d, L_codeend-%s-1024' % (sT2, sT2, KMAIN))
        a('v_add_u32 v%d, s%d, v%d' % (vT0, sT2, vL16))
        a('v_mov_b32 v%d, s%d' % (vT1, sT0 + 1))
        a('v_add_co_u32 v%d, vcc, s%d, v%d' % (vT0, sT0, vT0))
        a('v_addc_co_u32 v%d, vcc, 0, v%d, vcc' % (vT1, vT1))
        a('global_load_dwordx4 %s, %s, off' % (r(vO, 4), r(vT0, 2)))
    if cfg.epos == 0:
        epoch_load()
    if cfg.qpos == 0:
        q_loads()
    if cfg.tpos == 0:
        tree_loads()
    for n in range(1, NS):
        if cfg.lock >= 2:
            a('s_barrier')
        issue_tile(n)
        if cfg.tpos == n:
            tree_loads()

    a('v_and_b32 v%d, 7, v%d' % (vT0, vLane))
    a('v_mul_u32_u24 v%d, %d, v%d' % (vT0, PIECE, vT0))
    a('v_bfe_u32 v%d, v%d, 3, 1' % (vT1, vLane))
    a('v_lshlrev_b32 v%d, 8, v%d' % (vT1, vT1))
    a('v_lshrrev_b32 v%d, 4, v%d' % (vT2, vLane))
    a('v_lshlrev_b32 v%d, 4, v%d' % (vT2, vT2))
    a('v_add3_u32 v%d, v%d, v%d, v%d' % (vK, vT0, vT1, vT2))
    a('v_add_u32 v%d, s%d, v%d' % (vK, sLds, vK))
    a('v_bfe_u32 v%d, v%d, 2, 3' % (vT0, vLane))
    a('v_mul_u32_u24 v%d, %d, v%d' % (vT0, PIECE, vT0))
    a('v_lshrrev_b32 v%d, 5, v%d' % (vT1, vLane))
    a('v_lshlrev_b32 v%d, 8, v%d' % (vT1, vT1))
    a('v_and_b32 v%d, 3, v%d' % (vT2, vLane))
    a('v_lshlrev_b32 v%d, 3, v%d' % (vT2, vT2))
    a('v_add3_u32 v%d, v%d, v%d, v%d' % (vV, vT0, vT1, vT2))
    a('v_add_u32 v%d, s%d, v%d' % (vV, sLds, vV))
    a('s_mov_b32 s%d, %s' % (sC, hx(f2u(SCALE_LOG2E))))
    if cfg.compact:
        for i in range(8):
            a('v_mov_b32 v%d, 0' % (vO + i))
        for g in range(4):
            a('s_mov_b32 s%d, 0x%x' % (sMask + 2 * g, 0x000f000f << (4 * g)))
            a('s_mov_b32 s%d, s%d' % (sMask + 2 * g + 1, sMask + 2 * g))
    elif not cfg.cpf:
        for i in range(32):
            a('v_mov_b32 v%d, 0' % (vO + i))

    def tree_score():
        if cfg.treeskip:
            a('s_cmp_eq_u32 s%d, 0' % sJ)
            a('s_cbranch_scc1 L_tree')
            a('v_mov_b32 v%d, 0xff800000' % vTree)
            a('v_mov_b32 v%d, 0' % vVt)
            a('s_branch L_treedone')
            a.label('L_tree')
        for s in range(4):
            a('v_mfma_f32_16x16x32_bf16 %s, %s, %s, %s' % (
                r(vTD, 4), r(vKt + 4 * s, 4), r(vQ + 4 * s, 4), '0' if s == 0 else r(vTD, 4)))
        a('v_lshlrev_b32 v%d, 16, v%d' % (vMask, vMask))
        a('v_sub_f32 v%d, 1.0, v%d' % (vMask, vMask))
        a('v_mul_f32 v%d, %s, v%d' % (vMask, hx(f2u(NEG_BIG_LOG2E)), vMask))
        if not cfg.treeskip:
            a('s_cmp_eq_u32 s%d, 0' % sJ)
            a('s_cselect_b32 s%d, 0, 0xff800000' % sT1)
        a('v_readlane_b32 s%d, v%d, s3' % (sT2, vTD))
        a('v_mov_b32 v%d, s%d' % (vTree, sT2))
        a('v_fma_f32 v%d, v%d, s%d, v%d' % (vTree, vTree, sC, vMask))
        if not cfg.treeskip:
            a('v_add_f32 v%d, s%d, v%d' % (vTree, sT1, vTree))
        else:
            a.label('L_treedone')

    tree_done = []

    def k_tile(n):
        t = n
        slot = n % NS
        if n == 0:
            if cfg.tpos <= 0:
                vm.wait(('tile', 0), 'small', 'tree')
            else:
                vm.wait(('tile', 0), 'small')
        else:
            vm.wait(('tile', n))
        if n in (0, 3, 7):
            stamp('tile%d' % n)
        if cfg.diag >= 2 or cfg.nok:
            issue_tile(n + NS)
            return
        for w in range(2):
            for s in range(4):
                a('ds_read_b128 %s, v%d offset:%d' % (
                    r(vStage + 16 * w + 4 * s, 4), vK, slot * TILE + w * 512 + s * 64))
        a('s_waitcnt lgkmcnt(0)')
        if n == 0:
            a('s_mul_i32 s%d, s%d, 1664525' % (sTag, sE))
            a('s_add_u32 s%d, s%d, 1013904223' % (sTag, sTag))
            if cfg.local and not cfg.noX:
                a('s_cmp_eq_u32 s3, s%d' % sJ)
                a('s_cbranch_scc0 L_noxcc')
                a('s_or_b32 s%d, s%d, 0x80' % (sT1, sXcc))
                a('s_xor_b32 s%d, s%d, s%d' % (sT1, sT1, sTag))
                a('s_lshl_b32 s%d, s%d, 7' % (sT0, sP))
                a('s_lshl_b32 s%d, s%d, 3' % (sT2, sJ))
                a('s_add_u32 s%d, s%d, s%d' % (sT0, sT0, sT2))
                a('s_add_u32 s%d, s%d, %d' % (sT0, sT0, XOFF))
                a('v_mov_b32 v%d, s%d' % (vT0, sT0))
                a('v_mov_b32 v%d, s%d' % (vT2, sTag))
                a('v_mov_b32 v%d, s%d' % (vT3, sT1))
                a('s_mov_b64 exec, 1')
                a('global_store_dwordx2 v%d, %s, s[20:21] sc1' % (vT0, r(vT2, 2)))
                a('s_mov_b64 exec, -1')
                a.label('L_noxcc')
        if cfg.lock:
            a('s_barrier')
        issue_tile(n + NS)
        for s in range(4):
            for w in range(2):
                d = r(vS + 8 * t + 4 * w, 4)
                a('v_mfma_f32_16x16x32_bf16 %s, %s, %s, %s' % (
                    d, r(vStage + 16 * w + 4 * s, 4), r(vQ + 4 * s, 4), '0' if s == 0 else d))
        if not tree_done and vm.ops.index('tree') < vm.ops.index(('tile', n)) or (n == 0 and cfg.tpos <= 0):
            if not tree_done:
                if not cfg.notree:
                    tree_score()
                tree_done.append(n)

    def xg_reduce(v, op):
        a('v_mov_b32 v%d, v%d' % (vT0, v))
        a('v_permlane32_swap_b32 v%d, v%d' % (vT0, v))
        a('%s v%d, v%d, v%d' % (op, v, v, vT0))
        a('v_mov_b32 v%d, v%d' % (vT0, v))
        a('v_permlane16_swap_b32 v%d, v%d' % (vT0, v))
        a('%s v%d, v%d, v%d' % (op, v, v, vT0))

    def softmax():
        n = NT * 8
        acc = [vM, vT1, vT2, vT3]
        idx = 0
        for k in range(4):
            a('v_max3_f32 v%d, v%d, v%d, v%d' % (acc[k], vS + idx, vS + idx + 1, vS + idx + 2))
            idx += 3
        k = 0
        while idx + 1 < n:
            a('v_max3_f32 v%d, v%d, v%d, v%d' % (acc[k], acc[k], vS + idx, vS + idx + 1))
            idx += 2
            k = (k + 1) % 4
        while idx < n:
            a('v_max_f32 v%d, v%d, v%d' % (acc[k], acc[k], vS + idx))
            idx += 1
        a('v_max3_f32 v%d, v%d, v%d, v%d' % (vM, vM, vT1, vT2))
        a('v_max_f32 v%d, v%d, v%d' % (vM, vM, vT3))
        xg_reduce(vM, 'v_max_f32')
        a('v_mul_f32 v%d, s%d, v%d' % (vM, sC, vM))
        a('v_mov_b32 v%d, 0' % vL)
        a('v_mov_b32 v%d, 0' % vL2)

    def probs(t):
        if cfg.nosm:
            return
        b = vS + 8 * t
        for i in range(8):
            a('v_fma_f32 v%d, v%d, s%d, -v%d' % (b + i, b + i, sC, vM))
        for i in range(8):
            a('v_exp_f32 v%d, v%d' % (b + i, b + i))
        for i in range(4):
            a('v_cvt_pk_bf16_f32 v%d, v%d, v%d' % (vP + 4 * t + i, b + 2 * i, b + 2 * i + 1))
        for i in range(4):
            a('v_add_f32 v%d, v%d, v%d' % (vL, vL, b + 2 * i))
            a('v_add_f32 v%d, v%d, v%d' % (vL2, vL2, b + 2 * i + 1))

    def finish_sum():
        a('v_add_f32 v%d, v%d, v%d' % (vL, vL, vL2))
        xg_reduce(vL, 'v_add_f32')

    def mid_setup():
        a('s_lshl_b32 s%d, s%d, 7' % (sT1, sP))
        a('s_add_u32 s%d, s%d, %d' % (sT1, sT1, XOFF))
        a('v_and_b32 v%d, 7, v%d' % (vFlagA, vLane))
        a('v_lshlrev_b32 v%d, 2, v%d' % (vFlagA, vFlagA))
        a('v_add_u32 v%d, s%d, v%d' % (vFlagA, sT1, vFlagA))
        vm.issue('global_load_dword v%d, v%d, s[20:21]' % (vFlag, vFlagA), 'flag')
        a('s_or_b32 s%d, s%d, 0x80' % (sT1, sXcc))
        a('v_and_b32 v%d, 1, v%d' % (vFlag + 1, vLane))
        a('v_mul_u32_u24 v%d, s%d, v%d' % (vFlag + 1, sT1, vFlag + 1))
        a('v_xor_b32 v%d, s%d, v%d' % (vFlag + 1, sTag, vFlag + 1))
        a('s_lshl_b32 s%d, s%d, 2' % (sT0, sP))
        a('s_add_u32 s%d, s%d, s3' % (sT0, sT0))
        a('s_lshl_b32 s%d, s%d, 2' % (sT0, sT0))
        a('s_add_u32 s%d, s%d, s%d' % (sT0, sT0, sJ))
        a('s_lshl_b32 s%d, s%d, 10' % (sT0, sT0))
        a('v_add_u32 v%d, s%d, v%d' % (vPub, sT0, vL16))
        a('s_lshl_b32 s%d, s2, 12' % sT0)
        for k in range(1, 4):
            a('s_add_u32 s%d, s%d, %d' % (sT1, sJ, k))
            a('s_and_b32 s%d, s%d, 3' % (sT1, sT1))
            a('s_lshl_b32 s%d, s%d, 10' % (sT1, sT1))
            a('s_add_u32 s%d, s%d, s%d' % (sT1, sT1, sT0))
            a('v_add_u32 v%d, s%d, v%d' % (vPa + k - 1, sT1, vL16))
        a('s_lshl_b32 s%d, s2, 8' % sT0)
        a('v_lshlrev_b32 v%d, 2, v%d' % (vOut, vLane))
        a('v_add_u32 v%d, s%d, v%d' % (vOut, sT0, vOut))
        a('s_mul_i32 s%d, s3, %d' % (sT0, PSTR))
        a('s_add_u32 s%d, s%d, %d' % (sT0, sT0, RED))
        a('v_and_b32 v%d, 3, v%d' % (vT0, vLane))
        a('v_mul_u32_u24 v%d, 528, v%d' % (vT1, vT0))
        a('v_lshrrev_b32 v%d, 4, v%d' % (vT2, vLane))
        a('v_lshlrev_b32 v%d, 4, v%d' % (vT3, vT2))
        a('v_add3_u32 v%d, v%d, v%d, s%d' % (vEp1, vT1, vT3, sT0))
        if cfg.compact:
            a('v_bfe_u32 v%d, v%d, 2, 2' % (vT1, vLane))
            a('v_lshl_add_u32 v%d, v%d, 6, v%d' % (vEp1, vT1, vEp1))
        a('v_lshl_add_u32 v%d, v%d, 2, v%d' % (vT2, vT2, vT0))
        a('v_lshlrev_b32 v%d, 3, v%d' % (vMLa, vT2))
        a('v_add_u32 v%d, s%d, v%d' % (vMLa, sT0, vMLa))
        a('s_mul_i32 s%d, s3, 528' % sT0)
        a('s_add_u32 s%d, s%d, %d' % (sT0, sT0, RED))
        a('v_lshlrev_b32 v%d, 3, v%d' % (vEp2, vLane))
        a('v_add_u32 v%d, s%d, v%d' % (vEp2, sT0, vEp2))
        a('s_lshl_b32 s%d, s3, 3' % sT1)
        a('s_add_u32 s%d, s%d, %d' % (sT1, sT1, RED + MLOFF))
        a('v_mov_b32 v%d, s%d' % (vEp3, sT1))

    def write_ml():
        a('v_mov_b32 v%d, v%d' % (vG, vM))
        a('v_mov_b32 v%d, v%d' % (vG + 1, vL))
        a('s_mov_b32 exec_lo, 0x000f000f')
        a('s_mov_b32 exec_hi, 0x000f000f')
        a('ds_write_b64 v%d, %s offset:%d' % (vMLa, r(vG, 2), MLOFF))
        a('s_mov_b64 exec, -1')

    x = vS
    mreg = [x + 2 * w for w in range(NW)]
    lreg = [x + 1 + 2 * w for w in range(NW)]

    def weights():
        for w in range(NW):
            a('ds_read_b64 %s, v%d offset:%d' % (r(x + 2 * w, 2), vEp3, w * PSTR))
        a('v_lshlrev_b32 v%d, 16, v%d' % (vG, vVt))
        a('v_and_b32 v%d, 0xffff0000, v%d' % (vG + 1, vVt))
        a('s_waitcnt lgkmcnt(0)')
        a('v_max3_f32 v%d, v%d, v%d, v%d' % (vG + 2, vTree, mreg[0], mreg[1]))
        a('v_max3_f32 v%d, v%d, v%d, v%d' % (vG + 2, vG + 2, mreg[2], mreg[3]))
        for w in range(NW):
            a('v_sub_f32 v%d, v%d, v%d' % (vW + w, mreg[w], vG + 2))
        a('v_sub_f32 v%d, v%d, v%d' % (vTree, vTree, vG + 2))
        for w in range(NW):
            a('v_exp_f32 v%d, v%d' % (vW + w, vW + w))
        a('v_exp_f32 v%d, v%d' % (vTree, vTree))
        a('v_mov_b32 v%d, v%d' % (vG + 3, vTree))
        for w in range(NW):
            a('v_fmac_f32 v%d, v%d, v%d' % (vG + 3, vW + w, lreg[w]))
        if cfg.epoch:
            a('v_rcp_f32 v%d, v%d' % (vT1, vG + 3))
            a('v_log_f32 v%d, v%d' % (vT2, vG + 3))
            a('v_mov_b32 v%d, s%d' % (vG + 3, sTag))
            a('v_mul_f32 v%d, v%d, v%d' % (vTree, vTree, vT1))
            for w in range(NW):
                a('v_mul_f32 v%d, v%d, v%d' % (vW + w, vW + w, vT1))
            a('v_add_f32 v%d, v%d, v%d' % (vG + 2, vG + 2, vT2))
            a('v_mul_f32 v%d, v%d, v%d' % (vG, vG, vTree))
            a('v_mul_f32 v%d, v%d, v%d' % (vG + 1, vG + 1, vTree))

    def pv_mfma(t, b):
        if cfg.compact:
            d = r(vO + 4 * (b >> 2), 4)
            a('v_mfma_f32_16x16x32_bf16 %s, %s, %s, %s' % (d, r(vStage + 4 * b, 4), r(vPm + 4 * (b & 3), 4), d))
        else:
            a('v_mfma_f32_16x16x32_bf16 %s, %s, %s, %s' % (
                r(vO + 4 * b, 4), r(vStage + 4 * b, 4), r(vP + 4 * t, 4), r(vO + 4 * b, 4)))

    flag_read = []
    sched = {0: [1, 2], 1: [3, 4], 2: [5, 6], 3: [7]} if cfg.split else {}

    def after_step(t):
        for u in sched.get(t, []):
            probs(u)
        if cfg.split and t == 0:
            mid_setup()
        if cfg.split and t == 3:
            finish_sum()
            write_ml()

    def v_tile(n):
        t = n - NT
        slot = n % NS
        last = (n == 2 * NT - 1)
        if last and cfg.early and not cfg.diag:
            a('s_waitcnt lgkmcnt(0)')
            a('s_barrier')
            weights()
        if cfg.compact:
            for g in range(4):
                for i in range(4):
                    a('v_cndmask_b32 v%d, 0, v%d, s[%d:%d]' % (vPm + 4 * g + i, vP + 4 * t + i, sMask + 2 * g, sMask + 2 * g + 1))
        vm.wait(('tile', n))
        if not flag_read and 'flag' in vm.ops and vm.ops.index('flag') < vm.ops.index(('tile', n)):
            a('v_cmp_ne_u32 vcc, v%d, v%d' % (vFlag, vFlag + 1))
            a.nop(5)
            a('s_cmp_eq_u64 vcc, 0')
            a('s_cselect_b32 s%d, 1, 0' % sFlag)
            if cfg.pfin:
                a('s_cbranch_scc0 L_nopfin')
                a('s_cmp_eq_u32 s3, s%d' % sJ)
                a('s_cbranch_scc0 L_nopfin')
                for k in range(3):
                    a('global_load_dword v%d, v%d, s[20:21]' % (vTD + 1, vPa + k))
                a.label('L_nopfin')
            flag_read.append(n)
        if n in (8, 11, 14, 15):
            stamp('tile%d' % n)
        if cfg.diag >= 2 or cfg.nov:
            if n + NS < 2 * NT:
                issue_tile(n + NS)
                if cfg.nov and cfg.diag < 2:
                    after_step(t)
            return
        for b in range(8):
            for w in range(2):
                a('ds_read_b64_tr_b16 %s, v%d offset:%d' % (
                    r(vStage + 4 * b + 2 * w, 2), vV, slot * TILE + w * 512 + b * 32))
        if n + NS < 2 * NT:
            a('s_waitcnt lgkmcnt(0)')
            if cfg.lock:
                a('s_barrier')
            issue_tile(n + NS)
            for b in ([0, 4, 1, 5, 2, 6, 3, 7] if cfg.mix else range(8)):
                pv_mfma(t, b)
            after_step(t)
        else:
            for b in range(8):
                a('s_waitcnt lgkmcnt(%d)' % (14 - 2 * b))
                pv_mfma(t, b)

    for n in range(NT):
        k_tile(n)
    if cfg.stamp: stamp('presm')
    if cfg.diag < 2 and not cfg.nosm:
        softmax()
    if cfg.diag >= 2:
        mid_setup()
    elif cfg.split:
        assert NS >= 4
        probs(0)
    else:
        for t in range(NT):
            probs(t)
        finish_sum()
        mid_setup()
        write_ml()
    stamp('softmax')
    for n in range(NT, 2 * NT):
        v_tile(n)
    assert flag_read
    stamp('pv_done')
    if cfg.diag:
        a('s_endpgm')

    if cfg.compact:
        for acc in range(2):
            a('ds_write_b128 v%d, %s offset:%d' % (vEp1, r(vO + 4 * acc, 4), acc * 256))
    else:
        a('s_mov_b32 exec_lo, 0x000f000f')
        a('s_mov_b32 exec_hi, 0x000f000f')
        for b in range(8):
            a('ds_write_b128 v%d, %s offset:%d' % (vEp1, r(vO + 4 * b, 4), b * 64))
        a('s_mov_b64 exec, -1')
    a('s_waitcnt lgkmcnt(0)')
    stamp('ldsw')
    a('s_barrier')
    stamp('bar')
    y = vStage
    for w in range(NW):
        a('ds_read_b64 %s, v%d offset:%d' % (r(y + 2 * w, 2), vEp2, w * PSTR))
    if not cfg.early:
        weights()
    for w in range(NW):
        if cfg.early:
            a('s_waitcnt lgkmcnt(%d)' % (NW - 1 - w))
        a('v_fmac_f32 v%d, v%d, v%d' % (vG, vW + w, y + 2 * w))
        a('v_fmac_f32 v%d, v%d, v%d' % (vG + 1, vW + w, y + 2 * w + 1))
    stamp('red')
    a('s_cmp_eq_u32 s3, s%d' % sJ)
    a('s_cbranch_scc1 L_consumer')
    if cfg.local:
        a('s_cmp_eq_u32 s%d, 1' % sFlag)
        a('s_cbranch_scc0 L_far')
        if not cfg.nopub:
            a('global_store_dwordx4 v%d, %s, s[20:21]%s' % (vPub, r(vG, 4), (' ' + cfg.pubpol) if cfg.pubpol else ''))
        stamp('published')
        n_pub = len(stamps)
        dump_stamps()
        a('s_endpgm')
        a.label('L_far')
    a('global_store_dwordx4 v%d, %s, s[20:21] sc1' % (vPub, r(vG, 4)))
    if not cfg.local:
        stamp('published')
    dump_stamps()
    a('s_endpgm')
    a.label('L_consumer')
    z = x + 16
    def final_combine(z, sfx):
        ms = [vG + 2, z + 2, z + 6, z + 10]
        o0 = [vG, z, z + 4, z + 8]
        ls = [vG + 3, z + 3, z + 7, z + 11]
        a('v_max3_f32 v%d, v%d, v%d, v%d' % (vM, ms[0], ms[1], ms[2]))
        a('v_max_f32 v%d, v%d, v%d' % (vM, vM, ms[3]))
        for k in range(4):
            a('v_sub_f32 v%d, v%d, v%d' % (ms[k], ms[k], vM))
        for k in range(4):
            a('v_exp_f32 v%d, v%d' % (ms[k], ms[k]))
        if cfg.epoch:
            a('v_add_f32 v%d, v%d, v%d' % (vT3, ms[0], ms[1]))
            a('v_add_f32 v%d, v%d, v%d' % (vT0, ms[2], ms[3]))
            a('v_mul_f32 v%d, v%d, v%d' % (vT1, ms[0], o0[0]))
            a('v_mul_f32 v%d, v%d, v%d' % (vT2, ms[0], o0[0] + 1))
            a('v_add_f32 v%d, v%d, v%d' % (vT3, vT3, vT0))
        else:
            a('v_mul_f32 v%d, v%d, v%d' % (vT3, ms[0], ls[0]))
            a('v_mul_f32 v%d, v%d, v%d' % (vT1, ms[0], o0[0]))
            a('v_mul_f32 v%d, v%d, v%d' % (vT2, ms[0], o0[0] + 1))
            for k in range(1, 4):
                a('v_fmac_f32 v%d, v%d, v%d' % (vT3, ms[k], ls[k]))
        a('v_rcp_f32 v%d, v%d' % (vT3, vT3))
        for k in range(1, 4):
            a('v_fmac_f32 v%d, v%d, v%d' % (vT1, ms[k], o0[k]))
            a('v_fmac_f32 v%d, v%d, v%d' % (vT2, ms[k], o0[k] + 1))
        a('v_mul_f32 v%d, v%d, v%d' % (vT1, vT1, vT3))
        a('v_mul_f32 v%d, v%d, v%d' % (vT2, vT2, vT3))
        a('v_cvt_pk_bf16_f32 v%d, v%d, v%d' % (vT1, vT1, vT2))
        a('global_store_dword v%d, v%d, s[16:17]' % (vOut, vT1))
        if cfg.epoch and not cfg.noEst:
            a('s_lshl_b32 s%d, s%d, 7' % (sT0, sP))
            a('s_add_u32 s%d, s%d, %d' % (sT0, sT0, EOFF))
            a('v_mov_b32 v%d, s%d' % (vT0, sT0))
            a('v_mov_b32 v%d, s%d' % (vT2, sTag))
            a('s_cmp_eq_u32 s%d, 0' % sJ)
            a('s_cbranch_scc0 L_noEst' + sfx)
            a('s_mov_b64 exec, 1')
            a('global_store_dword v%d, v%d, s[20:21]' % (vT0, vT2))
            a.label('L_noEst' + sfx)

    def poll_loads(z):
        for k in range(3):
            a('global_load_dwordx4 %s, v%d, s[20:21] %s' % (r(z + 4 * k, 4), vPa + k, cfg.pollpol))

    def poll_check(z):
        for k in range(3):
            a('v_readfirstlane_b32 s%d, v%d' % (sT0 + k, z + 4 * k + 2))
        a('v_xor_b32 v%d, s%d, v%d' % (vT1, sTag, z + 3))
        a('v_xor_b32 v%d, s%d, v%d' % (vT2, sTag, z + 7))
        a('v_xor_b32 v%d, s%d, v%d' % (vT3, sTag, z + 11))
        a('v_or3_b32 v%d, v%d, v%d, v%d' % (vT1, vT1, vT2, vT3))
        a('v_xor_b32 v%d, s%d, v%d' % (vT0, sT0, z + 2))
        a('v_xor_b32 v%d, s%d, v%d' % (vT2, sT0 + 1, z + 6))
        a('v_xor_b32 v%d, s%d, v%d' % (vT3, sT0 + 2, z + 10))
        a('v_or3_b32 v%d, v%d, v%d, v%d' % (vT0, vT0, vT2, vT3))
        a('v_or_b32 v%d, v%d, v%d' % (vT1, vT1, vT0))
        a('v_cmp_ne_u32 vcc, 0, v%d' % vT1)

    if cfg.stag:
        z2 = z + 16
        poll_loads(z)
        a.label('L_poll')
        poll_loads(z2)
        a('s_waitcnt vmcnt(3)')
        poll_check(z)
        spin_guard('L_end')
        a('s_cbranch_vccz L_polled')
        poll_loads(z)
        a('s_waitcnt vmcnt(3)')
        poll_check(z2)
        a('s_cbranch_vccnz L_poll')
        final_combine(z2, 'b')
        a('s_endpgm')
        a.label('L_polled')
    else:
        a.label('L_poll')
        if cfg.nopoll:
            a('s_branch L_polled2')
        poll_loads(z)
        a('s_waitcnt vmcnt(0)')
        poll_check(z)
        spin_guard('L_end')
        if not cfg.tight:
            a.nop(5)
        if cfg.psleep:
            a('s_cbranch_vccz L_polled')
            a('s_sleep %d' % cfg.psleep)
            a('s_branch L_poll')
            a.label('L_polled')
        else:
            a('s_cbranch_vccnz L_poll')
    if cfg.nopoll:
        a.label('L_polled2')
    stamp('polled')
    final_combine(z, 'a')
    stamp('out')
    dump_stamps()
    a.label('L_end')
    a('s_endpgm')
    if cfg.cpf:
        a.label('L_codeend')
    return a, LDS, nvgpr


KD = """.section .rodata,"a"
.p2align 6
.amdhsa_kernel %s
  .amdhsa_next_free_vgpr %d
  .amdhsa_next_free_sgpr %d
  .amdhsa_accum_offset %d
  .amdhsa_group_segment_fixed_size 0
  .amdhsa_kernarg_size 72
  .amdhsa_user_sgpr_count 2
  .amdhsa_user_sgpr_kernarg_segment_ptr 1
  .amdhsa_system_sgpr_workgroup_id_x 1
.end_amdhsa_kernel
"""


def kernel_text(name, body):
    return ('.text\n.globl %s\n.p2align 8\n.type %s,@function\n%s:\n' % (name, name, name)) + body


def generate(cfg):
    a, lds, nv = gen_main(cfg)
    out = HEADER
    out += '; @launch grid=(256,1,1) block=(%d,1,1) lds=%d\n' % (256, lds)
    out += '.amdgcn_target "amdgcn-amd-amdhsa--gfx950"\n'
    out += kernel_text(KMAIN, a.finalize())
    nva = (nv + 7) // 8 * 8
    out += KD % (KMAIN, nva, 100, (nva + 3) // 4 * 4)
    return out


if __name__ == '__main__':
    ap = argparse.ArgumentParser()
    ap.add_argument('-o', default='cdna_kernels/' + NAME + '.s')
    ap.add_argument('opts', nargs='*', help='key=value')
    args = ap.parse_args()
    kw = {}
    for o in args.opts:
        k, v = o.split('=', 1)
        try:
            v = int(v)
        except ValueError:
            pass
        kw[k] = v
    cfg = Cfg(**kw)
    txt = generate(cfg)
    open(args.o, 'w').write(txt)
    print('wrote', args.o, len(txt), 'bytes')
    if cfg.stamp:
        open(args.o[:-2] + '.names', 'w').write('\n'.join(cfg.stamp_names) + '\n')
```

```python
import argparse
import math
import re
import struct
import sys
import os

sys.path.insert(0, os.path.dirname(os.path.abspath(__file__)))
from asmlib import Asm

NAME = 'standalone__tree_speculative_verify_tree_attention_over_candidate_token_tree__decode'
KMAIN = NAME + '_kernel'

HEADER = """; Kernarg layout for this problem (72 bytes, ptrs only, base s[0:1]):
;   offset  24: d_in[3] k_tree  shape=(8, 8, 1, 128) dtype=bfloat16 strides=(2048, 256, 256, 2) contiguous=True
;   offset  32: d_in[4] v_tree  shape=(8, 8, 1, 128) dtype=bfloat16 strides=(2048, 256, 256, 2) contiguous=True
;   offset  40: d_in[5] tree_mask  shape=(8, 1, 1) dtype=bfloat16 strides=(2, 2, 2) contiguous=True
"""


def f2u(x):
    return struct.unpack('<I', struct.pack('<f', x))[0]


def hx(x):
    return '0x%08x' % (x & 0xffffffff)


SCALE_LOG2E = (128.0 ** -0.5) * math.log2(math.e)
NEG_BIG_LOG2E = -1.0e9 * math.log2(math.e)

PIECE = 1056
TILE = 8 * PIECE
NW = 4
NT = 8


class Cfg:
    def __init__(self, **kw):
        self.ns = 4
        self.pol = 'nt'
        self.low = 'w0j0w1j1'
        self.high = 'n0n2n1'
        self.stamp = 0
        self.local = 1
        self.early = 1
        self.psleep = 0
        self.treeskip = 0
        self.mix = 1
        self.pubpol = ''
        self.stag = 0
        self.nok = 0
        self.nov = 0
        self.nosm = 0
        self.notree = 0
        self.prio = 0
        self.wpos = '10,11'
        self.ppos = ''
        self.bits = ''
        self.vtouch = 0
        self.eoff = 0x200000
        self.otouch = 0
        self.qpos = -1
        self.tpos = 0
        self.epos = 0
        self.compact = 1
        self.tight = 1
        self.map0 = 0
        self.vpol = 'same'
        self.pfin = 1
        self.pollpol = 'sc1'
        self.nopub = 0
        self.nopoll = 0
        self.noEst = 0
        self.noE = 0
        self.noX = 0
        self.epoch = 1
        self.plainld = 0
        self.nclr = 4
        self.clrpol = 'sc1'
        self.flagst = 1
        self.noflagld = 0
        self.helper = 0
        self.lock = 2
        self.diag = 0
        self.ilv = 1
        self.ihigh = 'n0n1n2j0j1'
        self.split = 1
        self.cpf = 0
        self.xr = 0
        self.spin = 0
        self.__dict__.update(kw)


class VM:
    def __init__(self, a):
        self.a = a
        self.ops = []

    def issue(self, text, tag):
        self.a(text)
        self.ops.append(tag)

    def count(self, *tags):
        last = max(i for i, t in enumerate(self.ops) if t in tags)
        n = len(self.ops) - 1 - last
        assert n <= 63, n
        return n

    def wait(self, *tags):
        self.a('s_waitcnt vmcnt(%d)' % self.count(*tags))


def gen_main(cfg):
    a = Asm()
    vm = VM(a)
    NS = cfg.ns
    RING = NS * TILE
    RED = NW * RING
    PSTR = 2240
    MLOFF = 2112
    LDS = RED + NW * PSTR
    assert LDS <= 163840, LDS

    sP, sJ = 36, 37
    sBase, sOff, sLds, sC = 32, 33, 34, 35
    sT0, sT1, sT2, sT3 = 38, 39, 40, 41
    sBig, sXcc, sFlag, sSpin = 42, 43, 22, 23
    s4k = 97
    sE, sTag = 98, 99
    EOFF = cfg.eoff
    XOFF = cfg.eoff + 0x10000
    vL16w = 3
    vLane, vL16, vL16b, vK, vV = 1, 2, 3, 4, 5
    vT0, vT1, vT2, vT3 = 6, 7, 8, 9
    vTree, vVt, vMask = 10, 11, 12
    vM, vL = 13, 14
    vFlagA = 0
    vL2 = 12
    vQ = 16
    vStage = 32
    vS = 64
    vP = vS + NT * 8
    vO = vP + NT * 4
    vKt = vO + 32
    vTD = vKt + 16
    nvgpr = vTD + 4
    vPm = vO + 8
    sMask = 88
    vFlag = vTD + 2
    vMLa = vTD
    vEp1, vEp2, vEp3, vPub, vOut = vKt, vKt + 1, vKt + 2, vKt + 3, vKt + 4
    vPa = vKt + 5
    vG = vKt + 8
    vW = vKt + 12
    assert vG % 2 == 0

    def r(base, n):
        return 'v[%d:%d]' % (base, base + n - 1)

    stamps = []

    def stamp(name):
        if not cfg.stamp:
            return
        i = len(stamps)
        assert 44 + 2 * i + 1 < 96
        stamps.append(name)
        a('s_memrealtime s[%d:%d]' % (44 + 2 * i, 45 + 2 * i))
        a('s_waitcnt lgkmcnt(0)')

    def dump_stamps():
        if not cfg.stamp:
            return
        v = vS
        a('v_mov_b32 v%d, 0' % v)
        for i in range(len(stamps)):
            a('v_writelane_b32 v%d, s%d, %d' % (v, 44 + 2 * i, i))
        a('v_writelane_b32 v%d, s%d, 62' % (v, sXcc))
        a('s_lshl_b32 s%d, s2, 3' % sT3)
        a('s_add_u32 s%d, s%d, s3' % (sT3, sT3))
        a('s_lshl_b32 s%d, s%d, 8' % (sT3, sT3))
        a('s_add_u32 s%d, s%d, 0x8000000' % (sT3, sT3))
        a('v_lshlrev_b32 v%d, 2, v%d' % (v + 1, vLane))
        a('v_add_u32 v%d, s%d, v%d' % (v + 1, sT3, v + 1))
        a('global_store_dword v%d, v%d, s[20:21]' % (v + 1, v))
        cfg.stamp_names = list(stamps)

    def spin_guard(exit_label):
        if cfg.spin:
            a('s_sub_u32 s%d, s%d, 1' % (sSpin, sSpin))
            a('s_cbranch_scc1 ' + exit_label)

    gb = None
    if cfg.bits:
        names = re.findall(r'[wjni]\d', cfg.bits)
        assert sorted(names) == sorted(['w0', 'w1', 'i0', 'i1', 'i2', 'n0', 'n1', 'n2', 'j0', 'j1']), names
        gb = {nm: 10 + pos for pos, nm in enumerate(names)}
    if cfg.ilv:
        hi = re.findall(r'[nj]\d', cfg.ihigh)
        assert sorted(hi) == ['j0', 'j1', 'n0', 'n1', 'n2']
        npos = {int(nm[1]): 15 + pos for pos, nm in enumerate(hi) if nm[0] == 'n'}
        jpos = {int(nm[1]): 15 + pos for pos, nm in enumerate(hi) if nm[0] == 'j'}
        if gb:
            npos = {k: gb['n%d' % k] for k in range(3)}
            jpos = {k: gb['j%d' % k] for k in range(2)}
            cfg.wpos = '%d,%d' % (gb['w0'], gb['w1'])
            cfg.ppos = '%d,%d,%d' % (gb['i0'], gb['i1'], gb['i2'])
    else:
        hi = re.findall(r'n\d', cfg.high)
        assert sorted(hi) == ['n0', 'n1', 'n2']
        npos = {int(nm[1]): 17 + pos for pos, nm in enumerate(hi)}

    def tile_delta(t):
        return sum(((t >> k) & 1) << npos[k] for k in range(3))

    def issue_tile(n, compact=False):
        isk = n < NT
        slot = n % NS
        srd = 's[24:27]' if isk else 's[28:31]'
        d = tile_delta(n % NT)
        if cfg.ilv:
            for i in range(8):
                if (cfg.lock == 3 and i == 4) or (cfg.lock == 4 and i in (2, 4, 6)) or (cfg.lock == 5 and i > 0):
                    a('s_barrier')
                if compact:
                    if i > 0:
                        a('s_add_u32 m0, m0, s%d' % sBig)
                else:
                    a('s_add_u32 m0, s%d, %d' % (sLds, slot * TILE + i * PIECE))
                if cfg.wpos == '10,11' and not gb:
                    if i == 0:
                        if d:
                            a('s_xor_b32 s%d, s%d, %d' % (sOff, sBase, d))
                        else:
                            a('s_mov_b32 s%d, s%d' % (sOff, sBase))
                    else:
                        a('s_add_u32 s%d, s%d, s%d' % (sOff, sOff, s4k))
                else:
                    wp = [int(x) for x in cfg.wpos.split(',')]
                    pp = [int(x) for x in cfg.ppos.split(',')] if cfg.ppos else [b for b in range(10, 15) if b not in wp]
                    assert gb or sorted(pp + wp) == [10, 11, 12, 13, 14]
                    off = sum(((i >> k) & 1) << pp[k] for k in range(3))
                    a('s_xor_b32 s%d, s%d, %d' % (sOff, sBase, d ^ off))
                txt = 'buffer_load_dwordx4 v%d, %s, s%d offen' % (vL16w, srd, sOff)
                pol = cfg.pol if isk else (cfg.vpol if cfg.vpol != 'same' else cfg.pol)
                if pol and pol != 'none':
                    txt += ' ' + pol.replace('+', ' ')
                txt += ' lds'
                vm.issue(txt, ('tile', n))
            return
        if d:
            a('s_xor_b32 s%d, s%d, %d' % (sOff, sBase, d))
            so = sOff
        else:
            so = sBase
        for i in range(8):
            if compact:
                if i > 0:
                    if i == 4:
                        a('s_add_u32 m0, m0, s%d' % sBig)
                    else:
                        a('s_add_u32 m0, m0, 32')
            else:
                m0 = slot * TILE + i * 32 + (4096 if i >= 4 else 0)
                a('s_add_u32 m0, s%d, %d' % (sLds, m0))
            voff = vL16 if i < 4 else vL16b
            off = (i & 3) * 1024
            txt = 'buffer_load_dwordx4 v%d, %s, s%d offen' % (voff, srd, so)
            if off:
                txt += ' offset:%d' % off
            if cfg.pol:
                txt += ' ' + cfg.pol.replace('+', ' ')
            txt += ' lds'
            vm.issue(txt, ('tile', n))

    def epoch_load():
        a('s_lshl_b32 s%d, s%d, 7' % (sT2, sP))
        a('s_add_u32 s%d, s%d, %d' % (sT2, sT2, EOFF))
        if not cfg.noE:
            a('s_load_dword s%d, s[20:21], s%d' % (sE, sT2))

    def q_addr():
        a('v_and_b32 v%d, 3, v%d' % (vT0, vLane))
        a('v_lshlrev_b32 v%d, 8, v%d' % (vT0, vT0))
        a('v_lshrrev_b32 v%d, 4, v%d' % (vT1, vLane))
        a('v_lshlrev_b32 v%d, 4, v%d' % (vT1, vT1))
        a('s_lshl_b32 s%d, s%d, 10' % (sT0, sP))
        a('v_add3_u32 v%d, v%d, v%d, s%d' % (vT0, vT0, vT1, sT0))

    def q_loads():
        if cfg.qpos >= 0:
            q_addr()
        for s in range(4):
            vm.issue('global_load_dwordx4 %s, v%d, s[4:5] offset:%d' % (r(vQ + 4 * s, 4), vT0, s * 64), 'small')

    def tree_addr():
        a('v_lshrrev_b32 v%d, 4, v%d' % (vT1, vLane))
        a('v_lshlrev_b32 v%d, 4, v%d' % (vT1, vT1))
        a('s_lshl_b32 s%d, s%d, 8' % (sT1, sP))
        a('v_add_u32 v%d, s%d, v%d' % (vT1, sT1, vT1))
        a('v_lshlrev_b32 v%d, 2, v%d' % (vT2, vLane))
        a('v_add_u32 v%d, s%d, v%d' % (vT2, sT1, vT2))
        a('s_lshr_b32 s%d, s%d, 3' % (sT2, sP))
        a('s_lshl_b32 s%d, s%d, 1' % (sT2, sT2))
        a('v_mov_b32 v%d, s%d' % (vT3, sT2))

    def tree_loads():
        if cfg.treeskip:
            a('s_cmp_eq_u32 s%d, 0' % sJ)
            a('s_cbranch_scc0 L_notreeld')
        if cfg.tpos >= 0:
            tree_addr()
        for s in range(4):
            vm.issue('global_load_dwordx4 %s, v%d, s[10:11] offset:%d' % (r(vKt + 4 * s, 4), vT1, s * 64), 'tree')
        vm.issue('global_load_dword v%d, v%d, s[12:13]' % (vVt, vT2), 'tree')
        vm.issue('global_load_ushort v%d, v%d, s[14:15]' % (vMask, vT3), 'tree')
        if cfg.vtouch:
            vm.issue('buffer_load_dword v15, off, s[28:31], s%d%s' % (sBase, ' nt' if cfg.vtouch == 2 else ''), 'tree')
        if cfg.treeskip:
            a.label('L_notreeld')

    if cfg.stamp:
        a('s_cmp_ge_u32 s2, 256')
        a('s_cbranch_scc1 L_end')
        stamp('entry')
    a('s_load_dwordx16 s[4:19], s[0:1], 0')
    a('s_load_dwordx2 s[20:21], s[0:1], 64')
    if not cfg.stamp:
        a('s_cmp_ge_u32 s2, 256')
        a('s_cbranch_scc1 L_end')
    a('v_readfirstlane_b32 s3, v0')
    a('v_and_b32 v%d, 63, v0' % vLane)
    a('v_lshlrev_b32 v%d, 4, v%d' % (vL16, vLane))
    a('s_mov_b32 s26, 0x4000000')
    a('s_mov_b32 s27, 0x20000')
    a('s_lshr_b32 s3, s3, 6')
    if cfg.map0:
        a('s_lshr_b32 s%d, s2, 2' % sP)
        a('s_and_b32 s%d, s2, 3' % sJ)
    else:
        a('s_and_b32 s%d, s2, 7' % sT0)
        a('s_bfe_u32 s%d, s2, 0x20003' % sJ)
        a('s_lshr_b32 s%d, s2, 5' % sT1)
        a('s_lshl_b32 s%d, s%d, 3' % (sP, sT0))
        a('s_add_u32 s%d, s%d, s%d' % (sP, sP, sT1))
    if cfg.ilv:
        if jpos[1] == jpos[0] + 1:
            a('s_lshl_b32 s%d, s%d, %d' % (sT0, sJ, jpos[0]))
        else:
            a('s_and_b32 s%d, s%d, 1' % (sT0, sJ))
            a('s_lshl_b32 s%d, s%d, %d' % (sT0, sT0, jpos[0]))
            a('s_lshr_b32 s%d, s%d, 1' % (sT1, sJ))
            a('s_lshl_b32 s%d, s%d, %d' % (sT1, sT1, jpos[1]))
            a('s_or_b32 s%d, s%d, s%d' % (sT0, sT0, sT1))
        wp = [int(x) for x in cfg.wpos.split(',')]
        if wp[1] == wp[0] + 1:
            a('s_lshl_b32 s%d, s3, %d' % (sT1, wp[0]))
        else:
            a('s_and_b32 s%d, s3, 1' % sT1)
            a('s_lshl_b32 s%d, s%d, %d' % (sT1, sT1, wp[0]))
            a('s_lshr_b32 s%d, s3, 1' % sT2)
            a('s_lshl_b32 s%d, s%d, %d' % (sT2, sT2, wp[1]))
            a('s_or_b32 s%d, s%d, s%d' % (sT1, sT1, sT2))
        a('v_add_u32 v%d, s%d, v%d' % (vL16w, sT1, vL16))
        a('s_movk_i32 s%d, 0x1000' % s4k)
    elif cfg.low == 'w0w1j0j1':
        a('s_lshl_b32 s%d, s%d, 2' % (sT0, sJ))
        a('s_add_u32 s%d, s%d, s3' % (sT0, sT0))
        a('s_lshl_b32 s%d, s%d, 13' % (sT0, sT0))
    elif cfg.low == 'w0j0w1j1':
        a('s_lshl_b32 s%d, s%d, 2' % (sT0, sJ))
        a('s_or_b32 s%d, s%d, s3' % (sT0, sT0))
        a('s_and_b32 s%d, s%d, 6' % (sT1, sT0))
        a('s_lshr_b32 s%d, s%d, 1' % (sT2, sT1))
        a('s_xor_b32 s%d, s%d, s%d' % (sT2, sT2, sT1))
        a('s_and_b32 s%d, s%d, 2' % (sT2, sT2))
        a('s_mul_i32 s%d, s%d, 3' % (sT2, sT2))
        a('s_xor_b32 s%d, s%d, s%d' % (sT0, sT0, sT2))
        a('s_lshl_b32 s%d, s%d, 13' % (sT0, sT0))
    else:
        raise ValueError(cfg.low)
    a('s_lshl_b32 s%d, s%d, 20' % (sBase, sP))
    a('s_add_u32 s%d, s%d, s%d' % (sBase, sBase, sT0))
    if cfg.xr:
        if cfg.xr == 1:
            a('s_lshr_b32 s%d, s2, 5' % sT0)
        elif cfg.xr == 2:
            a('s_and_b32 s%d, s2, 7' % sT0)
        elif cfg.xr == 3:
            a('s_lshr_b32 s%d, s2, 5' % sT0)
            a('s_xor_b32 s%d, s%d, s2' % (sT0, sT0))
            a('s_and_b32 s%d, s%d, 7' % (sT0, sT0))
        elif cfg.xr == 4:
            a('s_bfe_u32 s%d, s2, 0x20005' % sT0)
        elif cfg.xr == 5:
            a('s_and_b32 s%d, s2, 3' % sT0)
        elif cfg.xr == 6:
            a('s_and_b32 s%d, s2, 1' % sT0)
            a('s_lshl_b32 s%d, s%d, 2' % (sT0, sT0))
        elif cfg.xr == 7:
            a('s_bfe_u32 s%d, s2, 0x10005' % sT0)
            a('s_lshl_b32 s%d, s%d, 2' % (sT0, sT0))
        elif cfg.xr == 8:
            a('s_mov_b32 s%d, s%d' % (sT0, sJ))
        a('s_lshl_b32 s%d, s%d, %d' % (sT0, sT0, 15 if cfg.ilv else 17))
        a('s_xor_b32 s%d, s%d, s%d' % (sBase, sBase, sT0))
    a('s_mul_i32 s%d, s3, %d' % (sLds, RING))
    if cfg.ilv:
        a('s_movk_i32 s%d, %d' % (sBig, PIECE))
    else:
        a('s_movk_i32 s%d, 4128' % sBig)
        a('v_add_u32 v%d, 4096, v%d' % (vL16b, vL16))
    a('s_mov_b32 m0, s%d' % sLds)
    if cfg.qpos < 0:
        q_addr()
    if cfg.tpos < 0:
        tree_addr()
    a('s_waitcnt lgkmcnt(0)')
    a('s_mov_b64 s[24:25], s[6:7]')
    stamp('karg')
    if cfg.qpos < 0:
        q_loads()
    if cfg.tpos < 0:
        tree_loads()
    if cfg.epos < 0:
        epoch_load()
    issue_tile(0, compact=True)
    a('s_mov_b64 s[28:29], s[8:9]')
    a('s_mov_b64 s[30:31], s[26:27]')
    a('s_lshl_b32 s2, s%d, 2' % sP)
    a('s_add_u32 s2, s2, s%d' % sJ)
    a('s_getreg_b32 s%d, hwreg(HW_REG_XCC_ID, 0, 4)' % sXcc)
    if cfg.spin:
        a('s_mov_b32 s%d, %d' % (sSpin, cfg.spin))
    if cfg.prio:
        pr = {1: [0, 1, 2, 3], 2: [3, 2, 1, 0], 3: [0, 0, 1, 1], 4: [0, 1, 0, 1]}[cfg.prio]
        for w in range(4):
            if pr[w]:
                a('s_cmp_eq_u32 s3, %d' % w)
                a('s_cbranch_scc0 L_prio%d' % w)
                a('s_setprio %d' % pr[w])
                a.label('L_prio%d' % w)

    if cfg.cpf:
        a('s_getpc_b64 s[%d:%d]' % (sT0, sT0 + 1))
        a.label('L_pc')
        a('s_sub_u32 s%d, s%d, L_pc-%s' % (sT0, sT0, KMAIN))
        a('s_subb_u32 s%d, s%d, 0' % (sT0 + 1, sT0 + 1))
        a('s_lshl_b32 s%d, s%d, 2' % (sT2, sJ))
        a('s_add_u32 s%d, s%d, s3' % (sT2, sT2))
        a('s_lshl_b32 s%d, s%d, 10' % (sT2, sT2))
        a('s_min_u32 s%d, s%d, L_codeend-%s-1024' % (sT2, sT2, KMAIN))
        a('v_add_u32 v%d, s%d, v%d' % (vT0, sT2, vL16))
        a('v_mov_b32 v%d, s%d' % (vT1, sT0 + 1))
        a('v_add_co_u32 v%d, vcc, s%d, v%d' % (vT0, sT0, vT0))
        a('v_addc_co_u32 v%d, vcc, 0, v%d, vcc' % (vT1, vT1))
        a('global_load_dwordx4 %s, %s, off' % (r(vO, 4), r(vT0, 2)))
    if cfg.epos == 0:
        epoch_load()
    if cfg.qpos == 0:
        q_loads()
    if cfg.tpos == 0:
        tree_loads()
    for n in range(1, NS):
        if cfg.lock >= 2:
            a('s_barrier')
        issue_tile(n)
        if cfg.tpos == n:
            tree_loads()

    a('v_and_b32 v%d, 7, v%d' % (vT0, vLane))
    a('v_mul_u32_u24 v%d, %d, v%d' % (vT0, PIECE, vT0))
    a('v_bfe_u32 v%d, v%d, 3, 1' % (vT1, vLane))
    a('v_lshlrev_b32 v%d, 8, v%d' % (vT1, vT1))
    a('v_lshrrev_b32 v%d, 4, v%d' % (vT2, vLane))
    a('v_lshlrev_b32 v%d, 4, v%d' % (vT2, vT2))
    a('v_add3_u32 v%d, v%d, v%d, v%d' % (vK, vT0, vT1, vT2))
    a('v_add_u32 v%d, s%d, v%d' % (vK, sLds, vK))
    a('v_bfe_u32 v%d, v%d, 2, 3' % (vT0, vLane))
    a('v_mul_u32_u24 v%d, %d, v%d' % (vT0, PIECE, vT0))
    a('v_lshrrev_b32 v%d, 5, v%d' % (vT1, vLane))
    a('v_lshlrev_b32 v%d, 8, v%d' % (vT1, vT1))
    a('v_and_b32 v%d, 3, v%d' % (vT2, vLane))
    a('v_lshlrev_b32 v%d, 3, v%d' % (vT2, vT2))
    a('v_add3_u32 v%d, v%d, v%d, v%d' % (vV, vT0, vT1, vT2))
    a('v_add_u32 v%d, s%d, v%d' % (vV, sLds, vV))
    a('s_mov_b32 s%d, %s' % (sC, hx(f2u(SCALE_LOG2E))))
    if cfg.compact:
        for i in range(8):
            a('v_mov_b32 v%d, 0' % (vO + i))
        for g in range(4):
            a('s_mov_b32 s%d, 0x%x' % (sMask + 2 * g, 0x000f000f << (4 * g)))
            a('s_mov_b32 s%d, s%d' % (sMask + 2 * g + 1, sMask + 2 * g))
    elif not cfg.cpf:
        for i in range(32):
            a('v_mov_b32 v%d, 0' % (vO + i))

    def tree_score():
        if cfg.treeskip:
            a('s_cmp_eq_u32 s%d, 0' % sJ)
            a('s_cbranch_scc1 L_tree')
            a('v_mov_b32 v%d, 0xff800000' % vTree)
            a('v_mov_b32 v%d, 0' % vVt)
            a('s_branch L_treedone')
            a.label('L_tree')
        for s in range(4):
            a('v_mfma_f32_16x16x32_bf16 %s, %s, %s, %s' % (
                r(vTD, 4), r(vKt + 4 * s, 4), r(vQ + 4 * s, 4), '0' if s == 0 else r(vTD, 4)))
        a('v_lshlrev_b32 v%d, 16, v%d' % (vMask, vMask))
        a('v_sub_f32 v%d, 1.0, v%d' % (vMask, vMask))
        a('v_mul_f32 v%d, %s, v%d' % (vMask, hx(f2u(NEG_BIG_LOG2E)), vMask))
        if not cfg.treeskip:
            a('s_cmp_eq_u32 s%d, 0' % sJ)
            a('s_cselect_b32 s%d, 0, 0xff800000' % sT1)
        a('v_readlane_b32 s%d, v%d, s3' % (sT2, vTD))
        a('v_mov_b32 v%d, s%d' % (vTree, sT2))
        a('v_fma_f32 v%d, v%d, s%d, v%d' % (vTree, vTree, sC, vMask))
        if not cfg.treeskip:
            a('v_add_f32 v%d, s%d, v%d' % (vTree, sT1, vTree))
        else:
            a.label('L_treedone')

    tree_done = []

    def k_tile(n):
        t = n
        slot = n % NS
        if n == 0:
            if cfg.tpos <= 0:
                vm.wait(('tile', 0), 'small', 'tree')
            else:
                vm.wait(('tile', 0), 'small')
        else:
            vm.wait(('tile', n))
        if n in (0, 3, 7):
            stamp('tile%d' % n)
        if cfg.diag >= 2 or cfg.nok:
            issue_tile(n + NS)
            return
        for w in range(2):
            for s in range(4):
                a('ds_read_b128 %s, v%d offset:%d' % (
                    r(vStage + 16 * w + 4 * s, 4), vK, slot * TILE + w * 512 + s * 64))
        a('s_waitcnt lgkmcnt(0)')
        if n == 0:
            a('s_mul_i32 s%d, s%d, 1664525' % (sTag, sE))
            a('s_add_u32 s%d, s%d, 1013904223' % (sTag, sTag))
            if cfg.local and not cfg.noX:
                a('s_cmp_eq_u32 s3, s%d' % sJ)
                a('s_cbranch_scc0 L_noxcc')
                a('s_or_b32 s%d, s%d, 0x80' % (sT1, sXcc))
                a('s_xor_b32 s%d, s%d, s%d' % (sT1, sT1, sTag))
                a('s_lshl_b32 s%d, s%d, 7' % (sT0, sP))
                a('s_lshl_b32 s%d, s%d, 3' % (sT2, sJ))
                a('s_add_u32 s%d, s%d, s%d' % (sT0, sT0, sT2))
                a('s_add_u32 s%d, s%d, %d' % (sT0, sT0, XOFF))
                a('v_mov_b32 v%d, s%d' % (vT0, sT0))
                a('v_mov_b32 v%d, s%d' % (vT2, sTag))
                a('v_mov_b32 v%d, s%d' % (vT3, sT1))
                a('s_mov_b64 exec, 1')
                a('global_store_dwordx2 v%d, %s, s[20:21] sc1' % (vT0, r(vT2, 2)))
                a('s_mov_b64 exec, -1')
                a.label('L_noxcc')
        if cfg.lock:
            a('s_barrier')
        issue_tile(n + NS)
        for s in range(4):
            for w in range(2):
                d = r(vS + 8 * t + 4 * w, 4)
                a('v_mfma_f32_16x16x32_bf16 %s, %s, %s, %s' % (
                    d, r(vStage + 16 * w + 4 * s, 4), r(vQ + 4 * s, 4), '0' if s == 0 else d))
        if not tree_done and vm.ops.index('tree') < vm.ops.index(('tile', n)) or (n == 0 and cfg.tpos <= 0):
            if not tree_done:
                if not cfg.notree:
                    tree_score()
                tree_done.append(n)

    def xg_reduce(v, op):
        a('v_mov_b32 v%d, v%d' % (vT0, v))
        a('v_permlane32_swap_b32 v%d, v%d' % (vT0, v))
        a('%s v%d, v%d, v%d' % (op, v, v, vT0))
        a('v_mov_b32 v%d, v%d' % (vT0, v))
        a('v_permlane16_swap_b32 v%d, v%d' % (vT0, v))
        a('%s v%d, v%d, v%d' % (op, v, v, vT0))

    def softmax():
        n = NT * 8
        acc = [vM, vT1, vT2, vT3]
        idx = 0
        for k in range(4):
            a('v_max3_f32 v%d, v%d, v%d, v%d' % (acc[k], vS + idx, vS + idx + 1, vS + idx + 2))
            idx += 3
        k = 0
        while idx + 1 < n:
            a('v_max3_f32 v%d, v%d, v%d, v%d' % (acc[k], acc[k], vS + idx, vS + idx + 1))
            idx += 2
            k = (k + 1) % 4
        while idx < n:
            a('v_max_f32 v%d, v%d, v%d' % (acc[k], acc[k], vS + idx))
            idx += 1
        a('v_max3_f32 v%d, v%d, v%d, v%d' % (vM, vM, vT1, vT2))
        a('v_max_f32 v%d, v%d, v%d' % (vM, vM, vT3))
        xg_reduce(vM, 'v_max_f32')
        a('v_mul_f32 v%d, s%d, v%d' % (vM, sC, vM))
        a('v_mov_b32 v%d, 0' % vL)
        a('v_mov_b32 v%d, 0' % vL2)

    def probs(t):
        if cfg.nosm:
            return
        b = vS + 8 * t
        for i in range(8):
            a('v_fma_f32 v%d, v%d, s%d, -v%d' % (b + i, b + i, sC, vM))
        for i in range(8):
            a('v_exp_f32 v%d, v%d' % (b + i, b + i))
        for i in range(4):
            a('v_cvt_pk_bf16_f32 v%d, v%d, v%d' % (vP + 4 * t + i, b + 2 * i, b + 2 * i + 1))
        for i in range(4):
            a('v_add_f32 v%d, v%d, v%d' % (vL, vL, b + 2 * i))
            a('v_add_f32 v%d, v%d, v%d' % (vL2, vL2, b + 2 * i + 1))

    def finish_sum():
        a('v_add_f32 v%d, v%d, v%d' % (vL, vL, vL2))
        xg_reduce(vL, 'v_add_f32')

    def mid_setup():
        a('s_lshl_b32 s%d, s%d, 7' % (sT1, sP))
        a('s_add_u32 s%d, s%d, %d' % (sT1, sT1, XOFF))
        a('v_and_b32 v%d, 7, v%d' % (vFlagA, vLane))
        a('v_lshlrev_b32 v%d, 2, v%d' % (vFlagA, vFlagA))
        a('v_add_u32 v%d, s%d, v%d' % (vFlagA, sT1, vFlagA))
        vm.issue('global_load_dword v%d, v%d, s[20:21]' % (vFlag, vFlagA), 'flag')
        a('s_or_b32 s%d, s%d, 0x80' % (sT1, sXcc))
        a('v_and_b32 v%d, 1, v%d' % (vFlag + 1, vLane))
        a('v_mul_u32_u24 v%d, s%d, v%d' % (vFlag + 1, sT1, vFlag + 1))
        a('v_xor_b32 v%d, s%d, v%d' % (vFlag + 1, sTag, vFlag + 1))
        a('s_lshl_b32 s%d, s%d, 2' % (sT0, sP))
        a('s_add_u32 s%d, s%d, s3' % (sT0, sT0))
        a('s_lshl_b32 s%d, s%d, 2' % (sT0, sT0))
        a('s_add_u32 s%d, s%d, s%d' % (sT0, sT0, sJ))
        a('s_lshl_b32 s%d, s%d, 10' % (sT0, sT0))
        a('v_add_u32 v%d, s%d, v%d' % (vPub, sT0, vL16))
        a('s_lshl_b32 s%d, s2, 12' % sT0)
        for k in range(1, 4):
            a('s_add_u32 s%d, s%d, %d' % (sT1, sJ, k))
            a('s_and_b32 s%d, s%d, 3' % (sT1, sT1))
            a('s_lshl_b32 s%d, s%d, 10' % (sT1, sT1))
            a('s_add_u32 s%d, s%d, s%d' % (sT1, sT1, sT0))
            a('v_add_u32 v%d, s%d, v%d' % (vPa + k - 1, sT1, vL16))
        a('s_lshl_b32 s%d, s2, 8' % sT0)
        a('v_lshlrev_b32 v%d, 2, v%d' % (vOut, vLane))
        a('v_add_u32 v%d, s%d, v%d' % (vOut, sT0, vOut))
        a('s_mul_i32 s%d, s3, %d' % (sT0, PSTR))
        a('s_add_u32 s%d, s%d, %d' % (sT0, sT0, RED))
        a('v_and_b32 v%d, 3, v%d' % (vT0, vLane))
        a('v_mul_u32_u24 v%d, 528, v%d' % (vT1, vT0))
        a('v_lshrrev_b32 v%d, 4, v%d' % (vT2, vLane))
        a('v_lshlrev_b32 v%d, 4, v%d' % (vT3, vT2))
        a('v_add3_u32 v%d, v%d, v%d, s%d' % (vEp1, vT1, vT3, sT0))
        if cfg.compact:
            a('v_bfe_u32 v%d, v%d, 2, 2' % (vT1, vLane))
            a('v_lshl_add_u32 v%d, v%d, 6, v%d' % (vEp1, vT1, vEp1))
        a('v_lshl_add_u32 v%d, v%d, 2, v%d' % (vT2, vT2, vT0))
        a('v_lshlrev_b32 v%d, 3, v%d' % (vMLa, vT2))
        a('v_add_u32 v%d, s%d, v%d' % (vMLa, sT0, vMLa))
        a('s_mul_i32 s%d, s3, 528' % sT0)
        a('s_add_u32 s%d, s%d, %d' % (sT0, sT0, RED))
        a('v_lshlrev_b32 v%d, 3, v%d' % (vEp2, vLane))
        a('v_add_u32 v%d, s%d, v%d' % (vEp2, sT0, vEp2))
        a('s_lshl_b32 s%d, s3, 3' % sT1)
        a('s_add_u32 s%d, s%d, %d' % (sT1, sT1, RED + MLOFF))
        a('v_mov_b32 v%d, s%d' % (vEp3, sT1))

    def write_ml():
        a('v_mov_b32 v%d, v%d' % (vG, vM))
        a('v_mov_b32 v%d, v%d' % (vG + 1, vL))
        a('s_mov_b32 exec_lo, 0x000f000f')
        a('s_mov_b32 exec_hi, 0x000f000f')
        a('ds_write_b64 v%d, %s offset:%d' % (vMLa, r(vG, 2), MLOFF))
        a('s_mov_b64 exec, -1')

    x = vS
    mreg = [x + 2 * w for w in range(NW)]
    lreg = [x + 1 + 2 * w for w in range(NW)]

    def weights():
        for w in range(NW):
            a('ds_read_b64 %s, v%d offset:%d' % (r(x + 2 * w, 2), vEp3, w * PSTR))
        a('v_lshlrev_b32 v%d, 16, v%d' % (vG, vVt))
        a('v_and_b32 v%d, 0xffff0000, v%d' % (vG + 1, vVt))
        a('s_waitcnt lgkmcnt(0)')
        a('v_max3_f32 v%d, v%d, v%d, v%d' % (vG + 2, vTree, mreg[0], mreg[1]))
        a('v_max3_f32 v%d, v%d, v%d, v%d' % (vG + 2, vG + 2, mreg[2], mreg[3]))
        for w in range(NW):
            a('v_sub_f32 v%d, v%d, v%d' % (vW + w, mreg[w], vG + 2))
        a('v_sub_f32 v%d, v%d, v%d' % (vTree, vTree, vG + 2))
        for w in range(NW):
            a('v_exp_f32 v%d, v%d' % (vW + w, vW + w))
        a('v_exp_f32 v%d, v%d' % (vTree, vTree))
        a('v_mov_b32 v%d, v%d' % (vG + 3, vTree))
        for w in range(NW):
            a('v_fmac_f32 v%d, v%d, v%d' % (vG + 3, vW + w, lreg[w]))
        if cfg.epoch:
            a('v_rcp_f32 v%d, v%d' % (vT1, vG + 3))
            a('v_log_f32 v%d, v%d' % (vT2, vG + 3))
            a('v_mov_b32 v%d, s%d' % (vG + 3, sTag))
            a('v_mul_f32 v%d, v%d, v%d' % (vTree, vTree, vT1))
            for w in range(NW):
                a('v_mul_f32 v%d, v%d, v%d' % (vW + w, vW + w, vT1))
            a('v_add_f32 v%d, v%d, v%d' % (vG + 2, vG + 2, vT2))
            a('v_mul_f32 v%d, v%d, v%d' % (vG, vG, vTree))
            a('v_mul_f32 v%d, v%d, v%d' % (vG + 1, vG + 1, vTree))

    def pv_mfma(t, b):
        if cfg.compact:
            d = r(vO + 4 * (b >> 2), 4)
            a('v_mfma_f32_16x16x32_bf16 %s, %s, %s, %s' % (d, r(vStage + 4 * b, 4), r(vPm + 4 * (b & 3), 4), d))
        else:
            a('v_mfma_f32_16x16x32_bf16 %s, %s, %s, %s' % (
                r(vO + 4 * b, 4), r(vStage + 4 * b, 4), r(vP + 4 * t, 4), r(vO + 4 * b, 4)))

    flag_read = []
    sched = {0: [1, 2], 1: [3, 4], 2: [5, 6], 3: [7]} if cfg.split else {}

    def after_step(t):
        for u in sched.get(t, []):
            probs(u)
        if cfg.split and t == 0:
            mid_setup()
        if cfg.split and t == 3:
            finish_sum()
            write_ml()

    def v_tile(n):
        t = n - NT
        slot = n % NS
        last = (n == 2 * NT - 1)
        if last and cfg.early and not cfg.diag:
            a('s_waitcnt lgkmcnt(0)')
            a('s_barrier')
            weights()
        if cfg.compact:
            for g in range(4):
                for i in range(4):
                    a('v_cndmask_b32 v%d, 0, v%d, s[%d:%d]' % (vPm + 4 * g + i, vP + 4 * t + i, sMask + 2 * g, sMask + 2 * g + 1))
        vm.wait(('tile', n))
        if not flag_read and 'flag' in vm.ops and vm.ops.index('flag') < vm.ops.index(('tile', n)):
            a('v_cmp_ne_u32 vcc, v%d, v%d' % (vFlag, vFlag + 1))
            a.nop(5)
            a('s_cmp_eq_u64 vcc, 0')
            a('s_cselect_b32 s%d, 1, 0' % sFlag)
            if cfg.pfin:
                a('s_cbranch_scc0 L_nopfin')
                a('s_cmp_eq_u32 s3, s%d' % sJ)
                a('s_cbranch_scc0 L_nopfin')
                for k in range(3):
                    a('global_load_dword v%d, v%d, s[20:21]' % (vTD + 1, vPa + k))
                if cfg.otouch:
                    a('global_load_dword v%d, v%d, s[16:17]' % (vTD + 1, vOut))
                a.label('L_nopfin')
            flag_read.append(n)
        if n in (8, 11, 14, 15):
            stamp('tile%d' % n)
        if cfg.diag >= 2 or cfg.nov:
            if n + NS < 2 * NT:
                issue_tile(n + NS)
                if cfg.nov and cfg.diag < 2:
                    after_step(t)
            return
        for b in range(8):
            for w in range(2):
                a('ds_read_b64_tr_b16 %s, v%d offset:%d' % (
                    r(vStage + 4 * b + 2 * w, 2), vV, slot * TILE + w * 512 + b * 32))
        if n + NS < 2 * NT:
            a('s_waitcnt lgkmcnt(0)')
            if cfg.lock:
                a('s_barrier')
            issue_tile(n + NS)
            for b in ([0, 4, 1, 5, 2, 6, 3, 7] if cfg.mix else range(8)):
                pv_mfma(t, b)
            after_step(t)
        else:
            for b in range(8):
                a('s_waitcnt lgkmcnt(%d)' % (14 - 2 * b))
                pv_mfma(t, b)

    for n in range(NT):
        k_tile(n)
    if cfg.stamp: stamp('presm')
    if cfg.diag < 2 and not cfg.nosm:
        softmax()
    if cfg.diag >= 2:
        mid_setup()
    elif cfg.split:
        assert NS >= 4
        probs(0)
    else:
        for t in range(NT):
            probs(t)
        finish_sum()
        mid_setup()
        write_ml()
    stamp('softmax')
    for n in range(NT, 2 * NT):
        v_tile(n)
    assert flag_read
    stamp('pv_done')
    if cfg.diag:
        a('s_endpgm')

    if cfg.compact:
        for acc in range(2):
            a('ds_write_b128 v%d, %s offset:%d' % (vEp1, r(vO + 4 * acc, 4), acc * 256))
    else:
        a('s_mov_b32 exec_lo, 0x000f000f')
        a('s_mov_b32 exec_hi, 0x000f000f')
        for b in range(8):
            a('ds_write_b128 v%d, %s offset:%d' % (vEp1, r(vO + 4 * b, 4), b * 64))
        a('s_mov_b64 exec, -1')
    a('s_waitcnt lgkmcnt(0)')
    stamp('ldsw')
    a('s_barrier')
    stamp('bar')
    y = vStage
    for w in range(NW):
        a('ds_read_b64 %s, v%d offset:%d' % (r(y + 2 * w, 2), vEp2, w * PSTR))
    if not cfg.early:
        weights()
    for w in range(NW):
        if cfg.early:
            a('s_waitcnt lgkmcnt(%d)' % (NW - 1 - w))
        a('v_fmac_f32 v%d, v%d, v%d' % (vG, vW + w, y + 2 * w))
        a('v_fmac_f32 v%d, v%d, v%d' % (vG + 1, vW + w, y + 2 * w + 1))
    stamp('red')
    a('s_cmp_eq_u32 s3, s%d' % sJ)
    a('s_cbranch_scc1 L_consumer')
    if cfg.local:
        a('s_cmp_eq_u32 s%d, 1' % sFlag)
        a('s_cbranch_scc0 L_far')
        if not cfg.nopub:
            a('global_store_dwordx4 v%d, %s, s[20:21]%s' % (vPub, r(vG, 4), (' ' + cfg.pubpol) if cfg.pubpol else ''))
        stamp('published')
        n_pub = len(stamps)
        dump_stamps()
        a('s_endpgm')
        a.label('L_far')
    a('global_store_dwordx4 v%d, %s, s[20:21] sc1' % (vPub, r(vG, 4)))
    if not cfg.local:
        stamp('published')
    dump_stamps()
    a('s_endpgm')
    a.label('L_consumer')
    z = x + 16
    def final_combine(z, sfx):
        ms = [vG + 2, z + 2, z + 6, z + 10]
        o0 = [vG, z, z + 4, z + 8]
        ls = [vG + 3, z + 3, z + 7, z + 11]
        a('v_max3_f32 v%d, v%d, v%d, v%d' % (vM, ms[0], ms[1], ms[2]))
        a('v_max_f32 v%d, v%d, v%d' % (vM, vM, ms[3]))
        for k in range(4):
            a('v_sub_f32 v%d, v%d, v%d' % (ms[k], ms[k], vM))
        for k in range(4):
            a('v_exp_f32 v%d, v%d' % (ms[k], ms[k]))
        if cfg.epoch:
            a('v_add_f32 v%d, v%d, v%d' % (vT3, ms[0], ms[1]))
            a('v_add_f32 v%d, v%d, v%d' % (vT0, ms[2], ms[3]))
            a('v_mul_f32 v%d, v%d, v%d' % (vT1, ms[0], o0[0]))
            a('v_mul_f32 v%d, v%d, v%d' % (vT2, ms[0], o0[0] + 1))
            a('v_add_f32 v%d, v%d, v%d' % (vT3, vT3, vT0))
        else:
            a('v_mul_f32 v%d, v%d, v%d' % (vT3, ms[0], ls[0]))
            a('v_mul_f32 v%d, v%d, v%d' % (vT1, ms[0], o0[0]))
            a('v_mul_f32 v%d, v%d, v%d' % (vT2, ms[0], o0[0] + 1))
            for k in range(1, 4):
                a('v_fmac_f32 v%d, v%d, v%d' % (vT3, ms[k], ls[k]))
        a('v_rcp_f32 v%d, v%d' % (vT3, vT3))
        for k in range(1, 4):
            a('v_fmac_f32 v%d, v%d, v%d' % (vT1, ms[k], o0[k]))
            a('v_fmac_f32 v%d, v%d, v%d' % (vT2, ms[k], o0[k] + 1))
        a('v_mul_f32 v%d, v%d, v%d' % (vT1, vT1, vT3))
        a('v_mul_f32 v%d, v%d, v%d' % (vT2, vT2, vT3))
        a('v_cvt_pk_bf16_f32 v%d, v%d, v%d' % (vT1, vT1, vT2))
        a('global_store_dword v%d, v%d, s[16:17]' % (vOut, vT1))
        if cfg.epoch and not cfg.noEst:
            a('s_lshl_b32 s%d, s%d, 7' % (sT0, sP))
            a('s_add_u32 s%d, s%d, %d' % (sT0, sT0, EOFF))
            a('v_mov_b32 v%d, s%d' % (vT0, sT0))
            a('v_mov_b32 v%d, s%d' % (vT2, sTag))
            a('s_cmp_eq_u32 s%d, 0' % sJ)
            a('s_cbranch_scc0 L_noEst' + sfx)
            a('s_mov_b64 exec, 1')
            a('global_store_dword v%d, v%d, s[20:21]' % (vT0, vT2))
            a.label('L_noEst' + sfx)

    def poll_loads(z):
        for k in range(3):
            a('global_load_dwordx4 %s, v%d, s[20:21] %s' % (r(z + 4 * k, 4), vPa + k, cfg.pollpol))

    def poll_check(z):
        for k in range(3):
            a('v_readfirstlane_b32 s%d, v%d' % (sT0 + k, z + 4 * k + 2))
        a('v_xor_b32 v%d, s%d, v%d' % (vT1, sTag, z + 3))
        a('v_xor_b32 v%d, s%d, v%d' % (vT2, sTag, z + 7))
        a('v_xor_b32 v%d, s%d, v%d' % (vT3, sTag, z + 11))
        a('v_or3_b32 v%d, v%d, v%d, v%d' % (vT1, vT1, vT2, vT3))
        a('v_xor_b32 v%d, s%d, v%d' % (vT0, sT0, z + 2))
        a('v_xor_b32 v%d, s%d, v%d' % (vT2, sT0 + 1, z + 6))
        a('v_xor_b32 v%d, s%d, v%d' % (vT3, sT0 + 2, z + 10))
        a('v_or3_b32 v%d, v%d, v%d, v%d' % (vT0, vT0, vT2, vT3))
        a('v_or_b32 v%d, v%d, v%d' % (vT1, vT1, vT0))
        a('v_cmp_ne_u32 vcc, 0, v%d' % vT1)

    if cfg.stag:
        z2 = z + 16
        poll_loads(z)
        a.label('L_poll')
        poll_loads(z2)
        a('s_waitcnt vmcnt(3)')
        poll_check(z)
        spin_guard('L_end')
        a('s_cbranch_vccz L_polled')
        poll_loads(z)
        a('s_waitcnt vmcnt(3)')
        poll_check(z2)
        a('s_cbranch_vccnz L_poll')
        final_combine(z2, 'b')
        a('s_endpgm')
        a.label('L_polled')
    else:
        a.label('L_poll')
        if cfg.nopoll:
            a('s_branch L_polled2')
        poll_loads(z)
        a('s_waitcnt vmcnt(0)')
        poll_check(z)
        spin_guard('L_end')
        if not cfg.tight:
            a.nop(5)
        if cfg.psleep:
            a('s_cbranch_vccz L_polled')
            a('s_sleep %d' % cfg.psleep)
            a('s_branch L_poll')
            a.label('L_polled')
        else:
            a('s_cbranch_vccnz L_poll')
    if cfg.nopoll:
        a.label('L_polled2')
    stamp('polled')
    final_combine(z, 'a')
    stamp('out')
    dump_stamps()
    a.label('L_end')
    a('s_endpgm')
    if cfg.cpf:
        a.label('L_codeend')
    return a, LDS, nvgpr


KD = """.section .rodata,"a"
.p2align 6
.amdhsa_kernel %s
  .amdhsa_next_free_vgpr %d
  .amdhsa_next_free_sgpr %d
  .amdhsa_accum_offset %d
  .amdhsa_group_segment_fixed_size 0
  .amdhsa_kernarg_size 72
  .amdhsa_user_sgpr_count 2
  .amdhsa_user_sgpr_kernarg_segment_ptr 1
  .amdhsa_system_sgpr_workgroup_id_x 1
.end_amdhsa_kernel
"""


def kernel_text(name, body):
    return ('.text\n.globl %s\n.p2align 8\n.type %s,@function\n%s:\n' % (name, name, name)) + body


def generate(cfg):
    a, lds, nv = gen_main(cfg)
    out = HEADER
    out += '; @launch grid=(256,1,1) block=(%d,1,1) lds=%d\n' % (256, lds)
    out += '.amdgcn_target "amdgcn-amd-amdhsa--gfx950"\n'
    out += kernel_text(KMAIN, a.finalize())
    nva = (nv + 7) // 8 * 8
    out += KD % (KMAIN, nva, 100, (nva + 3) // 4 * 4)
    return out


if __name__ == '__main__':
    ap = argparse.ArgumentParser()
    ap.add_argument('-o', default='cdna_kernels/' + NAME + '.s')
    ap.add_argument('opts', nargs='*', help='key=value')
    args = ap.parse_args()
    kw = {}
    for o in args.opts:
        k, v = o.split('=', 1)
        try:
            v = int(v)
        except ValueError:
            pass
        kw[k] = v
    cfg = Cfg(**kw)
    txt = generate(cfg)
    open(args.o, 'w').write(txt)
    print('wrote', args.o, len(txt), 'bytes')
    if cfg.stamp:
        open(args.o[:-2] + '.names', 'w').write('\n'.join(cfg.stamp_names) + '\n')
```

```python
import argparse
import math
import re
import struct
import sys
import os

sys.path.insert(0, os.path.dirname(os.path.abspath(__file__)))
from asmlib import Asm

NAME = 'standalone__tree_speculative_verify_tree_attention_over_candidate_token_tree__decode'
KMAIN = NAME + '_kernel'

HEADER = """; Kernarg layout for this problem (72 bytes, ptrs only, base s[0:1]):
;   offset  24: d_in[3] k_tree  shape=(8, 8, 1, 128) dtype=bfloat16 strides=(2048, 256, 256, 2) contiguous=True
;   offset  32: d_in[4] v_tree  shape=(8, 8, 1, 128) dtype=bfloat16 strides=(2048, 256, 256, 2) contiguous=True
;   offset  40: d_in[5] tree_mask  shape=(8, 1, 1) dtype=bfloat16 strides=(2, 2, 2) contiguous=True
"""


def f2u(x):
    return struct.unpack('<I', struct.pack('<f', x))[0]


def hx(x):
    return '0x%08x' % (x & 0xffffffff)


SCALE_LOG2E = (128.0 ** -0.5) * math.log2(math.e)
NEG_BIG_LOG2E = -1.0e9 * math.log2(math.e)

PIECE = 1056
TILE = 8 * PIECE
NW = 4
NT = 8


class Cfg:
    def __init__(self, **kw):
        self.ns = 4
        self.pol = 'nt'
        self.low = 'w0j0w1j1'
        self.high = 'n0n2n1'
        self.stamp = 0
        self.local = 1
        self.early = 1
        self.psleep = 0
        self.treeskip = 0
        self.mix = 1
        self.pubpol = ''
        self.stag = 0
        self.nok = 0
        self.nov = 0
        self.nosm = 0
        self.notree = 0
        self.prio = 0
        self.wpos = '10,11'
        self.ppos = ''
        self.bits = ''
        self.vtouch = 0
        self.eoff = 0x100000
        self.otouch = 0
        self.xstep = -1
        self.pfstep = 0
        self.qpos = -1
        self.tpos = 0
        self.epos = -1
        self.compact = 1
        self.tight = 1
        self.map0 = 0
        self.vpol = 'same'
        self.pfin = 1
        self.pollpol = 'sc1'
        self.nopub = 0
        self.nopoll = 0
        self.noEst = 0
        self.noE = 0
        self.noX = 0
        self.epoch = 1
        self.plainld = 0
        self.nclr = 4
        self.clrpol = 'sc1'
        self.flagst = 1
        self.noflagld = 0
        self.helper = 0
        self.lock = 2
        self.diag = 0
        self.ilv = 1
        self.ihigh = 'n0n1n2j0j1'
        self.split = 1
        self.cpf = 0
        self.xr = 0
        self.spin = 0
        self.__dict__.update(kw)


class VM:
    def __init__(self, a):
        self.a = a
        self.ops = []

    def issue(self, text, tag):
        self.a(text)
        self.ops.append(tag)

    def count(self, *tags):
        last = max(i for i, t in enumerate(self.ops) if t in tags)
        n = len(self.ops) - 1 - last
        assert n <= 63, n
        return n

    def wait(self, *tags):
        self.a('s_waitcnt vmcnt(%d)' % self.count(*tags))


def gen_main(cfg):
    a = Asm()
    vm = VM(a)
    NS = cfg.ns
    RING = NS * TILE
    RED = NW * RING
    PSTR = 2240
    MLOFF = 2112
    LDS = RED + NW * PSTR
    assert LDS <= 163840, LDS

    sP, sJ = 36, 37
    sBase, sOff, sLds, sC = 32, 33, 34, 35
    sT0, sT1, sT2, sT3 = 38, 39, 40, 41
    sBig, sXcc, sFlag, sSpin = 42, 43, 22, 23
    s4k = 97
    sE, sTag = 98, 99
    EOFF = cfg.eoff
    XOFF = cfg.eoff + 0x10000
    vL16w = 3
    vLane, vL16, vL16b, vK, vV = 1, 2, 3, 4, 5
    vT0, vT1, vT2, vT3 = 6, 7, 8, 9
    vTree, vVt, vMask = 10, 11, 12
    vM, vL = 13, 14
    vFlagA = 0
    vL2 = 12
    vQ = 16
    vStage = 32
    vS = 64
    vP = vS + NT * 8
    vO = vP + NT * 4
    vKt = vO + 32
    vTD = vKt + 16
    nvgpr = vTD + 4
    vPm = vO + 8
    sMask = 88
    vFlag = vTD + 2
    vMLa = vTD
    vEp1, vEp2, vEp3, vPub, vOut = vKt, vKt + 1, vKt + 2, vKt + 3, vKt + 4
    vPa = vKt + 5
    vG = vKt + 8
    vW = vKt + 12
    assert vG % 2 == 0

    def r(base, n):
        return 'v[%d:%d]' % (base, base + n - 1)

    stamps = []

    def stamp(name):
        if not cfg.stamp:
            return
        i = len(stamps)
        assert 44 + 2 * i + 1 < 96
        stamps.append(name)
        a('s_memrealtime s[%d:%d]' % (44 + 2 * i, 45 + 2 * i))
        a('s_waitcnt lgkmcnt(0)')

    def dump_stamps():
        if not cfg.stamp:
            return
        v = vS
        a('v_mov_b32 v%d, 0' % v)
        for i in range(len(stamps)):
            a('v_writelane_b32 v%d, s%d, %d' % (v, 44 + 2 * i, i))
        a('v_writelane_b32 v%d, s%d, 62' % (v, sXcc))
        a('s_lshl_b32 s%d, s2, 3' % sT3)
        a('s_add_u32 s%d, s%d, s3' % (sT3, sT3))
        a('s_lshl_b32 s%d, s%d, 8' % (sT3, sT3))
        a('s_add_u32 s%d, s%d, 0x8000000' % (sT3, sT3))
        a('v_lshlrev_b32 v%d, 2, v%d' % (v + 1, vLane))
        a('v_add_u32 v%d, s%d, v%d' % (v + 1, sT3, v + 1))
        a('global_store_dword v%d, v%d, s[20:21]' % (v + 1, v))
        cfg.stamp_names = list(stamps)

    def spin_guard(exit_label):
        if cfg.spin:
            a('s_sub_u32 s%d, s%d, 1' % (sSpin, sSpin))
            a('s_cbranch_scc1 ' + exit_label)

    gb = None
    if cfg.bits:
        names = re.findall(r'[wjni]\d', cfg.bits)
        assert sorted(names) == sorted(['w0', 'w1', 'i0', 'i1', 'i2', 'n0', 'n1', 'n2', 'j0', 'j1']), names
        gb = {nm: 10 + pos for pos, nm in enumerate(names)}
    if cfg.ilv:
        hi = re.findall(r'[nj]\d', cfg.ihigh)
        assert sorted(hi) == ['j0', 'j1', 'n0', 'n1', 'n2']
        npos = {int(nm[1]): 15 + pos for pos, nm in enumerate(hi) if nm[0] == 'n'}
        jpos = {int(nm[1]): 15 + pos for pos, nm in enumerate(hi) if nm[0] == 'j'}
        if gb:
            npos = {k: gb['n%d' % k] for k in range(3)}
            jpos = {k: gb['j%d' % k] for k in range(2)}
            cfg.wpos = '%d,%d' % (gb['w0'], gb['w1'])
            cfg.ppos = '%d,%d,%d' % (gb['i0'], gb['i1'], gb['i2'])
    else:
        hi = re.findall(r'n\d', cfg.high)
        assert sorted(hi) == ['n0', 'n1', 'n2']
        npos = {int(nm[1]): 17 + pos for pos, nm in enumerate(hi)}

    def tile_delta(t):
        return sum(((t >> k) & 1) << npos[k] for k in range(3))

    def issue_tile(n, compact=False):
        isk = n < NT
        slot = n % NS
        srd = 's[24:27]' if isk else 's[28:31]'
        d = tile_delta(n % NT)
        if cfg.ilv:
            for i in range(8):
                if (cfg.lock == 3 and i == 4) or (cfg.lock == 4 and i in (2, 4, 6)) or (cfg.lock == 5 and i > 0):
                    a('s_barrier')
                if compact:
                    if i > 0:
                        a('s_add_u32 m0, m0, s%d' % sBig)
                else:
                    a('s_add_u32 m0, s%d, %d' % (sLds, slot * TILE + i * PIECE))
                if cfg.wpos == '10,11' and not gb:
                    if i == 0:
                        if d:
                            a('s_xor_b32 s%d, s%d, %d' % (sOff, sBase, d))
                        else:
                            a('s_mov_b32 s%d, s%d' % (sOff, sBase))
                    else:
                        a('s_add_u32 s%d, s%d, s%d' % (sOff, sOff, s4k))
                else:
                    wp = [int(x) for x in cfg.wpos.split(',')]
                    pp = [int(x) for x in cfg.ppos.split(',')] if cfg.ppos else [b for b in range(10, 15) if b not in wp]
                    assert gb or sorted(pp + wp) == [10, 11, 12, 13, 14]
                    off = sum(((i >> k) & 1) << pp[k] for k in range(3))
                    a('s_xor_b32 s%d, s%d, %d' % (sOff, sBase, d ^ off))
                txt = 'buffer_load_dwordx4 v%d, %s, s%d offen' % (vL16w, srd, sOff)
                pol = cfg.pol if isk else (cfg.vpol if cfg.vpol != 'same' else cfg.pol)
                if pol and pol != 'none':
                    txt += ' ' + pol.replace('+', ' ')
                txt += ' lds'
                vm.issue(txt, ('tile', n))
            return
        if d:
            a('s_xor_b32 s%d, s%d, %d' % (sOff, sBase, d))
            so = sOff
        else:
            so = sBase
        for i in range(8):
            if compact:
                if i > 0:
                    if i == 4:
                        a('s_add_u32 m0, m0, s%d' % sBig)
                    else:
                        a('s_add_u32 m0, m0, 32')
            else:
                m0 = slot * TILE + i * 32 + (4096 if i >= 4 else 0)
                a('s_add_u32 m0, s%d, %d' % (sLds, m0))
            voff = vL16 if i < 4 else vL16b
            off = (i & 3) * 1024
            txt = 'buffer_load_dwordx4 v%d, %s, s%d offen' % (voff, srd, so)
            if off:
                txt += ' offset:%d' % off
            if cfg.pol:
                txt += ' ' + cfg.pol.replace('+', ' ')
            txt += ' lds'
            vm.issue(txt, ('tile', n))

    def epoch_load():
        a('s_lshl_b32 s%d, s%d, 7' % (sT2, sP))
        a('s_add_u32 s%d, s%d, %d' % (sT2, sT2, EOFF))
        if not cfg.noE:
            a('s_load_dword s%d, s[20:21], s%d' % (sE, sT2))

    def q_addr():
        a('v_and_b32 v%d, 3, v%d' % (vT0, vLane))
        a('v_lshlrev_b32 v%d, 8, v%d' % (vT0, vT0))
        a('v_lshrrev_b32 v%d, 4, v%d' % (vT1, vLane))
        a('v_lshlrev_b32 v%d, 4, v%d' % (vT1, vT1))
        a('s_lshl_b32 s%d, s%d, 10' % (sT0, sP))
        a('v_add3_u32 v%d, v%d, v%d, s%d' % (vT0, vT0, vT1, sT0))

    def q_loads():
        if cfg.qpos >= 0:
            q_addr()
        for s in range(4):
            vm.issue('global_load_dwordx4 %s, v%d, s[4:5] offset:%d' % (r(vQ + 4 * s, 4), vT0, s * 64), 'small')

    def tree_addr():
        a('v_lshrrev_b32 v%d, 4, v%d' % (vT1, vLane))
        a('v_lshlrev_b32 v%d, 4, v%d' % (vT1, vT1))
        a('s_lshl_b32 s%d, s%d, 8' % (sT1, sP))
        a('v_add_u32 v%d, s%d, v%d' % (vT1, sT1, vT1))
        a('v_lshlrev_b32 v%d, 2, v%d' % (vT2, vLane))
        a('v_add_u32 v%d, s%d, v%d' % (vT2, sT1, vT2))
        a('s_lshr_b32 s%d, s%d, 3' % (sT2, sP))
        a('s_lshl_b32 s%d, s%d, 1' % (sT2, sT2))
        a('v_mov_b32 v%d, s%d' % (vT3, sT2))

    def tree_loads():
        if cfg.treeskip:
            a('s_cmp_eq_u32 s%d, 0' % sJ)
            a('s_cbranch_scc0 L_notreeld')
        if cfg.tpos >= 0:
            tree_addr()
        for s in range(4):
            vm.issue('global_load_dwordx4 %s, v%d, s[10:11] offset:%d' % (r(vKt + 4 * s, 4), vT1, s * 64), 'tree')
        vm.issue('global_load_dword v%d, v%d, s[12:13]' % (vVt, vT2), 'tree')
        vm.issue('global_load_ushort v%d, v%d, s[14:15]' % (vMask, vT3), 'tree')
        if cfg.vtouch:
            vm.issue('buffer_load_dword v15, off, s[28:31], s%d%s' % (sBase, ' nt' if cfg.vtouch == 2 else ''), 'tree')
        if cfg.treeskip:
            a.label('L_notreeld')

    if cfg.stamp:
        a('s_cmp_ge_u32 s2, 256')
        a('s_cbranch_scc1 L_end')
        stamp('entry')
    a('s_load_dwordx16 s[4:19], s[0:1], 0')
    a('s_load_dwordx2 s[20:21], s[0:1], 64')
    if not cfg.stamp:
        a('s_cmp_ge_u32 s2, 256')
        a('s_cbranch_scc1 L_end')
    a('v_readfirstlane_b32 s3, v0')
    a('v_and_b32 v%d, 63, v0' % vLane)
    a('v_lshlrev_b32 v%d, 4, v%d' % (vL16, vLane))
    a('s_mov_b32 s26, 0x4000000')
    a('s_mov_b32 s27, 0x20000')
    a('s_lshr_b32 s3, s3, 6')
    if cfg.map0:
        a('s_lshr_b32 s%d, s2, 2' % sP)
        a('s_and_b32 s%d, s2, 3' % sJ)
    else:
        a('s_and_b32 s%d, s2, 7' % sT0)
        a('s_bfe_u32 s%d, s2, 0x20003' % sJ)
        a('s_lshr_b32 s%d, s2, 5' % sT1)
        a('s_lshl_b32 s%d, s%d, 3' % (sP, sT0))
        a('s_add_u32 s%d, s%d, s%d' % (sP, sP, sT1))
    if cfg.ilv:
        if jpos[1] == jpos[0] + 1:
            a('s_lshl_b32 s%d, s%d, %d' % (sT0, sJ, jpos[0]))
        else:
            a('s_and_b32 s%d, s%d, 1' % (sT0, sJ))
            a('s_lshl_b32 s%d, s%d, %d' % (sT0, sT0, jpos[0]))
            a('s_lshr_b32 s%d, s%d, 1' % (sT1, sJ))
            a('s_lshl_b32 s%d, s%d, %d' % (sT1, sT1, jpos[1]))
            a('s_or_b32 s%d, s%d, s%d' % (sT0, sT0, sT1))
        wp = [int(x) for x in cfg.wpos.split(',')]
        if wp[1] == wp[0] + 1:
            a('s_lshl_b32 s%d, s3, %d' % (sT1, wp[0]))
        else:
            a('s_and_b32 s%d, s3, 1' % sT1)
            a('s_lshl_b32 s%d, s%d, %d' % (sT1, sT1, wp[0]))
            a('s_lshr_b32 s%d, s3, 1' % sT2)
            a('s_lshl_b32 s%d, s%d, %d' % (sT2, sT2, wp[1]))
            a('s_or_b32 s%d, s%d, s%d' % (sT1, sT1, sT2))
        a('v_add_u32 v%d, s%d, v%d' % (vL16w, sT1, vL16))
        a('s_movk_i32 s%d, 0x1000' % s4k)
    elif cfg.low == 'w0w1j0j1':
        a('s_lshl_b32 s%d, s%d, 2' % (sT0, sJ))
        a('s_add_u32 s%d, s%d, s3' % (sT0, sT0))
        a('s_lshl_b32 s%d, s%d, 13' % (sT0, sT0))
    elif cfg.low == 'w0j0w1j1':
        a('s_lshl_b32 s%d, s%d, 2' % (sT0, sJ))
        a('s_or_b32 s%d, s%d, s3' % (sT0, sT0))
        a('s_and_b32 s%d, s%d, 6' % (sT1, sT0))
        a('s_lshr_b32 s%d, s%d, 1' % (sT2, sT1))
        a('s_xor_b32 s%d, s%d, s%d' % (sT2, sT2, sT1))
        a('s_and_b32 s%d, s%d, 2' % (sT2, sT2))
        a('s_mul_i32 s%d, s%d, 3' % (sT2, sT2))
        a('s_xor_b32 s%d, s%d, s%d' % (sT0, sT0, sT2))
        a('s_lshl_b32 s%d, s%d, 13' % (sT0, sT0))
    else:
        raise ValueError(cfg.low)
    a('s_lshl_b32 s%d, s%d, 20' % (sBase, sP))
    a('s_add_u32 s%d, s%d, s%d' % (sBase, sBase, sT0))
    if cfg.xr:
        if cfg.xr == 1:
            a('s_lshr_b32 s%d, s2, 5' % sT0)
        elif cfg.xr == 2:
            a('s_and_b32 s%d, s2, 7' % sT0)
        elif cfg.xr == 3:
            a('s_lshr_b32 s%d, s2, 5' % sT0)
            a('s_xor_b32 s%d, s%d, s2' % (sT0, sT0))
            a('s_and_b32 s%d, s%d, 7' % (sT0, sT0))
        elif cfg.xr == 4:
            a('s_bfe_u32 s%d, s2, 0x20005' % sT0)
        elif cfg.xr == 5:
            a('s_and_b32 s%d, s2, 3' % sT0)
        elif cfg.xr == 6:
            a('s_and_b32 s%d, s2, 1' % sT0)
            a('s_lshl_b32 s%d, s%d, 2' % (sT0, sT0))
        elif cfg.xr == 7:
            a('s_bfe_u32 s%d, s2, 0x10005' % sT0)
            a('s_lshl_b32 s%d, s%d, 2' % (sT0, sT0))
        elif cfg.xr == 8:
            a('s_mov_b32 s%d, s%d' % (sT0, sJ))
        a('s_lshl_b32 s%d, s%d, %d' % (sT0, sT0, 15 if cfg.ilv else 17))
        a('s_xor_b32 s%d, s%d, s%d' % (sBase, sBase, sT0))
    a('s_mul_i32 s%d, s3, %d' % (sLds, RING))
    if cfg.ilv:
        a('s_movk_i32 s%d, %d' % (sBig, PIECE))
    else:
        a('s_movk_i32 s%d, 4128' % sBig)
        a('v_add_u32 v%d, 4096, v%d' % (vL16b, vL16))
    a('s_mov_b32 m0, s%d' % sLds)
    if cfg.qpos < 0:
        q_addr()
    if cfg.tpos < 0:
        tree_addr()
    a('s_waitcnt lgkmcnt(0)')
    a('s_mov_b64 s[24:25], s[6:7]')
    stamp('karg')
    if cfg.qpos < 0:
        q_loads()
    if cfg.tpos < 0:
        tree_loads()
    if cfg.epos < 0:
        epoch_load()
    issue_tile(0, compact=True)
    a('s_mov_b64 s[28:29], s[8:9]')
    a('s_mov_b64 s[30:31], s[26:27]')
    a('s_lshl_b32 s2, s%d, 2' % sP)
    a('s_add_u32 s2, s2, s%d' % sJ)
    a('s_getreg_b32 s%d, hwreg(HW_REG_XCC_ID, 0, 4)' % sXcc)
    if cfg.spin:
        a('s_mov_b32 s%d, %d' % (sSpin, cfg.spin))
    if cfg.prio:
        pr = {1: [0, 1, 2, 3], 2: [3, 2, 1, 0], 3: [0, 0, 1, 1], 4: [0, 1, 0, 1]}[cfg.prio]
        for w in range(4):
            if pr[w]:
                a('s_cmp_eq_u32 s3, %d' % w)
                a('s_cbranch_scc0 L_prio%d' % w)
                a('s_setprio %d' % pr[w])
                a.label('L_prio%d' % w)

    if cfg.cpf:
        a('s_getpc_b64 s[%d:%d]' % (sT0, sT0 + 1))
        a.label('L_pc')
        a('s_sub_u32 s%d, s%d, L_pc-%s' % (sT0, sT0, KMAIN))
        a('s_subb_u32 s%d, s%d, 0' % (sT0 + 1, sT0 + 1))
        a('s_lshl_b32 s%d, s%d, 2' % (sT2, sJ))
        a('s_add_u32 s%d, s%d, s3' % (sT2, sT2))
        a('s_lshl_b32 s%d, s%d, 10' % (sT2, sT2))
        a('s_min_u32 s%d, s%d, L_codeend-%s-1024' % (sT2, sT2, KMAIN))
        a('v_add_u32 v%d, s%d, v%d' % (vT0, sT2, vL16))
        a('v_mov_b32 v%d, s%d' % (vT1, sT0 + 1))
        a('v_add_co_u32 v%d, vcc, s%d, v%d' % (vT0, sT0, vT0))
        a('v_addc_co_u32 v%d, vcc, 0, v%d, vcc' % (vT1, vT1))
        a('global_load_dwordx4 %s, %s, off' % (r(vS + 60, 4), r(vT0, 2)))
    if cfg.epos == 0:
        epoch_load()
    if cfg.qpos == 0:
        q_loads()
    if cfg.tpos == 0:
        tree_loads()
    for n in range(1, NS):
        if cfg.lock >= 2:
            a('s_barrier')
        issue_tile(n)
        if cfg.tpos == n:
            tree_loads()

    a('v_and_b32 v%d, 7, v%d' % (vT0, vLane))
    a('v_mul_u32_u24 v%d, %d, v%d' % (vT0, PIECE, vT0))
    a('v_bfe_u32 v%d, v%d, 3, 1' % (vT1, vLane))
    a('v_lshlrev_b32 v%d, 8, v%d' % (vT1, vT1))
    a('v_lshrrev_b32 v%d, 4, v%d' % (vT2, vLane))
    a('v_lshlrev_b32 v%d, 4, v%d' % (vT2, vT2))
    a('v_add3_u32 v%d, v%d, v%d, v%d' % (vK, vT0, vT1, vT2))
    a('v_add_u32 v%d, s%d, v%d' % (vK, sLds, vK))
    a('v_bfe_u32 v%d, v%d, 2, 3' % (vT0, vLane))
    a('v_mul_u32_u24 v%d, %d, v%d' % (vT0, PIECE, vT0))
    a('v_lshrrev_b32 v%d, 5, v%d' % (vT1, vLane))
    a('v_lshlrev_b32 v%d, 8, v%d' % (vT1, vT1))
    a('v_and_b32 v%d, 3, v%d' % (vT2, vLane))
    a('v_lshlrev_b32 v%d, 3, v%d' % (vT2, vT2))
    a('v_add3_u32 v%d, v%d, v%d, v%d' % (vV, vT0, vT1, vT2))
    a('v_add_u32 v%d, s%d, v%d' % (vV, sLds, vV))
    a('s_mov_b32 s%d, %s' % (sC, hx(f2u(SCALE_LOG2E))))
    if cfg.compact:
        for i in range(8):
            a('v_mov_b32 v%d, 0' % (vO + i))
        for g in range(4):
            a('s_mov_b32 s%d, 0x%x' % (sMask + 2 * g, 0x000f000f << (4 * g)))
            a('s_mov_b32 s%d, s%d' % (sMask + 2 * g + 1, sMask + 2 * g))
    elif not cfg.cpf:
        for i in range(32):
            a('v_mov_b32 v%d, 0' % (vO + i))

    def tree_score():
        if cfg.treeskip:
            a('s_cmp_eq_u32 s%d, 0' % sJ)
            a('s_cbranch_scc1 L_tree')
            a('v_mov_b32 v%d, 0xff800000' % vTree)
            a('v_mov_b32 v%d, 0' % vVt)
            a('s_branch L_treedone')
            a.label('L_tree')
        for s in range(4):
            a('v_mfma_f32_16x16x32_bf16 %s, %s, %s, %s' % (
                r(vTD, 4), r(vKt + 4 * s, 4), r(vQ + 4 * s, 4), '0' if s == 0 else r(vTD, 4)))
        a('v_lshlrev_b32 v%d, 16, v%d' % (vMask, vMask))
        a('v_sub_f32 v%d, 1.0, v%d' % (vMask, vMask))
        a('v_mul_f32 v%d, %s, v%d' % (vMask, hx(f2u(NEG_BIG_LOG2E)), vMask))
        if not cfg.treeskip:
            a('s_cmp_eq_u32 s%d, 0' % sJ)
            a('s_cselect_b32 s%d, 0, 0xff800000' % sT1)
        a('v_readlane_b32 s%d, v%d, s3' % (sT2, vTD))
        a('v_mov_b32 v%d, s%d' % (vTree, sT2))
        a('v_fma_f32 v%d, v%d, s%d, v%d' % (vTree, vTree, sC, vMask))
        if not cfg.treeskip:
            a('v_add_f32 v%d, s%d, v%d' % (vTree, sT1, vTree))
        else:
            a.label('L_treedone')

    tree_done = []

    def k_tile(n):
        t = n
        slot = n % NS
        if n == 0:
            if cfg.tpos <= 0:
                vm.wait(('tile', 0), 'small', 'tree')
            else:
                vm.wait(('tile', 0), 'small')
        else:
            vm.wait(('tile', n))
        if n in (0, 3, 7):
            stamp('tile%d' % n)
        if cfg.diag >= 2 or cfg.nok:
            issue_tile(n + NS)
            return
        for w in range(2):
            for s in range(4):
                a('ds_read_b128 %s, v%d offset:%d' % (
                    r(vStage + 16 * w + 4 * s, 4), vK, slot * TILE + w * 512 + s * 64))
        a('s_waitcnt lgkmcnt(0)')
        if n == 0:
            a('s_mul_i32 s%d, s%d, 1664525' % (sTag, sE))
            a('s_add_u32 s%d, s%d, 1013904223' % (sTag, sTag))
            if cfg.local and not cfg.noX:
                a('s_cmp_eq_u32 s3, s%d' % sJ)
                a('s_cbranch_scc0 L_noxcc')
                a('s_or_b32 s%d, s%d, 0x80' % (sT1, sXcc))
                a('s_xor_b32 s%d, s%d, s%d' % (sT1, sT1, sTag))
                a('s_lshl_b32 s%d, s%d, 7' % (sT0, sP))
                a('s_lshl_b32 s%d, s%d, 3' % (sT2, sJ))
                a('s_add_u32 s%d, s%d, s%d' % (sT0, sT0, sT2))
                a('s_add_u32 s%d, s%d, %d' % (sT0, sT0, XOFF))
                a('v_mov_b32 v%d, s%d' % (vT0, sT0))
                a('v_mov_b32 v%d, s%d' % (vT2, sTag))
                a('v_mov_b32 v%d, s%d' % (vT3, sT1))
                a('s_mov_b64 exec, 1')
                a('global_store_dwordx2 v%d, %s, s[20:21] sc1' % (vT0, r(vT2, 2)))
                a('s_mov_b64 exec, -1')
                a.label('L_noxcc')
        if cfg.lock:
            a('s_barrier')
        issue_tile(n + NS)
        for s in range(4):
            for w in range(2):
                d = r(vS + 8 * t + 4 * w, 4)
                a('v_mfma_f32_16x16x32_bf16 %s, %s, %s, %s' % (
                    d, r(vStage + 16 * w + 4 * s, 4), r(vQ + 4 * s, 4), '0' if s == 0 else d))
        if cfg.xstep == n:
            mid_setup_a()
        if not tree_done and vm.ops.index('tree') < vm.ops.index(('tile', n)) or (n == 0 and cfg.tpos <= 0):
            if not tree_done:
                if not cfg.notree:
                    tree_score()
                tree_done.append(n)

    def xg_reduce(v, op):
        a('v_mov_b32 v%d, v%d' % (vT0, v))
        a('v_permlane32_swap_b32 v%d, v%d' % (vT0, v))
        a('%s v%d, v%d, v%d' % (op, v, v, vT0))
        a('v_mov_b32 v%d, v%d' % (vT0, v))
        a('v_permlane16_swap_b32 v%d, v%d' % (vT0, v))
        a('%s v%d, v%d, v%d' % (op, v, v, vT0))

    def softmax():
        n = NT * 8
        acc = [vM, vT1, vT2, vT3]
        idx = 0
        for k in range(4):
            a('v_max3_f32 v%d, v%d, v%d, v%d' % (acc[k], vS + idx, vS + idx + 1, vS + idx + 2))
            idx += 3
        k = 0
        while idx + 1 < n:
            a('v_max3_f32 v%d, v%d, v%d, v%d' % (acc[k], acc[k], vS + idx, vS + idx + 1))
            idx += 2
            k = (k + 1) % 4
        while idx < n:
            a('v_max_f32 v%d, v%d, v%d' % (acc[k], acc[k], vS + idx))
            idx += 1
        a('v_max3_f32 v%d, v%d, v%d, v%d' % (vM, vM, vT1, vT2))
        a('v_max_f32 v%d, v%d, v%d' % (vM, vM, vT3))
        xg_reduce(vM, 'v_max_f32')
        a('v_mul_f32 v%d, s%d, v%d' % (vM, sC, vM))
        a('v_mov_b32 v%d, 0' % vL)
        a('v_mov_b32 v%d, 0' % vL2)

    def probs(t):
        if cfg.nosm:
            return
        b = vS + 8 * t
        for i in range(8):
            a('v_fma_f32 v%d, v%d, s%d, -v%d' % (b + i, b + i, sC, vM))
        for i in range(8):
            a('v_exp_f32 v%d, v%d' % (b + i, b + i))
        for i in range(4):
            a('v_cvt_pk_bf16_f32 v%d, v%d, v%d' % (vP + 4 * t + i, b + 2 * i, b + 2 * i + 1))
        for i in range(4):
            a('v_add_f32 v%d, v%d, v%d' % (vL, vL, b + 2 * i))
            a('v_add_f32 v%d, v%d, v%d' % (vL2, vL2, b + 2 * i + 1))

    def finish_sum():
        a('v_add_f32 v%d, v%d, v%d' % (vL, vL, vL2))
        xg_reduce(vL, 'v_add_f32')

    def mid_setup_a():
        a('s_lshl_b32 s%d, s%d, 7' % (sT1, sP))
        a('s_add_u32 s%d, s%d, %d' % (sT1, sT1, XOFF))
        a('v_and_b32 v%d, 7, v%d' % (vFlagA, vLane))
        a('v_lshlrev_b32 v%d, 2, v%d' % (vFlagA, vFlagA))
        a('v_add_u32 v%d, s%d, v%d' % (vFlagA, sT1, vFlagA))
        vm.issue('global_load_dword v%d, v%d, s[20:21]' % (vFlag, vFlagA), 'flag')
        a('s_or_b32 s%d, s%d, 0x80' % (sT1, sXcc))
        a('v_and_b32 v%d, 1, v%d' % (vFlag + 1, vLane))
        a('v_mul_u32_u24 v%d, s%d, v%d' % (vFlag + 1, sT1, vFlag + 1))
        a('v_xor_b32 v%d, s%d, v%d' % (vFlag + 1, sTag, vFlag + 1))
        a('s_lshl_b32 s%d, s%d, 2' % (sT0, sP))
        a('s_add_u32 s%d, s%d, s3' % (sT0, sT0))
        a('s_lshl_b32 s%d, s%d, 2' % (sT0, sT0))
        a('s_add_u32 s%d, s%d, s%d' % (sT0, sT0, sJ))
        a('s_lshl_b32 s%d, s%d, 10' % (sT0, sT0))
        a('v_add_u32 v%d, s%d, v%d' % (vPub, sT0, vL16))
        a('s_lshl_b32 s%d, s2, 12' % sT0)
        for k in range(1, 4):
            a('s_add_u32 s%d, s%d, %d' % (sT1, sJ, k))
            a('s_and_b32 s%d, s%d, 3' % (sT1, sT1))
            a('s_lshl_b32 s%d, s%d, 10' % (sT1, sT1))
            a('s_add_u32 s%d, s%d, s%d' % (sT1, sT1, sT0))
            a('v_add_u32 v%d, s%d, v%d' % (vPa + k - 1, sT1, vL16))
        a('s_lshl_b32 s%d, s2, 8' % sT0)
        a('v_lshlrev_b32 v%d, 2, v%d' % (vOut, vLane))
        a('v_add_u32 v%d, s%d, v%d' % (vOut, sT0, vOut))

    def mid_setup():
        if cfg.xstep < 0:
            mid_setup_a()
        a('s_mul_i32 s%d, s3, %d' % (sT0, PSTR))
        a('s_add_u32 s%d, s%d, %d' % (sT0, sT0, RED))
        a('v_and_b32 v%d, 3, v%d' % (vT0, vLane))
        a('v_mul_u32_u24 v%d, 528, v%d' % (vT1, vT0))
        a('v_lshrrev_b32 v%d, 4, v%d' % (vT2, vLane))
        a('v_lshlrev_b32 v%d, 4, v%d' % (vT3, vT2))
        a('v_add3_u32 v%d, v%d, v%d, s%d' % (vEp1, vT1, vT3, sT0))
        if cfg.compact:
            a('v_bfe_u32 v%d, v%d, 2, 2' % (vT1, vLane))
            a('v_lshl_add_u32 v%d, v%d, 6, v%d' % (vEp1, vT1, vEp1))
        a('v_lshl_add_u32 v%d, v%d, 2, v%d' % (vT2, vT2, vT0))
        a('v_lshlrev_b32 v%d, 3, v%d' % (vMLa, vT2))
        a('v_add_u32 v%d, s%d, v%d' % (vMLa, sT0, vMLa))
        a('s_mul_i32 s%d, s3, 528' % sT0)
        a('s_add_u32 s%d, s%d, %d' % (sT0, sT0, RED))
        a('v_lshlrev_b32 v%d, 3, v%d' % (vEp2, vLane))
        a('v_add_u32 v%d, s%d, v%d' % (vEp2, sT0, vEp2))
        a('s_lshl_b32 s%d, s3, 3' % sT1)
        a('s_add_u32 s%d, s%d, %d' % (sT1, sT1, RED + MLOFF))
        a('v_mov_b32 v%d, s%d' % (vEp3, sT1))

    def write_ml():
        a('v_mov_b32 v%d, v%d' % (vG, vM))
        a('v_mov_b32 v%d, v%d' % (vG + 1, vL))
        a('s_mov_b32 exec_lo, 0x000f000f')
        a('s_mov_b32 exec_hi, 0x000f000f')
        a('ds_write_b64 v%d, %s offset:%d' % (vMLa, r(vG, 2), MLOFF))
        a('s_mov_b64 exec, -1')

    x = vS
    mreg = [x + 2 * w for w in range(NW)]
    lreg = [x + 1 + 2 * w for w in range(NW)]

    def weights():
        for w in range(NW):
            a('ds_read_b64 %s, v%d offset:%d' % (r(x + 2 * w, 2), vEp3, w * PSTR))
        a('v_lshlrev_b32 v%d, 16, v%d' % (vG, vVt))
        a('v_and_b32 v%d, 0xffff0000, v%d' % (vG + 1, vVt))
        a('s_waitcnt lgkmcnt(0)')
        a('v_max3_f32 v%d, v%d, v%d, v%d' % (vG + 2, vTree, mreg[0], mreg[1]))
        a('v_max3_f32 v%d, v%d, v%d, v%d' % (vG + 2, vG + 2, mreg[2], mreg[3]))
        for w in range(NW):
            a('v_sub_f32 v%d, v%d, v%d' % (vW + w, mreg[w], vG + 2))
        a('v_sub_f32 v%d, v%d, v%d' % (vTree, vTree, vG + 2))
        for w in range(NW):
            a('v_exp_f32 v%d, v%d' % (vW + w, vW + w))
        a('v_exp_f32 v%d, v%d' % (vTree, vTree))
        a('v_mov_b32 v%d, v%d' % (vG + 3, vTree))
        for w in range(NW):
            a('v_fmac_f32 v%d, v%d, v%d' % (vG + 3, vW + w, lreg[w]))
        if cfg.epoch:
            a('v_rcp_f32 v%d, v%d' % (vT1, vG + 3))
            a('v_log_f32 v%d, v%d' % (vT2, vG + 3))
            a('v_mov_b32 v%d, s%d' % (vG + 3, sTag))
            a('v_mul_f32 v%d, v%d, v%d' % (vTree, vTree, vT1))
            for w in range(NW):
                a('v_mul_f32 v%d, v%d, v%d' % (vW + w, vW + w, vT1))
            a('v_add_f32 v%d, v%d, v%d' % (vG + 2, vG + 2, vT2))
            a('v_mul_f32 v%d, v%d, v%d' % (vG, vG, vTree))
            a('v_mul_f32 v%d, v%d, v%d' % (vG + 1, vG + 1, vTree))

    def pv_mfma(t, b):
        if cfg.compact:
            d = r(vO + 4 * (b >> 2), 4)
            a('v_mfma_f32_16x16x32_bf16 %s, %s, %s, %s' % (d, r(vStage + 4 * b, 4), r(vPm + 4 * (b & 3), 4), d))
        else:
            a('v_mfma_f32_16x16x32_bf16 %s, %s, %s, %s' % (
                r(vO + 4 * b, 4), r(vStage + 4 * b, 4), r(vP + 4 * t, 4), r(vO + 4 * b, 4)))

    flag_read = []
    sched = {0: [1, 2], 1: [3, 4], 2: [5, 6], 3: [7]} if cfg.split else {}

    def after_step(t):
        for u in sched.get(t, []):
            probs(u)
        if cfg.split and t == 0:
            mid_setup()
        if cfg.split and t == 3:
            finish_sum()
            write_ml()

    def v_tile(n):
        t = n - NT
        slot = n % NS
        last = (n == 2 * NT - 1)
        if last and cfg.early and not cfg.diag:
            a('s_waitcnt lgkmcnt(0)')
            a('s_barrier')
            weights()
        if cfg.compact:
            for g in range(4):
                for i in range(4):
                    a('v_cndmask_b32 v%d, 0, v%d, s[%d:%d]' % (vPm + 4 * g + i, vP + 4 * t + i, sMask + 2 * g, sMask + 2 * g + 1))
        vm.wait(('tile', n))
        if not flag_read and 'flag' in vm.ops and vm.ops.index('flag') < vm.ops.index(('tile', n)) and n >= cfg.pfstep:
            a('v_cmp_ne_u32 vcc, v%d, v%d' % (vFlag, vFlag + 1))
            a.nop(5)
            a('s_cmp_eq_u64 vcc, 0')
            a('s_cselect_b32 s%d, 1, 0' % sFlag)
            if cfg.pfin:
                a('s_cbranch_scc0 L_nopfin')
                a('s_cmp_eq_u32 s3, s%d' % sJ)
                a('s_cbranch_scc0 L_nopfin')
                for k in range(3):
                    a('global_load_dword v%d, v%d, s[20:21]' % (vTD + 1, vPa + k))
                if cfg.otouch:
                    a('global_load_dword v%d, v%d, s[16:17]' % (vTD + 1, vOut))
                a.label('L_nopfin')
            flag_read.append(n)
        if n in (8, 11, 14, 15):
            stamp('tile%d' % n)
        if cfg.diag >= 2 or cfg.nov:
            if n + NS < 2 * NT:
                issue_tile(n + NS)
                if cfg.nov and cfg.diag < 2:
                    after_step(t)
            return
        for b in range(8):
            for w in range(2):
                a('ds_read_b64_tr_b16 %s, v%d offset:%d' % (
                    r(vStage + 4 * b + 2 * w, 2), vV, slot * TILE + w * 512 + b * 32))
        if n + NS < 2 * NT:
            a('s_waitcnt lgkmcnt(0)')
            if cfg.lock:
                a('s_barrier')
            issue_tile(n + NS)
            for b in ([0, 4, 1, 5, 2, 6, 3, 7] if cfg.mix else range(8)):
                pv_mfma(t, b)
            after_step(t)
        else:
            for b in range(8):
                a('s_waitcnt lgkmcnt(%d)' % (14 - 2 * b))
                pv_mfma(t, b)

    for n in range(NT):
        k_tile(n)
    if cfg.stamp: stamp('presm')
    if cfg.diag < 2 and not cfg.nosm:
        softmax()
    if cfg.diag >= 2:
        mid_setup()
    elif cfg.split:
        assert NS >= 4
        probs(0)
    else:
        for t in range(NT):
            probs(t)
        finish_sum()
        mid_setup()
        write_ml()
    stamp('softmax')
    for n in range(NT, 2 * NT):
        v_tile(n)
    assert flag_read
    stamp('pv_done')
    if cfg.diag:
        a('s_endpgm')

    if cfg.compact:
        for acc in range(2):
            a('ds_write_b128 v%d, %s offset:%d' % (vEp1, r(vO + 4 * acc, 4), acc * 256))
    else:
        a('s_mov_b32 exec_lo, 0x000f000f')
        a('s_mov_b32 exec_hi, 0x000f000f')
        for b in range(8):
            a('ds_write_b128 v%d, %s offset:%d' % (vEp1, r(vO + 4 * b, 4), b * 64))
        a('s_mov_b64 exec, -1')
    a('s_waitcnt lgkmcnt(0)')
    stamp('ldsw')
    a('s_barrier')
    stamp('bar')
    y = vStage
    for w in range(NW):
        a('ds_read_b64 %s, v%d offset:%d' % (r(y + 2 * w, 2), vEp2, w * PSTR))
    if not cfg.early:
        weights()
    for w in range(NW):
        if cfg.early:
            a('s_waitcnt lgkmcnt(%d)' % (NW - 1 - w))
        a('v_fmac_f32 v%d, v%d, v%d' % (vG, vW + w, y + 2 * w))
        a('v_fmac_f32 v%d, v%d, v%d' % (vG + 1, vW + w, y + 2 * w + 1))
    stamp('red')
    a('s_cmp_eq_u32 s3, s%d' % sJ)
    a('s_cbranch_scc1 L_consumer')
    if cfg.local:
        a('s_cmp_eq_u32 s%d, 1' % sFlag)
        a('s_cbranch_scc0 L_far')
        if not cfg.nopub:
            a('global_store_dwordx4 v%d, %s, s[20:21]%s' % (vPub, r(vG, 4), (' ' + cfg.pubpol) if cfg.pubpol else ''))
        stamp('published')
        n_pub = len(stamps)
        dump_stamps()
        a('s_endpgm')
        a.label('L_far')
    a('global_store_dwordx4 v%d, %s, s[20:21] sc1' % (vPub, r(vG, 4)))
    if not cfg.local:
        stamp('published')
    dump_stamps()
    a('s_endpgm')
    a.label('L_consumer')
    z = x + 16
    def final_combine(z, sfx):
        ms = [vG + 2, z + 2, z + 6, z + 10]
        o0 = [vG, z, z + 4, z + 8]
        ls = [vG + 3, z + 3, z + 7, z + 11]
        a('v_max3_f32 v%d, v%d, v%d, v%d' % (vM, ms[0], ms[1], ms[2]))
        a('v_max_f32 v%d, v%d, v%d' % (vM, vM, ms[3]))
        for k in range(4):
            a('v_sub_f32 v%d, v%d, v%d' % (ms[k], ms[k], vM))
        for k in range(4):
            a('v_exp_f32 v%d, v%d' % (ms[k], ms[k]))
        if cfg.epoch:
            a('v_add_f32 v%d, v%d, v%d' % (vT3, ms[0], ms[1]))
            a('v_add_f32 v%d, v%d, v%d' % (vT0, ms[2], ms[3]))
            a('v_mul_f32 v%d, v%d, v%d' % (vT1, ms[0], o0[0]))
            a('v_mul_f32 v%d, v%d, v%d' % (vT2, ms[0], o0[0] + 1))
            a('v_add_f32 v%d, v%d, v%d' % (vT3, vT3, vT0))
        else:
            a('v_mul_f32 v%d, v%d, v%d' % (vT3, ms[0], ls[0]))
            a('v_mul_f32 v%d, v%d, v%d' % (vT1, ms[0], o0[0]))
            a('v_mul_f32 v%d, v%d, v%d' % (vT2, ms[0], o0[0] + 1))
            for k in range(1, 4):
                a('v_fmac_f32 v%d, v%d, v%d' % (vT3, ms[k], ls[k]))
        a('v_rcp_f32 v%d, v%d' % (vT3, vT3))
        for k in range(1, 4):
            a('v_fmac_f32 v%d, v%d, v%d' % (vT1, ms[k], o0[k]))
            a('v_fmac_f32 v%d, v%d, v%d' % (vT2, ms[k], o0[k] + 1))
        a('v_mul_f32 v%d, v%d, v%d' % (vT1, vT1, vT3))
        a('v_mul_f32 v%d, v%d, v%d' % (vT2, vT2, vT3))
        a('v_cvt_pk_bf16_f32 v%d, v%d, v%d' % (vT1, vT1, vT2))
        a('global_store_dword v%d, v%d, s[16:17]' % (vOut, vT1))
        if cfg.epoch and not cfg.noEst:
            a('s_lshl_b32 s%d, s%d, 7' % (sT0, sP))
            a('s_add_u32 s%d, s%d, %d' % (sT0, sT0, EOFF))
            a('v_mov_b32 v%d, s%d' % (vT0, sT0))
            a('v_mov_b32 v%d, s%d' % (vT2, sTag))
            a('s_cmp_eq_u32 s%d, 0' % sJ)
            a('s_cbranch_scc0 L_noEst' + sfx)
            a('s_mov_b64 exec, 1')
            a('global_store_dword v%d, v%d, s[20:21]' % (vT0, vT2))
            a.label('L_noEst' + sfx)

    def poll_loads(z):
        for k in range(3):
            a('global_load_dwordx4 %s, v%d, s[20:21] %s' % (r(z + 4 * k, 4), vPa + k, cfg.pollpol))

    def poll_check(z):
        for k in range(3):
            a('v_readfirstlane_b32 s%d, v%d' % (sT0 + k, z + 4 * k + 2))
        a('v_xor_b32 v%d, s%d, v%d' % (vT1, sTag, z + 3))
        a('v_xor_b32 v%d, s%d, v%d' % (vT2, sTag, z + 7))
        a('v_xor_b32 v%d, s%d, v%d' % (vT3, sTag, z + 11))
        a('v_or3_b32 v%d, v%d, v%d, v%d' % (vT1, vT1, vT2, vT3))
        a('v_xor_b32 v%d, s%d, v%d' % (vT0, sT0, z + 2))
        a('v_xor_b32 v%d, s%d, v%d' % (vT2, sT0 + 1, z + 6))
        a('v_xor_b32 v%d, s%d, v%d' % (vT3, sT0 + 2, z + 10))
        a('v_or3_b32 v%d, v%d, v%d, v%d' % (vT0, vT0, vT2, vT3))
        a('v_or_b32 v%d, v%d, v%d' % (vT1, vT1, vT0))
        a('v_cmp_ne_u32 vcc, 0, v%d' % vT1)

    if cfg.stag:
        z2 = z + 16
        poll_loads(z)
        a.label('L_poll')
        poll_loads(z2)
        a('s_waitcnt vmcnt(3)')
        poll_check(z)
        spin_guard('L_end')
        a('s_cbranch_vccz L_polled')
        poll_loads(z)
        a('s_waitcnt vmcnt(3)')
        poll_check(z2)
        a('s_cbranch_vccnz L_poll')
        final_combine(z2, 'b')
        a('s_endpgm')
        a.label('L_polled')
    else:
        a.label('L_poll')
        if cfg.nopoll:
            a('s_branch L_polled2')
        poll_loads(z)
        a('s_waitcnt vmcnt(0)')
        poll_check(z)
        spin_guard('L_end')
        if not cfg.tight:
            a.nop(5)
        if cfg.psleep:
            a('s_cbranch_vccz L_polled')
            a('s_sleep %d' % cfg.psleep)
            a('s_branch L_poll')
            a.label('L_polled')
        else:
            a('s_cbranch_vccnz L_poll')
    if cfg.nopoll:
        a.label('L_polled2')
    stamp('polled')
    final_combine(z, 'a')
    stamp('out')
    dump_stamps()
    a.label('L_end')
    a('s_endpgm')
    if cfg.cpf:
        a.label('L_codeend')
    return a, LDS, nvgpr


KD = """.section .rodata,"a"
.p2align 6
.amdhsa_kernel %s
  .amdhsa_next_free_vgpr %d
  .amdhsa_next_free_sgpr %d
  .amdhsa_accum_offset %d
  .amdhsa_group_segment_fixed_size 0
  .amdhsa_kernarg_size 72
  .amdhsa_user_sgpr_count 2
  .amdhsa_user_sgpr_kernarg_segment_ptr 1
  .amdhsa_system_sgpr_workgroup_id_x 1
.end_amdhsa_kernel
"""


def kernel_text(name, body):
    return ('.text\n.globl %s\n.p2align 8\n.type %s,@function\n%s:\n' % (name, name, name)) + body


def generate(cfg):
    a, lds, nv = gen_main(cfg)
    out = HEADER
    out += '; @launch grid=(256,1,1) block=(%d,1,1) lds=%d\n' % (256, lds)
    out += '.amdgcn_target "amdgcn-amd-amdhsa--gfx950"\n'
    out += kernel_text(KMAIN, a.finalize())
    nva = (nv + 7) // 8 * 8
    out += KD % (KMAIN, nva, 100, (nva + 3) // 4 * 4)
    return out


if __name__ == '__main__':
    ap = argparse.ArgumentParser()
    ap.add_argument('-o', default='cdna_kernels/' + NAME + '.s')
    ap.add_argument('opts', nargs='*', help='key=value')
    args = ap.parse_args()
    kw = {}
    for o in args.opts:
        k, v = o.split('=', 1)
        try:
            v = int(v)
        except ValueError:
            pass
        kw[k] = v
    cfg = Cfg(**kw)
    txt = generate(cfg)
    open(args.o, 'w').write(txt)
    print('wrote', args.o, len(txt), 'bytes')
    if cfg.stamp:
        open(args.o[:-2] + '.names', 'w').write('\n'.join(cfg.stamp_names) + '\n')
```

```python
import argparse
import math
import re
import struct
import sys
import os

sys.path.insert(0, os.path.dirname(os.path.abspath(__file__)))
from asmlib import Asm

NAME = 'standalone__tree_speculative_verify_tree_attention_over_candidate_token_tree__decode'
KMAIN = NAME + '_kernel'

HEADER = """; Kernarg layout for this problem (72 bytes, ptrs only, base s[0:1]):
;   offset  24: d_in[3] k_tree  shape=(8, 8, 1, 128) dtype=bfloat16 strides=(2048, 256, 256, 2) contiguous=True
;   offset  32: d_in[4] v_tree  shape=(8, 8, 1, 128) dtype=bfloat16 strides=(2048, 256, 256, 2) contiguous=True
;   offset  40: d_in[5] tree_mask  shape=(8, 1, 1) dtype=bfloat16 strides=(2, 2, 2) contiguous=True
"""


def f2u(x):
    return struct.unpack('<I', struct.pack('<f', x))[0]


def hx(x):
    return '0x%08x' % (x & 0xffffffff)


SCALE_LOG2E = (128.0 ** -0.5) * math.log2(math.e)
NEG_BIG_LOG2E = -1.0e9 * math.log2(math.e)

PIECE = 1056
TILE = 8 * PIECE
NW = 4
NT = 8


class Cfg:
    def __init__(self, **kw):
        self.ns = 4
        self.pol = 'nt'
        self.low = 'w0j0w1j1'
        self.high = 'n0n2n1'
        self.stamp = 0
        self.local = 1
        self.early = 1
        self.psleep = 0
        self.treeskip = 0
        self.mix = 1
        self.pubpol = ''
        self.stag = 0
        self.nok = 0
        self.nov = 0
        self.nosm = 0
        self.notree = 0
        self.prio = 0
        self.wpos = '10,11'
        self.ppos = ''
        self.bits = ''
        self.vtouch = 0
        self.eoff = 0x100000
        self.otouch = 0
        self.xstep = -1
        self.pfstep = 0
        self.k0loop = 0
        self.tstep = -1
        self.qpos = -1
        self.tpos = 0
        self.epos = -1
        self.compact = 1
        self.tight = 1
        self.map0 = 0
        self.vpol = 'same'
        self.pfin = 1
        self.pollpol = 'sc1'
        self.nopub = 0
        self.nopoll = 0
        self.noEst = 0
        self.noE = 0
        self.noX = 0
        self.epoch = 1
        self.plainld = 0
        self.nclr = 4
        self.clrpol = 'sc1'
        self.flagst = 1
        self.noflagld = 0
        self.helper = 0
        self.lock = 2
        self.diag = 0
        self.ilv = 1
        self.ihigh = 'n0n1n2j0j1'
        self.split = 1
        self.cpf = 0
        self.xr = 0
        self.spin = 0
        self.__dict__.update(kw)


class VM:
    def __init__(self, a):
        self.a = a
        self.ops = []

    def issue(self, text, tag):
        self.a(text)
        self.ops.append(tag)

    def count(self, *tags):
        last = max(i for i, t in enumerate(self.ops) if t in tags)
        n = len(self.ops) - 1 - last
        assert n <= 63, n
        return n

    def wait(self, *tags):
        self.a('s_waitcnt vmcnt(%d)' % self.count(*tags))


def gen_main(cfg):
    a = Asm()
    vm = VM(a)
    NS = cfg.ns
    RING = NS * TILE
    RED = NW * RING
    PSTR = 2240
    MLOFF = 2112
    LDS = RED + NW * PSTR
    assert LDS <= 163840, LDS

    sP, sJ = 36, 37
    sBase, sOff, sLds, sC = 32, 33, 34, 35
    sT0, sT1, sT2, sT3 = 38, 39, 40, 41
    sBig, sXcc, sFlag, sSpin = 42, 43, 22, 23
    s4k = 97
    sE, sTag = 98, 99
    EOFF = cfg.eoff
    XOFF = cfg.eoff + 0x10000
    vL16w = 3
    vLane, vL16, vL16b, vK, vV = 1, 2, 3, 4, 5
    vT0, vT1, vT2, vT3 = 6, 7, 8, 9
    vTree, vVt, vMask = 10, 11, 12
    vM, vL = 13, 14
    vFlagA = 0
    vL2 = 12
    vQ = 16
    vStage = 32
    vS = 64
    vP = vS + NT * 8
    vO = vP + NT * 4
    vKt = vO + 32
    vTD = vKt + 16
    nvgpr = vTD + 4
    vPm = vO + 8
    sMask = 88
    vFlag = vTD + 2
    vMLa = vTD
    vEp1, vEp2, vEp3, vPub, vOut = vKt, vKt + 1, vKt + 2, vKt + 3, vKt + 4
    vPa = vKt + 5
    vG = vKt + 8
    vW = vKt + 12
    assert vG % 2 == 0

    def r(base, n):
        return 'v[%d:%d]' % (base, base + n - 1)

    stamps = []

    def stamp(name):
        if not cfg.stamp:
            return
        i = len(stamps)
        assert 44 + 2 * i + 1 < 96
        stamps.append(name)
        a('s_memrealtime s[%d:%d]' % (44 + 2 * i, 45 + 2 * i))
        a('s_waitcnt lgkmcnt(0)')

    def dump_stamps():
        if not cfg.stamp:
            return
        v = vS
        a('v_mov_b32 v%d, 0' % v)
        for i in range(len(stamps)):
            a('v_writelane_b32 v%d, s%d, %d' % (v, 44 + 2 * i, i))
        a('v_writelane_b32 v%d, s%d, 62' % (v, sXcc))
        a('s_lshl_b32 s%d, s2, 3' % sT3)
        a('s_add_u32 s%d, s%d, s3' % (sT3, sT3))
        a('s_lshl_b32 s%d, s%d, 8' % (sT3, sT3))
        a('s_add_u32 s%d, s%d, 0x8000000' % (sT3, sT3))
        a('v_lshlrev_b32 v%d, 2, v%d' % (v + 1, vLane))
        a('v_add_u32 v%d, s%d, v%d' % (v + 1, sT3, v + 1))
        a('global_store_dword v%d, v%d, s[20:21]' % (v + 1, v))
        cfg.stamp_names = list(stamps)

    def spin_guard(exit_label):
        if cfg.spin:
            a('s_sub_u32 s%d, s%d, 1' % (sSpin, sSpin))
            a('s_cbranch_scc1 ' + exit_label)

    gb = None
    if cfg.bits:
        names = re.findall(r'[wjni]\d', cfg.bits)
        assert sorted(names) == sorted(['w0', 'w1', 'i0', 'i1', 'i2', 'n0', 'n1', 'n2', 'j0', 'j1']), names
        gb = {nm: 10 + pos for pos, nm in enumerate(names)}
    if cfg.ilv:
        hi = re.findall(r'[nj]\d', cfg.ihigh)
        assert sorted(hi) == ['j0', 'j1', 'n0', 'n1', 'n2']
        npos = {int(nm[1]): 15 + pos for pos, nm in enumerate(hi) if nm[0] == 'n'}
        jpos = {int(nm[1]): 15 + pos for pos, nm in enumerate(hi) if nm[0] == 'j'}
        if gb:
            npos = {k: gb['n%d' % k] for k in range(3)}
            jpos = {k: gb['j%d' % k] for k in range(2)}
            cfg.wpos = '%d,%d' % (gb['w0'], gb['w1'])
            cfg.ppos = '%d,%d,%d' % (gb['i0'], gb['i1'], gb['i2'])
    else:
        hi = re.findall(r'n\d', cfg.high)
        assert sorted(hi) == ['n0', 'n1', 'n2']
        npos = {int(nm[1]): 17 + pos for pos, nm in enumerate(hi)}

    def tile_delta(t):
        return sum(((t >> k) & 1) << npos[k] for k in range(3))

    def issue_tile(n, compact=False):
        isk = n < NT
        slot = n % NS
        srd = 's[24:27]' if isk else 's[28:31]'
        d = tile_delta(n % NT)
        if cfg.ilv and compact and cfg.k0loop:
            assert d == 0 and cfg.wpos == '10,11' and not gb
            a('s_mov_b32 s%d, s%d' % (sOff, sBase))
            a('s_movk_i32 s%d, 7' % sT1)
            a.label('L_k0')
            vm.issue('buffer_load_dwordx4 v%d, %s, s%d offen %s lds' % (vL16w, srd, sOff, cfg.pol), ('tile', n))
            for i in range(7):
                vm.ops.append(('tile', n))
            a('s_add_u32 m0, m0, s%d' % sBig)
            a('s_add_u32 s%d, s%d, s%d' % (sOff, sOff, s4k))
            a('s_sub_u32 s%d, s%d, 1' % (sT1, sT1))
            a('s_cbranch_scc0 L_k0')
            return
        if cfg.ilv:
            for i in range(8):
                if (cfg.lock == 3 and i == 4) or (cfg.lock == 4 and i in (2, 4, 6)) or (cfg.lock == 5 and i > 0):
                    a('s_barrier')
                if compact:
                    if i > 0:
                        a('s_add_u32 m0, m0, s%d' % sBig)
                else:
                    a('s_add_u32 m0, s%d, %d' % (sLds, slot * TILE + i * PIECE))
                if cfg.wpos == '10,11' and not gb:
                    if i == 0:
                        if d:
                            a('s_xor_b32 s%d, s%d, %d' % (sOff, sBase, d))
                        else:
                            a('s_mov_b32 s%d, s%d' % (sOff, sBase))
                    else:
                        a('s_add_u32 s%d, s%d, s%d' % (sOff, sOff, s4k))
                else:
                    wp = [int(x) for x in cfg.wpos.split(',')]
                    pp = [int(x) for x in cfg.ppos.split(',')] if cfg.ppos else [b for b in range(10, 15) if b not in wp]
                    assert gb or sorted(pp + wp) == [10, 11, 12, 13, 14]
                    off = sum(((i >> k) & 1) << pp[k] for k in range(3))
                    a('s_xor_b32 s%d, s%d, %d' % (sOff, sBase, d ^ off))
                txt = 'buffer_load_dwordx4 v%d, %s, s%d offen' % (vL16w, srd, sOff)
                pol = cfg.pol if isk else (cfg.vpol if cfg.vpol != 'same' else cfg.pol)
                if pol and pol != 'none':
                    txt += ' ' + pol.replace('+', ' ')
                txt += ' lds'
                vm.issue(txt, ('tile', n))
            return
        if d:
            a('s_xor_b32 s%d, s%d, %d' % (sOff, sBase, d))
            so = sOff
        else:
            so = sBase
        for i in range(8):
            if compact:
                if i > 0:
                    if i == 4:
                        a('s_add_u32 m0, m0, s%d' % sBig)
                    else:
                        a('s_add_u32 m0, m0, 32')
            else:
                m0 = slot * TILE + i * 32 + (4096 if i >= 4 else 0)
                a('s_add_u32 m0, s%d, %d' % (sLds, m0))
            voff = vL16 if i < 4 else vL16b
            off = (i & 3) * 1024
            txt = 'buffer_load_dwordx4 v%d, %s, s%d offen' % (voff, srd, so)
            if off:
                txt += ' offset:%d' % off
            if cfg.pol:
                txt += ' ' + cfg.pol.replace('+', ' ')
            txt += ' lds'
            vm.issue(txt, ('tile', n))

    def epoch_load():
        a('s_lshl_b32 s%d, s%d, 7' % (sT2, sP))
        a('s_add_u32 s%d, s%d, %d' % (sT2, sT2, EOFF))
        if not cfg.noE:
            a('s_load_dword s%d, s[20:21], s%d' % (sE, sT2))

    def q_addr():
        a('v_and_b32 v%d, 3, v%d' % (vT0, vLane))
        a('v_lshlrev_b32 v%d, 8, v%d' % (vT0, vT0))
        a('v_lshrrev_b32 v%d, 4, v%d' % (vT1, vLane))
        a('v_lshlrev_b32 v%d, 4, v%d' % (vT1, vT1))
        a('s_lshl_b32 s%d, s%d, 10' % (sT0, sP))
        a('v_add3_u32 v%d, v%d, v%d, s%d' % (vT0, vT0, vT1, sT0))

    def q_loads():
        if cfg.qpos >= 0:
            q_addr()
        for s in range(4):
            vm.issue('global_load_dwordx4 %s, v%d, s[4:5] offset:%d' % (r(vQ + 4 * s, 4), vT0, s * 64), 'small')

    def tree_addr():
        a('v_lshrrev_b32 v%d, 4, v%d' % (vT1, vLane))
        a('v_lshlrev_b32 v%d, 4, v%d' % (vT1, vT1))
        a('s_lshl_b32 s%d, s%d, 8' % (sT1, sP))
        a('v_add_u32 v%d, s%d, v%d' % (vT1, sT1, vT1))
        a('v_lshlrev_b32 v%d, 2, v%d' % (vT2, vLane))
        a('v_add_u32 v%d, s%d, v%d' % (vT2, sT1, vT2))
        a('s_lshr_b32 s%d, s%d, 3' % (sT2, sP))
        a('s_lshl_b32 s%d, s%d, 1' % (sT2, sT2))
        a('v_mov_b32 v%d, s%d' % (vT3, sT2))

    def tree_loads():
        if cfg.treeskip:
            a('s_cmp_eq_u32 s%d, 0' % sJ)
            a('s_cbranch_scc0 L_notreeld')
        if cfg.tpos >= 0:
            tree_addr()
        for s in range(4):
            vm.issue('global_load_dwordx4 %s, v%d, s[10:11] offset:%d' % (r(vKt + 4 * s, 4), vT1, s * 64), 'tree')
        vm.issue('global_load_dword v%d, v%d, s[12:13]' % (vVt, vT2), 'tree')
        vm.issue('global_load_ushort v%d, v%d, s[14:15]' % (vMask, vT3), 'tree')
        if cfg.vtouch:
            vm.issue('buffer_load_dword v15, off, s[28:31], s%d%s' % (sBase, ' nt' if cfg.vtouch == 2 else ''), 'tree')
        if cfg.treeskip:
            a.label('L_notreeld')

    if cfg.stamp:
        a('s_cmp_ge_u32 s2, 256')
        a('s_cbranch_scc1 L_end')
        stamp('entry')
    a('s_load_dwordx16 s[4:19], s[0:1], 0')
    a('s_load_dwordx2 s[20:21], s[0:1], 64')
    if not cfg.stamp:
        a('s_cmp_ge_u32 s2, 256')
        a('s_cbranch_scc1 L_end')
    a('v_readfirstlane_b32 s3, v0')
    a('v_and_b32 v%d, 63, v0' % vLane)
    a('v_lshlrev_b32 v%d, 4, v%d' % (vL16, vLane))
    a('s_mov_b32 s26, 0x4000000')
    a('s_mov_b32 s27, 0x20000')
    a('s_lshr_b32 s3, s3, 6')
    if cfg.map0:
        a('s_lshr_b32 s%d, s2, 2' % sP)
        a('s_and_b32 s%d, s2, 3' % sJ)
    else:
        a('s_and_b32 s%d, s2, 7' % sT0)
        a('s_bfe_u32 s%d, s2, 0x20003' % sJ)
        a('s_lshr_b32 s%d, s2, 5' % sT1)
        a('s_lshl_b32 s%d, s%d, 3' % (sP, sT0))
        a('s_add_u32 s%d, s%d, s%d' % (sP, sP, sT1))
    if cfg.ilv:
        if jpos[1] == jpos[0] + 1:
            a('s_lshl_b32 s%d, s%d, %d' % (sT0, sJ, jpos[0]))
        else:
            a('s_and_b32 s%d, s%d, 1' % (sT0, sJ))
            a('s_lshl_b32 s%d, s%d, %d' % (sT0, sT0, jpos[0]))
            a('s_lshr_b32 s%d, s%d, 1' % (sT1, sJ))
            a('s_lshl_b32 s%d, s%d, %d' % (sT1, sT1, jpos[1]))
            a('s_or_b32 s%d, s%d, s%d' % (sT0, sT0, sT1))
        wp = [int(x) for x in cfg.wpos.split(',')]
        if wp[1] == wp[0] + 1:
            a('s_lshl_b32 s%d, s3, %d' % (sT1, wp[0]))
        else:
            a('s_and_b32 s%d, s3, 1' % sT1)
            a('s_lshl_b32 s%d, s%d, %d' % (sT1, sT1, wp[0]))
            a('s_lshr_b32 s%d, s3, 1' % sT2)
            a('s_lshl_b32 s%d, s%d, %d' % (sT2, sT2, wp[1]))
            a('s_or_b32 s%d, s%d, s%d' % (sT1, sT1, sT2))
        a('v_add_u32 v%d, s%d, v%d' % (vL16w, sT1, vL16))
        a('s_movk_i32 s%d, 0x1000' % s4k)
    elif cfg.low == 'w0w1j0j1':
        a('s_lshl_b32 s%d, s%d, 2' % (sT0, sJ))
        a('s_add_u32 s%d, s%d, s3' % (sT0, sT0))
        a('s_lshl_b32 s%d, s%d, 13' % (sT0, sT0))
    elif cfg.low == 'w0j0w1j1':
        a('s_lshl_b32 s%d, s%d, 2' % (sT0, sJ))
        a('s_or_b32 s%d, s%d, s3' % (sT0, sT0))
        a('s_and_b32 s%d, s%d, 6' % (sT1, sT0))
        a('s_lshr_b32 s%d, s%d, 1' % (sT2, sT1))
        a('s_xor_b32 s%d, s%d, s%d' % (sT2, sT2, sT1))
        a('s_and_b32 s%d, s%d, 2' % (sT2, sT2))
        a('s_mul_i32 s%d, s%d, 3' % (sT2, sT2))
        a('s_xor_b32 s%d, s%d, s%d' % (sT0, sT0, sT2))
        a('s_lshl_b32 s%d, s%d, 13' % (sT0, sT0))
    else:
        raise ValueError(cfg.low)
    a('s_lshl_b32 s%d, s%d, 20' % (sBase, sP))
    a('s_add_u32 s%d, s%d, s%d' % (sBase, sBase, sT0))
    if cfg.xr:
        if cfg.xr == 1:
            a('s_lshr_b32 s%d, s2, 5' % sT0)
        elif cfg.xr == 2:
            a('s_and_b32 s%d, s2, 7' % sT0)
        elif cfg.xr == 3:
            a('s_lshr_b32 s%d, s2, 5' % sT0)
            a('s_xor_b32 s%d, s%d, s2' % (sT0, sT0))
            a('s_and_b32 s%d, s%d, 7' % (sT0, sT0))
        elif cfg.xr == 4:
            a('s_bfe_u32 s%d, s2, 0x20005' % sT0)
        elif cfg.xr == 5:
            a('s_and_b32 s%d, s2, 3' % sT0)
        elif cfg.xr == 6:
            a('s_and_b32 s%d, s2, 1' % sT0)
            a('s_lshl_b32 s%d, s%d, 2' % (sT0, sT0))
        elif cfg.xr == 7:
            a('s_bfe_u32 s%d, s2, 0x10005' % sT0)
            a('s_lshl_b32 s%d, s%d, 2' % (sT0, sT0))
        elif cfg.xr == 8:
            a('s_mov_b32 s%d, s%d' % (sT0, sJ))
        a('s_lshl_b32 s%d, s%d, %d' % (sT0, sT0, 15 if cfg.ilv else 17))
        a('s_xor_b32 s%d, s%d, s%d' % (sBase, sBase, sT0))
    a('s_mul_i32 s%d, s3, %d' % (sLds, RING))
    if cfg.ilv:
        a('s_movk_i32 s%d, %d' % (sBig, PIECE))
    else:
        a('s_movk_i32 s%d, 4128' % sBig)
        a('v_add_u32 v%d, 4096, v%d' % (vL16b, vL16))
    a('s_mov_b32 m0, s%d' % sLds)
    if cfg.qpos < 0:
        q_addr()
    if cfg.tpos < 0:
        tree_addr()
    a('s_waitcnt lgkmcnt(0)')
    a('s_mov_b64 s[24:25], s[6:7]')
    stamp('karg')
    if cfg.qpos < 0:
        q_loads()
    if cfg.tpos < 0:
        tree_loads()
    if cfg.epos < 0:
        epoch_load()
    issue_tile(0, compact=True)
    a('s_mov_b64 s[28:29], s[8:9]')
    a('s_mov_b64 s[30:31], s[26:27]')
    a('s_lshl_b32 s2, s%d, 2' % sP)
    a('s_add_u32 s2, s2, s%d' % sJ)
    a('s_getreg_b32 s%d, hwreg(HW_REG_XCC_ID, 0, 4)' % sXcc)
    if cfg.spin:
        a('s_mov_b32 s%d, %d' % (sSpin, cfg.spin))
    if cfg.prio:
        pr = {1: [0, 1, 2, 3], 2: [3, 2, 1, 0], 3: [0, 0, 1, 1], 4: [0, 1, 0, 1]}[cfg.prio]
        for w in range(4):
            if pr[w]:
                a('s_cmp_eq_u32 s3, %d' % w)
                a('s_cbranch_scc0 L_prio%d' % w)
                a('s_setprio %d' % pr[w])
                a.label('L_prio%d' % w)

    if cfg.cpf:
        a('s_getpc_b64 s[%d:%d]' % (sT0, sT0 + 1))
        a.label('L_pc')
        a('s_sub_u32 s%d, s%d, L_pc-%s' % (sT0, sT0, KMAIN))
        a('s_subb_u32 s%d, s%d, 0' % (sT0 + 1, sT0 + 1))
        a('s_lshl_b32 s%d, s%d, 2' % (sT2, sJ))
        a('s_add_u32 s%d, s%d, s3' % (sT2, sT2))
        a('s_lshl_b32 s%d, s%d, 10' % (sT2, sT2))
        a('s_min_u32 s%d, s%d, L_codeend-%s-1024' % (sT2, sT2, KMAIN))
        a('v_add_u32 v%d, s%d, v%d' % (vT0, sT2, vL16))
        a('v_mov_b32 v%d, s%d' % (vT1, sT0 + 1))
        a('v_add_co_u32 v%d, vcc, s%d, v%d' % (vT0, sT0, vT0))
        a('v_addc_co_u32 v%d, vcc, 0, v%d, vcc' % (vT1, vT1))
        a('global_load_dwordx4 %s, %s, off' % (r(vS + 60, 4), r(vT0, 2)))
    if cfg.epos == 0:
        epoch_load()
    if cfg.qpos == 0:
        q_loads()
    if cfg.tpos == 0 and cfg.tstep < 0:
        tree_loads()
    for n in range(1, NS):
        if cfg.lock >= 2:
            a('s_barrier')
        issue_tile(n)
        if cfg.tpos == n:
            tree_loads()

    a('v_and_b32 v%d, 7, v%d' % (vT0, vLane))
    a('v_mul_u32_u24 v%d, %d, v%d' % (vT0, PIECE, vT0))
    a('v_bfe_u32 v%d, v%d, 3, 1' % (vT1, vLane))
    a('v_lshlrev_b32 v%d, 8, v%d' % (vT1, vT1))
    a('v_lshrrev_b32 v%d, 4, v%d' % (vT2, vLane))
    a('v_lshlrev_b32 v%d, 4, v%d' % (vT2, vT2))
    a('v_add3_u32 v%d, v%d, v%d, v%d' % (vK, vT0, vT1, vT2))
    a('v_add_u32 v%d, s%d, v%d' % (vK, sLds, vK))
    a('v_bfe_u32 v%d, v%d, 2, 3' % (vT0, vLane))
    a('v_mul_u32_u24 v%d, %d, v%d' % (vT0, PIECE, vT0))
    a('v_lshrrev_b32 v%d, 5, v%d' % (vT1, vLane))
    a('v_lshlrev_b32 v%d, 8, v%d' % (vT1, vT1))
    a('v_and_b32 v%d, 3, v%d' % (vT2, vLane))
    a('v_lshlrev_b32 v%d, 3, v%d' % (vT2, vT2))
    a('v_add3_u32 v%d, v%d, v%d, v%d' % (vV, vT0, vT1, vT2))
    a('v_add_u32 v%d, s%d, v%d' % (vV, sLds, vV))
    a('s_mov_b32 s%d, %s' % (sC, hx(f2u(SCALE_LOG2E))))
    if cfg.compact:
        for i in range(8):
            a('v_mov_b32 v%d, 0' % (vO + i))
        for g in range(4):
            a('s_mov_b32 s%d, 0x%x' % (sMask + 2 * g, 0x000f000f << (4 * g)))
            a('s_mov_b32 s%d, s%d' % (sMask + 2 * g + 1, sMask + 2 * g))
    elif not cfg.cpf:
        for i in range(32):
            a('v_mov_b32 v%d, 0' % (vO + i))

    def tree_score():
        if cfg.treeskip:
            a('s_cmp_eq_u32 s%d, 0' % sJ)
            a('s_cbranch_scc1 L_tree')
            a('v_mov_b32 v%d, 0xff800000' % vTree)
            a('v_mov_b32 v%d, 0' % vVt)
            a('s_branch L_treedone')
            a.label('L_tree')
        for s in range(4):
            a('v_mfma_f32_16x16x32_bf16 %s, %s, %s, %s' % (
                r(vTD, 4), r(vKt + 4 * s, 4), r(vQ + 4 * s, 4), '0' if s == 0 else r(vTD, 4)))
        a('v_lshlrev_b32 v%d, 16, v%d' % (vMask, vMask))
        a('v_sub_f32 v%d, 1.0, v%d' % (vMask, vMask))
        a('v_mul_f32 v%d, %s, v%d' % (vMask, hx(f2u(NEG_BIG_LOG2E)), vMask))
        if not cfg.treeskip:
            a('s_cmp_eq_u32 s%d, 0' % sJ)
            a('s_cselect_b32 s%d, 0, 0xff800000' % sT1)
        a('v_readlane_b32 s%d, v%d, s3' % (sT2, vTD))
        a('v_mov_b32 v%d, s%d' % (vTree, sT2))
        a('v_fma_f32 v%d, v%d, s%d, v%d' % (vTree, vTree, sC, vMask))
        if not cfg.treeskip:
            a('v_add_f32 v%d, s%d, v%d' % (vTree, sT1, vTree))
        else:
            a.label('L_treedone')

    tree_done = []

    def k_tile(n):
        t = n
        slot = n % NS
        if n == 0:
            if cfg.tpos <= 0 and cfg.tstep < 0:
                vm.wait(('tile', 0), 'small', 'tree')
            else:
                vm.wait(('tile', 0), 'small')
        else:
            vm.wait(('tile', n))
        if n in (0, 3, 7):
            stamp('tile%d' % n)
        if cfg.diag >= 2 or cfg.nok:
            issue_tile(n + NS)
            return
        for w in range(2):
            for s in range(4):
                a('ds_read_b128 %s, v%d offset:%d' % (
                    r(vStage + 16 * w + 4 * s, 4), vK, slot * TILE + w * 512 + s * 64))
        a('s_waitcnt lgkmcnt(0)')
        if n == 0:
            a('s_mul_i32 s%d, s%d, 1664525' % (sTag, sE))
            a('s_add_u32 s%d, s%d, 1013904223' % (sTag, sTag))
            if cfg.local and not cfg.noX:
                a('s_cmp_eq_u32 s3, s%d' % sJ)
                a('s_cbranch_scc0 L_noxcc')
                a('s_or_b32 s%d, s%d, 0x80' % (sT1, sXcc))
                a('s_xor_b32 s%d, s%d, s%d' % (sT1, sT1, sTag))
                a('s_lshl_b32 s%d, s%d, 7' % (sT0, sP))
                a('s_lshl_b32 s%d, s%d, 3' % (sT2, sJ))
                a('s_add_u32 s%d, s%d, s%d' % (sT0, sT0, sT2))
                a('s_add_u32 s%d, s%d, %d' % (sT0, sT0, XOFF))
                a('v_mov_b32 v%d, s%d' % (vT0, sT0))
                a('v_mov_b32 v%d, s%d' % (vT2, sTag))
                a('v_mov_b32 v%d, s%d' % (vT3, sT1))
                a('s_mov_b64 exec, 1')
                a('global_store_dwordx2 v%d, %s, s[20:21] sc1' % (vT0, r(vT2, 2)))
                a('s_mov_b64 exec, -1')
                a.label('L_noxcc')
        if cfg.lock:
            a('s_barrier')
        issue_tile(n + NS)
        for s in range(4):
            for w in range(2):
                d = r(vS + 8 * t + 4 * w, 4)
                a('v_mfma_f32_16x16x32_bf16 %s, %s, %s, %s' % (
                    d, r(vStage + 16 * w + 4 * s, 4), r(vQ + 4 * s, 4), '0' if s == 0 else d))
        if cfg.xstep == n:
            mid_setup_a()
        if cfg.tstep == n:
            tree_loads()
        maybe_tree(n)

    def maybe_tree(n):
        if tree_done or 'tree' not in vm.ops:
            return
        last_tree = max(i for i, t in enumerate(vm.ops) if t == 'tree')
        last_tile = max(i for i, t in enumerate(vm.ops) if t == ('tile', n))
        if last_tree < last_tile or (n == 0 and cfg.tpos <= 0 and cfg.tstep < 0):
            if not cfg.notree:
                tree_score()
            tree_done.append(n)

    def xg_reduce(v, op):
        a('v_mov_b32 v%d, v%d' % (vT0, v))
        a('v_permlane32_swap_b32 v%d, v%d' % (vT0, v))
        a('%s v%d, v%d, v%d' % (op, v, v, vT0))
        a('v_mov_b32 v%d, v%d' % (vT0, v))
        a('v_permlane16_swap_b32 v%d, v%d' % (vT0, v))
        a('%s v%d, v%d, v%d' % (op, v, v, vT0))

    def softmax():
        n = NT * 8
        acc = [vM, vT1, vT2, vT3]
        idx = 0
        for k in range(4):
            a('v_max3_f32 v%d, v%d, v%d, v%d' % (acc[k], vS + idx, vS + idx + 1, vS + idx + 2))
            idx += 3
        k = 0
        while idx + 1 < n:
            a('v_max3_f32 v%d, v%d, v%d, v%d' % (acc[k], acc[k], vS + idx, vS + idx + 1))
            idx += 2
            k = (k + 1) % 4
        while idx < n:
            a('v_max_f32 v%d, v%d, v%d' % (acc[k], acc[k], vS + idx))
            idx += 1
        a('v_max3_f32 v%d, v%d, v%d, v%d' % (vM, vM, vT1, vT2))
        a('v_max_f32 v%d, v%d, v%d' % (vM, vM, vT3))
        xg_reduce(vM, 'v_max_f32')
        a('v_mul_f32 v%d, s%d, v%d' % (vM, sC, vM))
        a('v_mov_b32 v%d, 0' % vL)
        a('v_mov_b32 v%d, 0' % vL2)

    def probs(t):
        if cfg.nosm:
            return
        b = vS + 8 * t
        for i in range(8):
            a('v_fma_f32 v%d, v%d, s%d, -v%d' % (b + i, b + i, sC, vM))
        for i in range(8):
            a('v_exp_f32 v%d, v%d' % (b + i, b + i))
        for i in range(4):
            a('v_cvt_pk_bf16_f32 v%d, v%d, v%d' % (vP + 4 * t + i, b + 2 * i, b + 2 * i + 1))
        for i in range(4):
            a('v_add_f32 v%d, v%d, v%d' % (vL, vL, b + 2 * i))
            a('v_add_f32 v%d, v%d, v%d' % (vL2, vL2, b + 2 * i + 1))

    def finish_sum():
        a('v_add_f32 v%d, v%d, v%d' % (vL, vL, vL2))
        xg_reduce(vL, 'v_add_f32')

    def mid_setup_a():
        a('s_lshl_b32 s%d, s%d, 7' % (sT1, sP))
        a('s_add_u32 s%d, s%d, %d' % (sT1, sT1, XOFF))
        a('v_and_b32 v%d, 7, v%d' % (vFlagA, vLane))
        a('v_lshlrev_b32 v%d, 2, v%d' % (vFlagA, vFlagA))
        a('v_add_u32 v%d, s%d, v%d' % (vFlagA, sT1, vFlagA))
        vm.issue('global_load_dword v%d, v%d, s[20:21]' % (vFlag, vFlagA), 'flag')
        a('s_or_b32 s%d, s%d, 0x80' % (sT1, sXcc))
        a('v_and_b32 v%d, 1, v%d' % (vFlag + 1, vLane))
        a('v_mul_u32_u24 v%d, s%d, v%d' % (vFlag + 1, sT1, vFlag + 1))
        a('v_xor_b32 v%d, s%d, v%d' % (vFlag + 1, sTag, vFlag + 1))
        a('s_lshl_b32 s%d, s%d, 2' % (sT0, sP))
        a('s_add_u32 s%d, s%d, s3' % (sT0, sT0))
        a('s_lshl_b32 s%d, s%d, 2' % (sT0, sT0))
        a('s_add_u32 s%d, s%d, s%d' % (sT0, sT0, sJ))
        a('s_lshl_b32 s%d, s%d, 10' % (sT0, sT0))
        a('v_add_u32 v%d, s%d, v%d' % (vPub, sT0, vL16))
        a('s_lshl_b32 s%d, s2, 12' % sT0)
        for k in range(1, 4):
            a('s_add_u32 s%d, s%d, %d' % (sT1, sJ, k))
            a('s_and_b32 s%d, s%d, 3' % (sT1, sT1))
            a('s_lshl_b32 s%d, s%d, 10' % (sT1, sT1))
            a('s_add_u32 s%d, s%d, s%d' % (sT1, sT1, sT0))
            a('v_add_u32 v%d, s%d, v%d' % (vPa + k - 1, sT1, vL16))
        a('s_lshl_b32 s%d, s2, 8' % sT0)
        a('v_lshlrev_b32 v%d, 2, v%d' % (vOut, vLane))
        a('v_add_u32 v%d, s%d, v%d' % (vOut, sT0, vOut))

    def mid_setup():
        if cfg.xstep < 0:
            mid_setup_a()
        a('s_mul_i32 s%d, s3, %d' % (sT0, PSTR))
        a('s_add_u32 s%d, s%d, %d' % (sT0, sT0, RED))
        a('v_and_b32 v%d, 3, v%d' % (vT0, vLane))
        a('v_mul_u32_u24 v%d, 528, v%d' % (vT1, vT0))
        a('v_lshrrev_b32 v%d, 4, v%d' % (vT2, vLane))
        a('v_lshlrev_b32 v%d, 4, v%d' % (vT3, vT2))
        a('v_add3_u32 v%d, v%d, v%d, s%d' % (vEp1, vT1, vT3, sT0))
        if cfg.compact:
            a('v_bfe_u32 v%d, v%d, 2, 2' % (vT1, vLane))
            a('v_lshl_add_u32 v%d, v%d, 6, v%d' % (vEp1, vT1, vEp1))
        a('v_lshl_add_u32 v%d, v%d, 2, v%d' % (vT2, vT2, vT0))
        a('v_lshlrev_b32 v%d, 3, v%d' % (vMLa, vT2))
        a('v_add_u32 v%d, s%d, v%d' % (vMLa, sT0, vMLa))
        a('s_mul_i32 s%d, s3, 528' % sT0)
        a('s_add_u32 s%d, s%d, %d' % (sT0, sT0, RED))
        a('v_lshlrev_b32 v%d, 3, v%d' % (vEp2, vLane))
        a('v_add_u32 v%d, s%d, v%d' % (vEp2, sT0, vEp2))
        a('s_lshl_b32 s%d, s3, 3' % sT1)
        a('s_add_u32 s%d, s%d, %d' % (sT1, sT1, RED + MLOFF))
        a('v_mov_b32 v%d, s%d' % (vEp3, sT1))

    def write_ml():
        a('v_mov_b32 v%d, v%d' % (vG, vM))
        a('v_mov_b32 v%d, v%d' % (vG + 1, vL))
        a('s_mov_b32 exec_lo, 0x000f000f')
        a('s_mov_b32 exec_hi, 0x000f000f')
        a('ds_write_b64 v%d, %s offset:%d' % (vMLa, r(vG, 2), MLOFF))
        a('s_mov_b64 exec, -1')

    x = vS
    mreg = [x + 2 * w for w in range(NW)]
    lreg = [x + 1 + 2 * w for w in range(NW)]

    def weights():
        for w in range(NW):
            a('ds_read_b64 %s, v%d offset:%d' % (r(x + 2 * w, 2), vEp3, w * PSTR))
        a('v_lshlrev_b32 v%d, 16, v%d' % (vG, vVt))
        a('v_and_b32 v%d, 0xffff0000, v%d' % (vG + 1, vVt))
        a('s_waitcnt lgkmcnt(0)')
        a('v_max3_f32 v%d, v%d, v%d, v%d' % (vG + 2, vTree, mreg[0], mreg[1]))
        a('v_max3_f32 v%d, v%d, v%d, v%d' % (vG + 2, vG + 2, mreg[2], mreg[3]))
        for w in range(NW):
            a('v_sub_f32 v%d, v%d, v%d' % (vW + w, mreg[w], vG + 2))
        a('v_sub_f32 v%d, v%d, v%d' % (vTree, vTree, vG + 2))
        for w in range(NW):
            a('v_exp_f32 v%d, v%d' % (vW + w, vW + w))
        a('v_exp_f32 v%d, v%d' % (vTree, vTree))
        a('v_mov_b32 v%d, v%d' % (vG + 3, vTree))
        for w in range(NW):
            a('v_fmac_f32 v%d, v%d, v%d' % (vG + 3, vW + w, lreg[w]))
        if cfg.epoch:
            a('v_rcp_f32 v%d, v%d' % (vT1, vG + 3))
            a('v_log_f32 v%d, v%d' % (vT2, vG + 3))
            a('v_mov_b32 v%d, s%d' % (vG + 3, sTag))
            a('v_mul_f32 v%d, v%d, v%d' % (vTree, vTree, vT1))
            for w in range(NW):
                a('v_mul_f32 v%d, v%d, v%d' % (vW + w, vW + w, vT1))
            a('v_add_f32 v%d, v%d, v%d' % (vG + 2, vG + 2, vT2))
            a('v_mul_f32 v%d, v%d, v%d' % (vG, vG, vTree))
            a('v_mul_f32 v%d, v%d, v%d' % (vG + 1, vG + 1, vTree))

    def pv_mfma(t, b):
        if cfg.compact:
            d = r(vO + 4 * (b >> 2), 4)
            a('v_mfma_f32_16x16x32_bf16 %s, %s, %s, %s' % (d, r(vStage + 4 * b, 4), r(vPm + 4 * (b & 3), 4), d))
        else:
            a('v_mfma_f32_16x16x32_bf16 %s, %s, %s, %s' % (
                r(vO + 4 * b, 4), r(vStage + 4 * b, 4), r(vP + 4 * t, 4), r(vO + 4 * b, 4)))

    flag_read = []
    sched = {0: [1, 2], 1: [3, 4], 2: [5, 6], 3: [7]} if cfg.split else {}

    def after_step(t):
        for u in sched.get(t, []):
            probs(u)
        if cfg.split and t == 0:
            mid_setup()
        if cfg.split and t == 3:
            finish_sum()
            write_ml()

    def v_tile(n):
        t = n - NT
        slot = n % NS
        last = (n == 2 * NT - 1)
        if last and cfg.early and not cfg.diag:
            a('s_waitcnt lgkmcnt(0)')
            a('s_barrier')
            weights()
        if cfg.compact:
            for g in range(4):
                for i in range(4):
                    a('v_cndmask_b32 v%d, 0, v%d, s[%d:%d]' % (vPm + 4 * g + i, vP + 4 * t + i, sMask + 2 * g, sMask + 2 * g + 1))
        vm.wait(('tile', n))
        if not flag_read and 'flag' in vm.ops and vm.ops.index('flag') < vm.ops.index(('tile', n)) and n >= cfg.pfstep:
            a('v_cmp_ne_u32 vcc, v%d, v%d' % (vFlag, vFlag + 1))
            a.nop(5)
            a('s_cmp_eq_u64 vcc, 0')
            a('s_cselect_b32 s%d, 1, 0' % sFlag)
            if cfg.pfin:
                a('s_cbranch_scc0 L_nopfin')
                a('s_cmp_eq_u32 s3, s%d' % sJ)
                a('s_cbranch_scc0 L_nopfin')
                for k in range(3):
                    a('global_load_dword v%d, v%d, s[20:21]' % (vTD + 1, vPa + k))
                if cfg.otouch:
                    a('global_load_dword v%d, v%d, s[16:17]' % (vTD + 1, vOut))
                a.label('L_nopfin')
            flag_read.append(n)
        if n in (8, 11, 14, 15):
            stamp('tile%d' % n)
        if cfg.diag >= 2 or cfg.nov:
            if n + NS < 2 * NT:
                issue_tile(n + NS)
                if cfg.nov and cfg.diag < 2:
                    after_step(t)
            return
        for b in range(8):
            for w in range(2):
                a('ds_read_b64_tr_b16 %s, v%d offset:%d' % (
                    r(vStage + 4 * b + 2 * w, 2), vV, slot * TILE + w * 512 + b * 32))
        if n + NS < 2 * NT:
            a('s_waitcnt lgkmcnt(0)')
            if cfg.lock:
                a('s_barrier')
            issue_tile(n + NS)
            for b in ([0, 4, 1, 5, 2, 6, 3, 7] if cfg.mix else range(8)):
                pv_mfma(t, b)
            maybe_tree(n)
            after_step(t)
        else:
            for b in range(8):
                a('s_waitcnt lgkmcnt(%d)' % (14 - 2 * b))
                pv_mfma(t, b)

    for n in range(NT):
        k_tile(n)
    if cfg.stamp: stamp('presm')
    if cfg.diag < 2 and not cfg.nosm:
        softmax()
    if cfg.diag >= 2:
        mid_setup()
    elif cfg.split:
        assert NS >= 4
        probs(0)
    else:
        for t in range(NT):
            probs(t)
        finish_sum()
        mid_setup()
        write_ml()
    stamp('softmax')
    for n in range(NT, 2 * NT):
        v_tile(n)
    assert flag_read
    stamp('pv_done')
    if cfg.diag:
        a('s_endpgm')

    if cfg.compact:
        for acc in range(2):
            a('ds_write_b128 v%d, %s offset:%d' % (vEp1, r(vO + 4 * acc, 4), acc * 256))
    else:
        a('s_mov_b32 exec_lo, 0x000f000f')
        a('s_mov_b32 exec_hi, 0x000f000f')
        for b in range(8):
            a('ds_write_b128 v%d, %s offset:%d' % (vEp1, r(vO + 4 * b, 4), b * 64))
        a('s_mov_b64 exec, -1')
    a('s_waitcnt lgkmcnt(0)')
    stamp('ldsw')
    a('s_barrier')
    stamp('bar')
    y = vStage
    for w in range(NW):
        a('ds_read_b64 %s, v%d offset:%d' % (r(y + 2 * w, 2), vEp2, w * PSTR))
    if not cfg.early:
        weights()
    for w in range(NW):
        if cfg.early:
            a('s_waitcnt lgkmcnt(%d)' % (NW - 1 - w))
        a('v_fmac_f32 v%d, v%d, v%d' % (vG, vW + w, y + 2 * w))
        a('v_fmac_f32 v%d, v%d, v%d' % (vG + 1, vW + w, y + 2 * w + 1))
    stamp('red')
    a('s_cmp_eq_u32 s3, s%d' % sJ)
    a('s_cbranch_scc1 L_consumer')
    if cfg.local:
        a('s_cmp_eq_u32 s%d, 1' % sFlag)
        a('s_cbranch_scc0 L_far')
        if not cfg.nopub:
            a('global_store_dwordx4 v%d, %s, s[20:21]%s' % (vPub, r(vG, 4), (' ' + cfg.pubpol) if cfg.pubpol else ''))
        stamp('published')
        n_pub = len(stamps)
        dump_stamps()
        a('s_endpgm')
        a.label('L_far')
    a('global_store_dwordx4 v%d, %s, s[20:21] sc1' % (vPub, r(vG, 4)))
    if not cfg.local:
        stamp('published')
    dump_stamps()
    a('s_endpgm')
    a.label('L_consumer')
    z = x + 16
    def final_combine(z, sfx):
        ms = [vG + 2, z + 2, z + 6, z + 10]
        o0 = [vG, z, z + 4, z + 8]
        ls = [vG + 3, z + 3, z + 7, z + 11]
        a('v_max3_f32 v%d, v%d, v%d, v%d' % (vM, ms[0], ms[1], ms[2]))
        a('v_max_f32 v%d, v%d, v%d' % (vM, vM, ms[3]))
        for k in range(4):
            a('v_sub_f32 v%d, v%d, v%d' % (ms[k], ms[k], vM))
        for k in range(4):
            a('v_exp_f32 v%d, v%d' % (ms[k], ms[k]))
        if cfg.epoch:
            a('v_add_f32 v%d, v%d, v%d' % (vT3, ms[0], ms[1]))
            a('v_add_f32 v%d, v%d, v%d' % (vT0, ms[2], ms[3]))
            a('v_mul_f32 v%d, v%d, v%d' % (vT1, ms[0], o0[0]))
            a('v_mul_f32 v%d, v%d, v%d' % (vT2, ms[0], o0[0] + 1))
            a('v_add_f32 v%d, v%d, v%d' % (vT3, vT3, vT0))
        else:
            a('v_mul_f32 v%d, v%d, v%d' % (vT3, ms[0], ls[0]))
            a('v_mul_f32 v%d, v%d, v%d' % (vT1, ms[0], o0[0]))
            a('v_mul_f32 v%d, v%d, v%d' % (vT2, ms[0], o0[0] + 1))
            for k in range(1, 4):
                a('v_fmac_f32 v%d, v%d, v%d' % (vT3, ms[k], ls[k]))
        a('v_rcp_f32 v%d, v%d' % (vT3, vT3))
        for k in range(1, 4):
            a('v_fmac_f32 v%d, v%d, v%d' % (vT1, ms[k], o0[k]))
            a('v_fmac_f32 v%d, v%d, v%d' % (vT2, ms[k], o0[k] + 1))
        a('v_mul_f32 v%d, v%d, v%d' % (vT1, vT1, vT3))
        a('v_mul_f32 v%d, v%d, v%d' % (vT2, vT2, vT3))
        a('v_cvt_pk_bf16_f32 v%d, v%d, v%d' % (vT1, vT1, vT2))
        a('global_store_dword v%d, v%d, s[16:17]' % (vOut, vT1))
        if cfg.epoch and not cfg.noEst:
            a('s_lshl_b32 s%d, s%d, 7' % (sT0, sP))
            a('s_add_u32 s%d, s%d, %d' % (sT0, sT0, EOFF))
            a('v_mov_b32 v%d, s%d' % (vT0, sT0))
            a('v_mov_b32 v%d, s%d' % (vT2, sTag))
            a('s_cmp_eq_u32 s%d, 0' % sJ)
            a('s_cbranch_scc0 L_noEst' + sfx)
            a('s_mov_b64 exec, 1')
            a('global_store_dword v%d, v%d, s[20:21]' % (vT0, vT2))
            a.label('L_noEst' + sfx)

    def poll_loads(z):
        for k in range(3):
            a('global_load_dwordx4 %s, v%d, s[20:21] %s' % (r(z + 4 * k, 4), vPa + k, cfg.pollpol))

    def poll_check(z):
        for k in range(3):
            a('v_readfirstlane_b32 s%d, v%d' % (sT0 + k, z + 4 * k + 2))
        a('v_xor_b32 v%d, s%d, v%d' % (vT1, sTag, z + 3))
        a('v_xor_b32 v%d, s%d, v%d' % (vT2, sTag, z + 7))
        a('v_xor_b32 v%d, s%d, v%d' % (vT3, sTag, z + 11))
        a('v_or3_b32 v%d, v%d, v%d, v%d' % (vT1, vT1, vT2, vT3))
        a('v_xor_b32 v%d, s%d, v%d' % (vT0, sT0, z + 2))
        a('v_xor_b32 v%d, s%d, v%d' % (vT2, sT0 + 1, z + 6))
        a('v_xor_b32 v%d, s%d, v%d' % (vT3, sT0 + 2, z + 10))
        a('v_or3_b32 v%d, v%d, v%d, v%d' % (vT0, vT0, vT2, vT3))
        a('v_or_b32 v%d, v%d, v%d' % (vT1, vT1, vT0))
        a('v_cmp_ne_u32 vcc, 0, v%d' % vT1)

    if cfg.stag:
        z2 = z + 16
        poll_loads(z)
        a.label('L_poll')
        poll_loads(z2)
        a('s_waitcnt vmcnt(3)')
        poll_check(z)
        spin_guard('L_end')
        a('s_cbranch_vccz L_polled')
        poll_loads(z)
        a('s_waitcnt vmcnt(3)')
        poll_check(z2)
        a('s_cbranch_vccnz L_poll')
        final_combine(z2, 'b')
        a('s_endpgm')
        a.label('L_polled')
    else:
        a.label('L_poll')
        if cfg.nopoll:
            a('s_branch L_polled2')
        poll_loads(z)
        a('s_waitcnt vmcnt(0)')
        poll_check(z)
        spin_guard('L_end')
        if not cfg.tight:
            a.nop(5)
        if cfg.psleep:
            a('s_cbranch_vccz L_polled')
            a('s_sleep %d' % cfg.psleep)
            a('s_branch L_poll')
            a.label('L_polled')
        else:
            a('s_cbranch_vccnz L_poll')
    if cfg.nopoll:
        a.label('L_polled2')
    stamp('polled')
    final_combine(z, 'a')
    stamp('out')
    dump_stamps()
    a.label('L_end')
    a('s_endpgm')
    if cfg.cpf:
        a.label('L_codeend')
    return a, LDS, nvgpr


KD = """.section .rodata,"a"
.p2align 6
.amdhsa_kernel %s
  .amdhsa_next_free_vgpr %d
  .amdhsa_next_free_sgpr %d
  .amdhsa_accum_offset %d
  .amdhsa_group_segment_fixed_size 0
  .amdhsa_kernarg_size 72
  .amdhsa_user_sgpr_count 2
  .amdhsa_user_sgpr_kernarg_segment_ptr 1
  .amdhsa_system_sgpr_workgroup_id_x 1
.end_amdhsa_kernel
"""


def kernel_text(name, body):
    return ('.text\n.globl %s\n.p2align 8\n.type %s,@function\n%s:\n' % (name, name, name)) + body


def generate(cfg):
    a, lds, nv = gen_main(cfg)
    out = HEADER
    out += '; @launch grid=(256,1,1) block=(%d,1,1) lds=%d\n' % (256, lds)
    out += '.amdgcn_target "amdgcn-amd-amdhsa--gfx950"\n'
    out += kernel_text(KMAIN, a.finalize())
    nva = (nv + 7) // 8 * 8
    out += KD % (KMAIN, nva, 100, (nva + 3) // 4 * 4)
    return out


if __name__ == '__main__':
    ap = argparse.ArgumentParser()
    ap.add_argument('-o', default='cdna_kernels/' + NAME + '.s')
    ap.add_argument('opts', nargs='*', help='key=value')
    args = ap.parse_args()
    kw = {}
    for o in args.opts:
        k, v = o.split('=', 1)
        try:
            v = int(v)
        except ValueError:
            pass
        kw[k] = v
    cfg = Cfg(**kw)
    txt = generate(cfg)
    open(args.o, 'w').write(txt)
    print('wrote', args.o, len(txt), 'bytes')
    if cfg.stamp:
        open(args.o[:-2] + '.names', 'w').write('\n'.join(cfg.stamp_names) + '\n')
```

```python
import argparse
import math
import os
import struct
import sys

sys.path.insert(0, os.path.dirname(os.path.abspath(__file__)))
from asmlib import Asm

NAME = 'standalone__tree_speculative_verify_tree_attention_over_candidate_token_tree__decode'
KMAIN = NAME + '_kernel'

HEADER = """; Kernarg layout for this problem (72 bytes, ptrs only, base s[0:1]):
;
;   the pair's 4 query heads.  The 32 workgroups with equal id%8 cover 8 whole pairs (speed only).
;   pair exchange 16-byte granules {O, lse, O, tag} through d_ws: workgroup j finishes head j.
"""


def f2u(x):
    return struct.unpack('<I', struct.pack('<f', x))[0]


def hx(x):
    return '0x%08x' % (x & 0xffffffff)


SCALE_LOG2E = (128.0 ** -0.5) * math.log2(math.e)
NEG_BIG_LOG2E = -1.0e9 * math.log2(math.e)

PIECE = 1056
TILE = 8 * PIECE
NW = 4
NT = 8
NS = 4
RING = NS * TILE
RED = NW * RING
PSTR = 2240
MLOFF = 2112
LDS = RED + NW * PSTR
EOFF = 0x100000
XOFF = 0x110000
SPIN = 4000000


class VM:
    def __init__(self, a):
        self.a = a
        self.ops = []

    def issue(self, text, tag):
        self.a(text)
        self.ops.append(tag)

    def wait(self, *tags):
        last = max(i for i, t in enumerate(self.ops) if t in tags)
        n = len(self.ops) - 1 - last
        assert n <= 63, n
        self.a('s_waitcnt vmcnt(%d)' % n)


def gen_main(map0=False):
    a = Asm()
    vm = VM(a)
    C = a.comment

    sFlag, sSpin = 22, 23
    sBase, sOff, sLds, sC = 32, 33, 34, 35
    sP, sJ = 36, 37
    sT0, sT1, sT2 = 38, 39, 40
    sPiece, sXcc = 42, 43
    sMask = 88
    s4k, sE, sTag = 97, 98, 99
    vFlagA, vLane, vL16, vL16w, vK, vV = 0, 1, 2, 3, 4, 5
    vT0, vT1, vT2, vT3 = 6, 7, 8, 9
    vTree, vVt, vMask = 10, 11, 12
    vL2 = 12
    vM, vL = 13, 14
    vQ = 16
    vStage = 32
    vS = 64
    vP = vS + NT * 8
    vO = vP + NT * 4
    vPm = vO + 8
    vKt = vO + 32
    vTD = vKt + 16
    nvgpr = vTD + 4
    vEp1, vEp2, vEp3, vPub, vOut = vKt, vKt + 1, vKt + 2, vKt + 3, vKt + 4
    vPa = vKt + 5
    vG = vKt + 8
    vW = vKt + 12
    vMLa = vTD
    vPf = vTD + 1
    vFlag = vTD + 2

    def r(base, n):
        return 'v[%d:%d]' % (base, base + n - 1)

    def issue_step(n, first=False):
        srd = 's[24:27]' if n < NT else 's[28:31]'
        d = (n % NT) << 15
        for i in range(8):
            if first:
                if i > 0:
                    a('s_add_u32 m0, m0, s%d' % sPiece)
            else:
                a('s_add_u32 m0, s%d, %d' % (sLds, (n % NS) * TILE + i * PIECE))
            if i > 0:
                a('s_add_u32 s%d, s%d, s%d' % (sOff, sOff, s4k))
            elif d:
                a('s_xor_b32 s%d, s%d, %d' % (sOff, sBase, d))
            else:
                a('s_mov_b32 s%d, s%d' % (sOff, sBase))
            vm.issue('buffer_load_dwordx4 v%d, %s, s%d offen nt lds' % (vL16w, srd, sOff), ('tile', n))

    a('s_load_dwordx16 s[4:19], s[0:1], 0')
    a('s_load_dwordx2 s[20:21], s[0:1], 64')
    a('s_cmp_ge_u32 s2, 256')
    a('s_cbranch_scc1 L_end')
    a('v_readfirstlane_b32 s3, v0')
    a('v_and_b32 v%d, 63, v0' % vLane)
    a('v_lshlrev_b32 v%d, 4, v%d' % (vL16, vLane))
    a('s_mov_b32 s26, 0x4000000')
    a('s_mov_b32 s27, 0x20000')
    a('s_lshr_b32 s3, s3, 6')
    C('workgroup -> pair p = (id & 7)*8 + (id >> 5), quarter j = (id >> 3) & 3')
    if map0:
        a('s_lshr_b32 s%d, s2, 2' % sP)
        a('s_and_b32 s%d, s2, 3' % sJ)
    else:
        a('s_and_b32 s%d, s2, 7' % sT0)
        a('s_bfe_u32 s%d, s2, 0x20003' % sJ)
        a('s_lshr_b32 s%d, s2, 5' % sT1)
        a('s_lshl_b32 s%d, s%d, 3' % (sP, sT0))
        a('s_add_u32 s%d, s%d, s%d' % (sP, sP, sT1))
    a('s_lshl_b32 s%d, s%d, 18' % (sT0, sJ))
    a('s_lshl_b32 s%d, s3, 10' % sT1)
    a('v_add_u32 v%d, s%d, v%d' % (vL16w, sT1, vL16))
    a('s_movk_i32 s%d, 0x1000' % s4k)
    a('s_lshl_b32 s%d, s%d, 20' % (sBase, sP))
    a('s_add_u32 s%d, s%d, s%d' % (sBase, sBase, sT0))
    a('s_mul_i32 s%d, s3, %d' % (sLds, RING))
    a('s_movk_i32 s%d, %d' % (sPiece, PIECE))
    a('s_mov_b32 m0, s%d' % sLds)
    C('Q operand address: lane (g, col) reads q[head = col & 3][32*step + 8*g ..]')
    a('v_and_b32 v%d, 3, v%d' % (vT0, vLane))
    a('v_lshlrev_b32 v%d, 8, v%d' % (vT0, vT0))
    a('v_lshrrev_b32 v%d, 4, v%d' % (vT1, vLane))
    a('v_lshlrev_b32 v%d, 4, v%d' % (vT1, vT1))
    a('s_lshl_b32 s%d, s%d, 10' % (sT0, sP))
    a('v_add3_u32 v%d, v%d, v%d, s%d' % (vT0, vT0, vT1, sT0))
    a('s_waitcnt lgkmcnt(0)')
    a('s_mov_b64 s[24:25], s[6:7]')
    for s in range(4):
        vm.issue('global_load_dwordx4 %s, v%d, s[4:5] offset:%d' % (r(vQ + 4 * s, 4), vT0, s * 64), 'small')
    C("epoch word of the pair: tells this launch's hand-offs from an earlier launch's")
    a('s_lshl_b32 s%d, s%d, 7' % (sT2, sP))
    a('s_add_u32 s%d, s%d, %d' % (sT2, sT2, EOFF))
    a('s_load_dword s%d, s[20:21], s%d' % (sE, sT2))
    C('K step 0')
    issue_step(0, first=True)
    a('s_mov_b64 s[28:29], s[8:9]')
    a('s_mov_b64 s[30:31], s[26:27]')
    a('s_lshl_b32 s2, s%d, 2' % sP)
    a('s_add_u32 s2, s2, s%d' % sJ)
    a('s_getreg_b32 s%d, hwreg(HW_REG_XCC_ID, 0, 4)' % sXcc)
    a('s_mov_b32 s%d, %d' % (sSpin, SPIN))
    C('k_tree operand (every row the same key), v_tree (2 values per lane), tree mask')
    a('v_lshrrev_b32 v%d, 4, v%d' % (vT1, vLane))
    a('v_lshlrev_b32 v%d, 4, v%d' % (vT1, vT1))
    a('s_lshl_b32 s%d, s%d, 8' % (sT1, sP))
    a('v_add_u32 v%d, s%d, v%d' % (vT1, sT1, vT1))
    a('v_lshlrev_b32 v%d, 2, v%d' % (vT2, vLane))
    a('v_add_u32 v%d, s%d, v%d' % (vT2, sT1, vT2))
    a('s_lshr_b32 s%d, s%d, 3' % (sT2, sP))
    a('s_lshl_b32 s%d, s%d, 1' % (sT2, sT2))
    a('v_mov_b32 v%d, s%d' % (vT3, sT2))
    for s in range(4):
        vm.issue('global_load_dwordx4 %s, v%d, s[10:11] offset:%d' % (r(vKt + 4 * s, 4), vT1, s * 64), 'small')
    vm.issue('global_load_dword v%d, v%d, s[12:13]' % (vVt, vT2), 'small')
    vm.issue('global_load_ushort v%d, v%d, s[14:15]' % (vMask, vT3), 'small')
    C('K steps 1..3; the barriers keep the four waves on the same 32 KiB block')
    for n in range(1, NS):
        a('s_barrier')
        issue_step(n)

    C('LDS read addresses.  K: lds + (m&7)*1056 + (m>>3)*256 + g*16, m = lane & 15, g = lane >> 4')
    a('v_and_b32 v%d, 7, v%d' % (vT0, vLane))
    a('v_mul_u32_u24 v%d, %d, v%d' % (vT0, PIECE, vT0))
    a('v_bfe_u32 v%d, v%d, 3, 1' % (vT1, vLane))
    a('v_lshlrev_b32 v%d, 8, v%d' % (vT1, vT1))
    a('v_lshrrev_b32 v%d, 4, v%d' % (vT2, vLane))
    a('v_lshlrev_b32 v%d, 4, v%d' % (vT2, vT2))
    a('v_add3_u32 v%d, v%d, v%d, v%d' % (vK, vT0, vT1, vT2))
    a('v_add_u32 v%d, s%d, v%d' % (vK, sLds, vK))
    C('V (transposing reads): lds + ((lane>>2)&7)*1056 + (lane>>5)*256 + (lane&3)*8')
    a('v_bfe_u32 v%d, v%d, 2, 3' % (vT0, vLane))
    a('v_mul_u32_u24 v%d, %d, v%d' % (vT0, PIECE, vT0))
    a('v_lshrrev_b32 v%d, 5, v%d' % (vT1, vLane))
    a('v_lshlrev_b32 v%d, 8, v%d' % (vT1, vT1))
    a('v_and_b32 v%d, 3, v%d' % (vT2, vLane))
    a('v_lshlrev_b32 v%d, 3, v%d' % (vT2, vT2))
    a('v_add3_u32 v%d, v%d, v%d, v%d' % (vV, vT0, vT1, vT2))
    a('v_add_u32 v%d, s%d, v%d' % (vV, sLds, vV))
    a('s_mov_b32 s%d, %s' % (sC, hx(f2u(SCALE_LOG2E))))
    for i in range(8):
        a('v_mov_b32 v%d, 0' % (vO + i))
    for g in range(4):
        a('s_mov_b32 s%d, 0x%x' % (sMask + 2 * g, 0x000f000f << (4 * g)))
        a('s_mov_b32 s%d, s%d' % (sMask + 2 * g + 1, sMask + 2 * g))

    def tree_score():
        C('tree token score of this wave\'s head, in log2 units: s*c + (1 - mask)*(-1e9*log2 e); -inf for quarters != 0')
        for s in range(4):
            a('v_mfma_f32_16x16x32_bf16 %s, %s, %s, %s' % (
                r(vTD, 4), r(vKt + 4 * s, 4), r(vQ + 4 * s, 4), '0' if s == 0 else r(vTD, 4)))
        a('v_lshlrev_b32 v%d, 16, v%d' % (vMask, vMask))
        a('v_sub_f32 v%d, 1.0, v%d' % (vMask, vMask))
        a('v_mul_f32 v%d, %s, v%d' % (vMask, hx(f2u(NEG_BIG_LOG2E)), vMask))
        a('s_cmp_eq_u32 s%d, 0' % sJ)
        a('s_cselect_b32 s%d, 0, 0xff800000' % sT1)
        a('v_readlane_b32 s%d, v%d, s3' % (sT2, vTD))
        a('v_mov_b32 v%d, s%d' % (vTree, sT2))
        a('v_fma_f32 v%d, v%d, s%d, v%d' % (vTree, vTree, sC, vMask))
        a('v_add_f32 v%d, s%d, v%d' % (vTree, sT1, vTree))

    def k_step(n):
        C('---- K step %d' % n)
        if n == 0:
            vm.wait(('tile', 0), 'small')
        else:
            vm.wait(('tile', n))
        for w in range(2):
            for s in range(4):
                a('ds_read_b128 %s, v%d offset:%d' % (
                    r(vStage + 16 * w + 4 * s, 4), vK, (n % NS) * TILE + w * 512 + s * 64))
        a('s_waitcnt lgkmcnt(0)')
        if n == 0:
            C('tag of this launch (the wait above also covered the epoch load)')
            a('s_mul_i32 s%d, s%d, 1664525' % (sTag, sE))
            a('s_add_u32 s%d, s%d, 1013904223' % (sTag, sTag))
            C('wave j publishes the XCD this workgroup runs on: {tag, tag ^ (0x80 | xcc)}')
            a('s_cmp_eq_u32 s3, s%d' % sJ)
            a('s_cbranch_scc0 L_noxcc')
            a('s_or_b32 s%d, s%d, 0x80' % (sT1, sXcc))
            a('s_xor_b32 s%d, s%d, s%d' % (sT1, sT1, sTag))
            a('s_lshl_b32 s%d, s%d, 7' % (sT0, sP))
            a('s_lshl_b32 s%d, s%d, 3' % (sT2, sJ))
            a('s_add_u32 s%d, s%d, s%d' % (sT0, sT0, sT2))
            a('s_add_u32 s%d, s%d, %d' % (sT0, sT0, XOFF))
            a('v_mov_b32 v%d, s%d' % (vT0, sT0))
            a('v_mov_b32 v%d, s%d' % (vT2, sTag))
            a('v_mov_b32 v%d, s%d' % (vT3, sT1))
            a('s_mov_b64 exec, 1')
            a('global_store_dwordx2 v%d, %s, s[20:21] sc1' % (vT0, r(vT2, 2)))
            a('s_mov_b64 exec, -1')
            a.label('L_noxcc')
        a('s_barrier')
        issue_step(n + NS)
        for s in range(4):
            for w in range(2):
                d = r(vS + 8 * n + 4 * w, 4)
                a('v_mfma_f32_16x16x32_bf16 %s, %s, %s, %s' % (
                    d, r(vStage + 16 * w + 4 * s, 4), r(vQ + 4 * s, 4), '0' if s == 0 else d))
        if n == 0:
            tree_score()

    def xg_reduce(v, op):
        a('v_mov_b32 v%d, v%d' % (vT0, v))
        a('v_permlane32_swap_b32 v%d, v%d' % (vT0, v))
        a('%s v%d, v%d, v%d' % (op, v, v, vT0))
        a('v_mov_b32 v%d, v%d' % (vT0, v))
        a('v_permlane16_swap_b32 v%d, v%d' % (vT0, v))
        a('%s v%d, v%d, v%d' % (op, v, v, vT0))

    def row_max():
        C('---- exact row max over this wave\'s 256 keys (lane (g, col): head col & 3)')
        n = NT * 8
        acc = [vM, vT1, vT2, vT3]
        idx = 0
        for k in range(4):
            a('v_max3_f32 v%d, v%d, v%d, v%d' % (acc[k], vS + idx, vS + idx + 1, vS + idx + 2))
            idx += 3
        k = 0
        while idx + 1 < n:
            a('v_max3_f32 v%d, v%d, v%d, v%d' % (acc[k], acc[k], vS + idx, vS + idx + 1))
            idx += 2
            k = (k + 1) % 4
        while idx < n:
            a('v_max_f32 v%d, v%d, v%d' % (acc[k], acc[k], vS + idx))
            idx += 1
        a('v_max3_f32 v%d, v%d, v%d, v%d' % (vM, vM, vT1, vT2))
        a('v_max_f32 v%d, v%d, v%d' % (vM, vM, vT3))
        xg_reduce(vM, 'v_max_f32')
        a('v_mul_f32 v%d, s%d, v%d' % (vM, sC, vM))
        a('v_mov_b32 v%d, 0' % vL)
        a('v_mov_b32 v%d, 0' % vL2)

    def probs(t):
        C('P(%d) = exp2(S*c - max), packed to bf16; running row sums' % t)
        b = vS + 8 * t
        for i in range(8):
            a('v_fma_f32 v%d, v%d, s%d, -v%d' % (b + i, b + i, sC, vM))
        for i in range(8):
            a('v_exp_f32 v%d, v%d' % (b + i, b + i))
        for i in range(4):
            a('v_cvt_pk_bf16_f32 v%d, v%d, v%d' % (vP + 4 * t + i, b + 2 * i, b + 2 * i + 1))
        for i in range(4):
            a('v_add_f32 v%d, v%d, v%d' % (vL, vL, b + 2 * i))
            a('v_add_f32 v%d, v%d, v%d' % (vL2, vL2, b + 2 * i + 1))

    def finish_sum():
        C('row sum complete: (max, sum) of this wave -> LDS')
        a('v_add_f32 v%d, v%d, v%d' % (vL, vL, vL2))
        xg_reduce(vL, 'v_add_f32')
        a('v_mov_b32 v%d, v%d' % (vG, vM))
        a('v_mov_b32 v%d, v%d' % (vG + 1, vL))
        a('s_mov_b32 exec_lo, 0x000f000f')
        a('s_mov_b32 exec_hi, 0x000f000f')
        a('ds_write_b64 v%d, %s offset:%d' % (vMLa, r(vG, 2), MLOFF))
        a('s_mov_b64 exec, -1')

    def mid_setup():
        C('everything the tail needs, computed while V is in flight')
        C("XCD records of the pair's four workgroups (8 dwords) and what they look like on this XCD")
        a('s_lshl_b32 s%d, s%d, 7' % (sT1, sP))
        a('s_add_u32 s%d, s%d, %d' % (sT1, sT1, XOFF))
        a('v_and_b32 v%d, 7, v%d' % (vFlagA, vLane))
        a('v_lshlrev_b32 v%d, 2, v%d' % (vFlagA, vFlagA))
        a('v_add_u32 v%d, s%d, v%d' % (vFlagA, sT1, vFlagA))
        vm.issue('global_load_dword v%d, v%d, s[20:21]' % (vFlag, vFlagA), 'flag')
        a('s_or_b32 s%d, s%d, 0x80' % (sT1, sXcc))
        a('v_and_b32 v%d, 1, v%d' % (vFlag + 1, vLane))
        a('v_mul_u32_u24 v%d, s%d, v%d' % (vFlag + 1, sT1, vFlag + 1))
        a('v_xor_b32 v%d, s%d, v%d' % (vFlag + 1, sTag, vFlag + 1))
        C('publish address: inbox of workgroup p*4 + h, slot j')
        a('s_lshl_b32 s%d, s%d, 2' % (sT0, sP))
        a('s_add_u32 s%d, s%d, s3' % (sT0, sT0))
        a('s_lshl_b32 s%d, s%d, 2' % (sT0, sT0))
        a('s_add_u32 s%d, s%d, s%d' % (sT0, sT0, sJ))
        a('s_lshl_b32 s%d, s%d, 10' % (sT0, sT0))
        a('v_add_u32 v%d, s%d, v%d' % (vPub, sT0, vL16))
        C('own inbox: slots (j+1 .. j+3) & 3')
        a('s_lshl_b32 s%d, s2, 12' % sT0)
        for k in range(1, 4):
            a('s_add_u32 s%d, s%d, %d' % (sT1, sJ, k))
            a('s_and_b32 s%d, s%d, 3' % (sT1, sT1))
            a('s_lshl_b32 s%d, s%d, 10' % (sT1, sT1))
            a('s_add_u32 s%d, s%d, s%d' % (sT1, sT1, sT0))
            a('v_add_u32 v%d, s%d, v%d' % (vPa + k - 1, sT1, vL16))
        C('output address (the head a workgroup finishes is its quarter index)')
        a('s_lshl_b32 s%d, s2, 8' % sT0)
        a('v_lshlrev_b32 v%d, 2, v%d' % (vOut, vLane))
        a('v_add_u32 v%d, s%d, v%d' % (vOut, sT0, vOut))
        C('LDS: partial O write address RED + wave*PSTR + h*528 + s*64 + g*16, lane = (g, s, h)')
        a('s_mul_i32 s%d, s3, %d' % (sT0, PSTR))
        a('s_add_u32 s%d, s%d, %d' % (sT0, sT0, RED))
        a('v_and_b32 v%d, 3, v%d' % (vT0, vLane))
        a('v_mul_u32_u24 v%d, 528, v%d' % (vT1, vT0))
        a('v_lshrrev_b32 v%d, 4, v%d' % (vT2, vLane))
        a('v_lshlrev_b32 v%d, 4, v%d' % (vT3, vT2))
        a('v_add3_u32 v%d, v%d, v%d, s%d' % (vEp1, vT1, vT3, sT0))
        a('v_bfe_u32 v%d, v%d, 2, 2' % (vT1, vLane))
        a('v_lshl_add_u32 v%d, v%d, 6, v%d' % (vEp1, vT1, vEp1))
        C('(max, sum) go to RED + wave*PSTR + MLOFF + (g*4 + h)*8')
        a('v_lshl_add_u32 v%d, v%d, 2, v%d' % (vT2, vT2, vT0))
        a('v_lshlrev_b32 v%d, 3, v%d' % (vMLa, vT2))
        a('v_add_u32 v%d, s%d, v%d' % (vMLa, sT0, vMLa))
        C('LDS read addresses of the cross-wave reduction (wave h reduces head h)')
        a('s_mul_i32 s%d, s3, 528' % sT0)
        a('s_add_u32 s%d, s%d, %d' % (sT0, sT0, RED))
        a('v_lshlrev_b32 v%d, 3, v%d' % (vEp2, vLane))
        a('v_add_u32 v%d, s%d, v%d' % (vEp2, sT0, vEp2))
        a('s_lshl_b32 s%d, s3, 3' % sT1)
        a('s_add_u32 s%d, s%d, %d' % (sT1, sT1, RED + MLOFF))
        a('v_mov_b32 v%d, s%d' % (vEp3, sT1))

    x = vS
    mreg = [x + 2 * w for w in range(NW)]
    lreg = [x + 1 + 2 * w for w in range(NW)]

    gO0, gLse, gO1, gTag = vG, vG + 1, vG + 2, vG + 3

    def weights():
        C('weights of the four waves and the tree token, normalised by the workgroup sum; lse; tree term')
        for w in range(NW):
            a('ds_read_b64 %s, v%d offset:%d' % (r(x + 2 * w, 2), vEp3, w * PSTR))
        a('v_lshlrev_b32 v%d, 16, v%d' % (gO0, vVt))
        a('v_and_b32 v%d, 0xffff0000, v%d' % (gO1, vVt))
        a('s_waitcnt lgkmcnt(0)')
        a('v_max3_f32 v%d, v%d, v%d, v%d' % (gLse, vTree, mreg[0], mreg[1]))
        a('v_max3_f32 v%d, v%d, v%d, v%d' % (gLse, gLse, mreg[2], mreg[3]))
        for w in range(NW):
            a('v_sub_f32 v%d, v%d, v%d' % (vW + w, mreg[w], gLse))
        a('v_sub_f32 v%d, v%d, v%d' % (vTree, vTree, gLse))
        for w in range(NW):
            a('v_exp_f32 v%d, v%d' % (vW + w, vW + w))
        a('v_exp_f32 v%d, v%d' % (vTree, vTree))
        a('v_mov_b32 v%d, v%d' % (gTag, vTree))
        for w in range(NW):
            a('v_fmac_f32 v%d, v%d, v%d' % (gTag, vW + w, lreg[w]))
        a('v_rcp_f32 v%d, v%d' % (vT1, gTag))
        a('v_log_f32 v%d, v%d' % (vT2, gTag))
        a('v_mov_b32 v%d, s%d' % (gTag, sTag))
        a('v_mul_f32 v%d, v%d, v%d' % (vTree, vTree, vT1))
        for w in range(NW):
            a('v_mul_f32 v%d, v%d, v%d' % (vW + w, vW + w, vT1))
        a('v_add_f32 v%d, v%d, v%d' % (gLse, gLse, vT2))
        a('v_mul_f32 v%d, v%d, v%d' % (gO0, gO0, vTree))
        a('v_mul_f32 v%d, v%d, v%d' % (gO1, gO1, vTree))

    def pv_mfma(b):
        d = r(vO + 4 * (b >> 2), 4)
        a('v_mfma_f32_16x16x32_bf16 %s, %s, %s, %s' % (d, r(vStage + 4 * b, 4), r(vPm + 4 * (b & 3), 4), d))

    flag_read = []
    sched = {0: [1, 2], 1: [3, 4], 2: [5, 6], 3: [7]}

    def v_step(n):
        t = n - NT
        C('---- V step %d' % t)
        if n == 2 * NT - 1:
            C('all (max, sum) were written long ago: rendezvous once, weights while the last step lands')
            a('s_waitcnt lgkmcnt(0)')
            a('s_barrier')
            weights()
        for g in range(4):
            for i in range(4):
                a('v_cndmask_b32 v%d, 0, v%d, s[%d:%d]' % (
                    vPm + 4 * g + i, vP + 4 * t + i, sMask + 2 * g, sMask + 2 * g + 1))
        vm.wait(('tile', n))
        if not flag_read and 'flag' in vm.ops and vm.ops.index('flag') < vm.ops.index(('tile', n)):
            C('the record load is older than this step.  sFlag = 1 iff all four workgroups run on this XCD')
            a('v_cmp_ne_u32 vcc, v%d, v%d' % (vFlag, vFlag + 1))
            a.nop(5)
            a('s_cmp_eq_u64 vcc, 0')
            a('s_cselect_b32 s%d, 1, 0' % sFlag)
            C('then wave j pulls its inbox lines into the L2 its producers will write to')
            a('s_cbranch_scc0 L_nopfin')
            a('s_cmp_eq_u32 s3, s%d' % sJ)
            a('s_cbranch_scc0 L_nopfin')
            for k in range(3):
                a('global_load_dword v%d, v%d, s[20:21]' % (vPf, vPa + k))
            a.label('L_nopfin')
            flag_read.append(n)
        for b in range(8):
            for w in range(2):
                a('ds_read_b64_tr_b16 %s, v%d offset:%d' % (
                    r(vStage + 4 * b + 2 * w, 2), vV, (n % NS) * TILE + w * 512 + b * 32))
        if n + NS < 2 * NT:
            a('s_waitcnt lgkmcnt(0)')
            a('s_barrier')
            issue_step(n + NS)
            for b in [0, 4, 1, 5, 2, 6, 3, 7]:
                pv_mfma(b)
            for u in sched.get(t, []):
                probs(u)
            if t == 0:
                mid_setup()
            if t == 3:
                finish_sum()
        else:
            for b in range(8):
                a('s_waitcnt lgkmcnt(%d)' % (14 - 2 * b))
                pv_mfma(b)

    for n in range(NT):
        k_step(n)
    row_max()
    probs(0)
    for n in range(NT, 2 * NT):
        v_step(n)
    assert flag_read

    C('---- wave partial -> LDS, wave h reduces head h over the waves')
    for acc in range(2):
        a('ds_write_b128 v%d, %s offset:%d' % (vEp1, r(vO + 4 * acc, 4), acc * 256))
    a('s_waitcnt lgkmcnt(0)')
    a('s_barrier')
    y = vStage
    for w in range(NW):
        a('ds_read_b64 %s, v%d offset:%d' % (r(y + 2 * w, 2), vEp2, w * PSTR))
    for w in range(NW):
        a('s_waitcnt lgkmcnt(%d)' % (NW - 1 - w))
        a('v_fmac_f32 v%d, v%d, v%d' % (gO0, vW + w, y + 2 * w))
        a('v_fmac_f32 v%d, v%d, v%d' % (gO1, vW + w, y + 2 * w + 1))
    a('s_cmp_eq_u32 s3, s%d' % sJ)
    a('s_cbranch_scc1 L_consumer')
    C('---- producer: granule -> inbox of workgroup p*4 + h, slot j')
    C('unseen or foreign XCD records count as "another XCD": the write-through store is right for any placement')
    a('s_cmp_eq_u32 s%d, 1' % sFlag)
    a('s_cbranch_scc0 L_far')
    a('global_store_dwordx4 v%d, %s, s[20:21]' % (vPub, r(vG, 4)))
    a('s_endpgm')
    a.label('L_far')
    a('global_store_dwordx4 v%d, %s, s[20:21] sc1' % (vPub, r(vG, 4)))
    a('s_endpgm')
    C('---- consumer: wait for the three other quarters of head j')
    a.label('L_consumer')
    z = x + 16
    a.label('L_poll')
    for k in range(3):
        a('global_load_dwordx4 %s, v%d, s[20:21] sc1' % (r(z + 4 * k, 4), vPa + k))
    a('s_waitcnt vmcnt(0)')
    C("a granule is this launch's iff its tag matches; all lanes of a slot must also agree on lse")
    for k in range(3):
        a('v_readfirstlane_b32 s%d, v%d' % (sT0 + k, z + 4 * k + 1))
    a('v_xor_b32 v%d, s%d, v%d' % (vT1, sTag, z + 3))
    a('v_xor_b32 v%d, s%d, v%d' % (vT2, sTag, z + 7))
    a('v_xor_b32 v%d, s%d, v%d' % (vT3, sTag, z + 11))
    a('v_or3_b32 v%d, v%d, v%d, v%d' % (vT1, vT1, vT2, vT3))
    a('v_xor_b32 v%d, s%d, v%d' % (vT0, sT0, z + 1))
    a('v_xor_b32 v%d, s%d, v%d' % (vT2, sT0 + 1, z + 5))
    a('v_xor_b32 v%d, s%d, v%d' % (vT3, sT0 + 2, z + 9))
    a('v_or3_b32 v%d, v%d, v%d, v%d' % (vT0, vT0, vT2, vT3))
    a('v_or_b32 v%d, v%d, v%d' % (vT1, vT1, vT0))
    a('v_cmp_ne_u32 vcc, 0, v%d' % vT1)
    a('s_sub_u32 s%d, s%d, 1' % (sSpin, sSpin))
    a('s_cbranch_scc1 L_end')
    a('s_cbranch_vccnz L_poll')
    C('out = sum_k 2^(lse_k - M) O_k / sum_k 2^(lse_k - M)')
    ms = [gLse, z + 1, z + 5, z + 9]
    o0 = [gO0, z, z + 4, z + 8]
    o1 = [gO1, z + 2, z + 6, z + 10]
    a('v_max3_f32 v%d, v%d, v%d, v%d' % (vM, ms[0], ms[1], ms[2]))
    a('v_max_f32 v%d, v%d, v%d' % (vM, vM, ms[3]))
    for k in range(4):
        a('v_sub_f32 v%d, v%d, v%d' % (ms[k], ms[k], vM))
    for k in range(4):
        a('v_exp_f32 v%d, v%d' % (ms[k], ms[k]))
    a('v_add_f32 v%d, v%d, v%d' % (vT3, ms[0], ms[1]))
    a('v_add_f32 v%d, v%d, v%d' % (vT0, ms[2], ms[3]))
    a('v_mul_f32 v%d, v%d, v%d' % (vT1, ms[0], o0[0]))
    a('v_mul_f32 v%d, v%d, v%d' % (vT2, ms[0], o1[0]))
    a('v_add_f32 v%d, v%d, v%d' % (vT3, vT3, vT0))
    a('v_rcp_f32 v%d, v%d' % (vT3, vT3))
    for k in range(1, 4):
        a('v_fmac_f32 v%d, v%d, v%d' % (vT1, ms[k], o0[k]))
        a('v_fmac_f32 v%d, v%d, v%d' % (vT2, ms[k], o1[k]))
    a('v_mul_f32 v%d, v%d, v%d' % (vT1, vT1, vT3))
    a('v_mul_f32 v%d, v%d, v%d' % (vT2, vT2, vT3))
    a('v_cvt_pk_bf16_f32 v%d, v%d, v%d' % (vT1, vT1, vT2))
    a('global_store_dword v%d, v%d, s[16:17]' % (vOut, vT1))
    C('every wave of the pair has read the epoch word long ago: advance it for the next launch')
    a('s_lshl_b32 s%d, s%d, 7' % (sT0, sP))
    a('s_add_u32 s%d, s%d, %d' % (sT0, sT0, EOFF))
    a('v_mov_b32 v%d, s%d' % (vT0, sT0))
    a('v_mov_b32 v%d, s%d' % (vT2, sTag))
    a('s_cmp_eq_u32 s%d, 0' % sJ)
    a('s_cbranch_scc0 L_end')
    a('s_mov_b64 exec, 1')
    a('global_store_dword v%d, v%d, s[20:21]' % (vT0, vT2))
    a.label('L_end')
    a('s_endpgm')
    return a, nvgpr


KD = """.section .rodata,"a"
.p2align 6
.amdhsa_kernel %s
  .amdhsa_next_free_vgpr %d
  .amdhsa_next_free_sgpr %d
  .amdhsa_accum_offset %d
  .amdhsa_group_segment_fixed_size 0
  .amdhsa_kernarg_size 72
  .amdhsa_user_sgpr_count 2
  .amdhsa_user_sgpr_kernarg_segment_ptr 1
  .amdhsa_system_sgpr_workgroup_id_x 1
.end_amdhsa_kernel
"""


def generate(map0=False):
    a, nv = gen_main(map0)
    out = HEADER
    out += '; @launch grid=(256,1,1) block=(256,1,1) lds=%d\n' % LDS
    out += '.amdgcn_target "amdgcn-amd-amdhsa--gfx950"\n'
    out += '.text\n.globl %s\n.p2align 8\n.type %s,@function\n%s:\n' % (KMAIN, KMAIN, KMAIN)
    out += a.finalize()
    nva = (nv + 7) // 8 * 8
    out += KD % (KMAIN, nva, 100, (nva + 3) // 4 * 4)
    return out


if __name__ == '__main__':
    ap = argparse.ArgumentParser()
    ap.add_argument('-o', default='cdna_kernels/' + NAME + '.s')
    ap.add_argument('--map0', action='store_true', help='test only: spread every pair over four XCDs')
    args = ap.parse_args()
    txt = generate(args.map0)
    open(args.o, 'w').write(txt)
    print('wrote', args.o, len(txt), 'bytes')
```
